```python
import torch

def _softmax(x, axis=-1):
    return torch.softmax(x, dim=axis)
def _gelu(x):
    return torch.nn.functional.gelu(x, approximate="tanh")
def _silu(x):
    return torch.nn.functional.silu(x)
def _sigmoid(x):
    return torch.sigmoid(x)
def _layernorm(x, axis=-1, eps=1e-5):
    m = x.mean(dim=axis, keepdim=True)
    v = x.var(dim=axis, keepdim=True, unbiased=False)
    return (x - m) / torch.sqrt(v + eps)
def _scatter_add(tgt, idx, src, axis=0):
    return tgt.clone().index_add_(axis, idx, src)
def _segment_sum(src, seg, n):
    out = torch.zeros((n,) + src.shape[1:], dtype=src.dtype)
    return out.index_add_(0, seg, src)
def _pad(x, pw):
    flat = tuple(v for pair in reversed(pw) for v in pair)
    return torch.nn.functional.pad(x, flat)

kernel_name = 'recurrent_scan__gqa_block_cached__mixer_channel_mlp__decode'

def setup_inputs():

    _w = (lambda a: (lambda t: t.to(torch.bfloat16) if t.is_floating_point() else t)(torch.as_tensor(a)))
    def _A_setup():
        B, Sq, D = 2, 1, 512
        Hq, Hkv, Sk, Dh = 32, 8, 32768, 128
        assert Hq % Hkv == 0, (Hq, Hkv)
        return {
            "x": _w((lambda *s: torch.randn(*s, dtype=torch.bfloat16) * 0.1)(B, Sq, D)),
            "k_cache": _w((lambda *s: torch.randn(*s, dtype=torch.bfloat16) * 0.8)(B, Hkv, Sk, Dh)),
            "v_cache": _w((lambda *s: torch.randn(*s, dtype=torch.bfloat16) * 3.2)(B, Hkv, Sk, Dh)),
            "wq": _w((lambda *s: torch.randn(*s, dtype=torch.bfloat16) * 0.8)(D, Hq * Dh) * (D ** -0.5)),
            "wo": _w((lambda *s: torch.randn(*s, dtype=torch.bfloat16) * 3.2)(Hq * Dh, D) * ((Hq * Dh) ** -0.5)),
        }
    _A_in = _A_setup()

    def _B_setup():
        B, S, D, F = 2, 1, 512, 1792
        return {
            "x": _w((lambda *s: torch.randn(*s, dtype=torch.bfloat16) * 0.1)(B, S, D)),
            "w1": _w((lambda *s: torch.randn(*s, dtype=torch.bfloat16) * 3.2)(D, F) * (D ** -0.5)),
            "b1": _w((lambda *s: torch.randn(*s, dtype=torch.bfloat16) * 3.2)(F)),
            "w2": _w((lambda *s: torch.randn(*s, dtype=torch.bfloat16) * 3.2)(F, D) * (F ** -0.5)),
            "b2": _w((lambda *s: torch.randn(*s, dtype=torch.bfloat16) * 3.2)(D)),
        }
    _B_in = _B_setup()

    return {
        "A_x": _A_in["x"],
        "A_k_cache": _A_in["k_cache"],
        "A_v_cache": _A_in["v_cache"],
        "A_wq": _A_in["wq"],
        "A_wo": _A_in["wo"],
        "B_x": _B_in["x"],
        "B_w1": _B_in["w1"],
        "B_b1": _B_in["b1"],
        "B_w2": _B_in["w2"],
        "B_b2": _B_in["b2"],
    }

def reference(A_x, A_k_cache, A_v_cache, A_wq, A_wo, B_x, B_w1, B_b1, B_w2, B_b2):
    def _A_ref(x, k_cache, v_cache, wq, wo):
        B, Sq, D = x.shape
        Hq, Dh = 32, 128
        Hkv = k_cache.shape[1]
        rep = Hq // Hkv
        q = (lambda x, *d: x.permute(*d))((x @ wq).reshape(B, Sq, Hq, Dh), 0, 2, 1, 3)
        k = (lambda x, n, axis: torch.repeat_interleave(x, n, dim=axis))(k_cache, rep, axis=1)
        v = (lambda x, n, axis: torch.repeat_interleave(x, n, dim=axis))(v_cache, rep, axis=1)
        scores = torch.einsum("bhqd,bhkd->bhqk", q, k) * (Dh ** -0.5)
        p = _softmax(scores, axis=-1)
        o = torch.einsum("bhqk,bhkd->bhqd", p, v)
        return (lambda x, *d: x.permute(*d))(o, 0, 2, 1, 3).reshape(B, Sq, Hq * Dh) @ wo

    def _B_ref(x, w1, b1, w2, b2):
        y = _layernorm(x, axis=-1)
        h = _gelu(torch.einsum("bsd,df->bsf", y, w1) + b1)
        return torch.einsum("bsf,fd->bsd", h, w2) + b2

    x = A_x
    xn = _layernorm(x, axis=-1)
    s = _A_ref(xn, A_k_cache, A_v_cache, A_wq, A_wo)
    g = _silu(_B_ref(xn, B_w1, B_b1, B_w2, B_b2))
    return x + s * g
```

```python
import re

TRANS = ("v_exp_f32", "v_log_f32", "v_rcp_f32", "v_rsq_f32", "v_sqrt_f32", "v_sin_f32", "v_cos_f32", "v_rcp_iflag_f32")

def regs_of(tok):
    tok = tok.strip()
    if tok.startswith("-"):
        tok = tok[1:]
    if tok.startswith("|") and tok.endswith("|"):
        tok = tok[1:-1]
    m = re.fullmatch(r"([vs])(\d+)", tok)
    if m:
        return {(m.group(1), int(m.group(2)))}
    m = re.fullmatch(r"([vs])\[(\d+):(\d+)\]", tok)
    if m:
        return {(m.group(1), i) for i in range(int(m.group(2)), int(m.group(3)) + 1)}
    if tok == "vcc":
        return {("s", 106), ("s", 107)}
    if tok == "vcc_lo":
        return {("s", 106)}
    if tok == "vcc_hi":
        return {("s", 107)}
    if tok == "exec":
        return {("s", 126), ("s", 127)}
    if tok == "m0":
        return {("s", 124)}
    return set()

VCC = {("s", 106), ("s", 107)}
EXEC = {("s", 126), ("s", 127)}

class Ins:
    def __init__(self, text):
        self.text = text
        code = text.split(";")[0].strip()
        parts = code.split(None, 1)
        self.op = parts[0]
        rest = parts[1] if len(parts) > 1 else ""
        toks = [t.strip() for t in rest.split(",")] if rest else []
        self.mods = ""
        if toks:
            lp = toks[-1].split(None, 1)
            toks[-1] = lp[0]
            self.mods = lp[1] if len(lp) > 1 else ""
            joined = rest
            m = re.search(r"\s(op_sel|op_sel_hi|neg_lo|neg_hi|quad_perm)\s*:", joined)
            if m:
                head = joined[:m.start()]
                self.mods = joined[m.start():]
                toks = [t.strip() for t in head.split(",")]
                lp = toks[-1].split(None, 1)
                toks[-1] = lp[0]
                if len(lp) > 1:
                    self.mods = lp[1] + " " + self.mods
        self.toks = toks
        op = self.op
        base = re.sub(r"_(e32|e64|dpp|sdwa)$", "", op)
        self.base = base
        self.kind = "other"
        self.defs = set(); self.uses = set()
        self.srcC = set(); self.srcAB = set()
        self.dpp = ("row_" in self.mods) or ("quad_perm" in self.mods) or op.endswith("_dpp")
        R = [regs_of(t) for t in toks]
        if op.startswith("v_mfma"):
            self.kind = "mfma"
            self.defs = R[0]; self.srcAB = R[1] | R[2]; self.srcC = R[3]; self.uses = self.srcAB | self.srcC
        elif op.startswith("v_"):
            self.kind = "valu"
            if base.startswith("v_permlane") and "swap" in base:
                self.defs = R[0] | R[1]; self.uses = R[0] | R[1]
            elif base.startswith("v_cmpx"):
                self.defs = R[0] | EXEC; self.uses = set().union(*R[1:])
            elif base.startswith("v_cmp"):
                self.defs = R[0]; self.uses = set().union(*R[1:])
            elif base == "v_nop":
                pass
            else:
                self.defs = R[0]; self.uses = set().union(*R[1:]) if len(R) > 1 else set()
                if base in ("v_fmac_f32", "v_mac_f32", "v_dot2c_f32_bf16", "v_pk_fmac_f16", "v_writelane_b32") or self.dpp:
                    self.uses |= R[0]
                if base == "v_cndmask_b32" and len(toks) == 4:
                    pass
                if base == "v_cndmask_b32" and len(toks) == 3:
                    self.uses |= VCC
                if base in ("v_add_co_u32", "v_sub_co_u32", "v_addc_co_u32", "v_subb_co_u32"):
                    self.defs = R[0] | R[1]; self.uses = set().union(*R[2:])
        elif op.startswith("buffer_") or op.startswith("global_"):
            self.kind = "vmem"
            if "load" in op:
                self.defs = R[0]; self.uses = set().union(*R[1:])
            else:
                self.uses = set().union(*R)
                if "atomic" in op and "sc0" in self.mods:
                    self.defs = R[0]
            self.wide = ("store" in op) and (op.endswith("x3") or op.endswith("x4"))
            self.data = R[0] if "store" in op else set()
        elif op.startswith("ds_"):
            self.kind = "ds"
            if op.startswith("ds_read") or "_rtn" in op or "permute" in op or "swizzle" in op:
                self.defs = R[0]; self.uses = set().union(*R[1:])
            else:
                self.uses = set().union(*R)
        elif op.startswith("s_"):
            self.kind = "salu"
            if op in ("s_nop",):
                self.kind = "nop"
            elif op.startswith("s_cbranch") or op == "s_branch":
                self.kind = "branch"
            elif op == "s_endpgm":
                self.kind = "end"
            elif op.startswith("s_cmp") or op in ("s_waitcnt", "s_barrier", "s_sleep", "s_setprio"):
                self.uses = set().union(*R) if R else set()
            else:
                self.defs = R[0] if R else set(); self.uses = set().union(*R[1:]) if len(R) > 1 else set()
                if "saveexec" in op:
                    self.defs |= EXEC
        self.trans = base in TRANS
        self.dot = base.startswith("v_dot")
        self.perml = base.startswith("v_permlane")
        self.rdlane = base in ("v_readlane_b32", "v_readfirstlane_b32", "v_writelane_b32")

    def states(self):
        if self.kind == "nop":
            return int(self.toks[0]) + 1
        return 1

def vset(s):
    return {r for r in s if r[0] == "v"}
def sset(s):
    return {r for r in s if r[0] == "s"}

def need(p, c):
    n = 0
    if p.kind == "valu":
        pv = vset(p.defs); ps = sset(p.defs)
        if c.kind == "mfma" and pv & c.uses: n = max(n, 2)
        if c.kind == "valu":
            if c.dpp and pv & c.uses: n = max(n, 2)
            if c.perml and pv & c.uses: n = max(n, 2)
            if c.rdlane and pv & c.uses: n = max(n, 1)
            if p.trans and not c.trans and pv & c.uses: n = max(n, 1)
            if ps & c.uses: n = max(n, 2)
            if c.rdlane and c.base != "v_readfirstlane_b32" and len(c.toks) > 2 and (regs_of(c.toks[2]) & ps): n = max(n, 4)
            if ps & EXEC:
                if c.dpp: n = max(n, 5)
                if c.rdlane or c.perml: n = max(n, 4)
            if p.dot and pv & (c.uses | c.defs):
                if c.base == p.base:
                    ab = set().union(*[regs_of(t) for t in c.toks[1:3]])
                    if pv & ab: n = max(n, 3)
                else:
                    n = max(n, 3)
            if ("op_sel" in p.mods and not p.base.startswith("v_pk") and not p.dot) or "sdwa" in p.op or "dst_sel" in p.mods:
                if pv & (c.uses | c.defs): n = max(n, 1)
        if p.dot and c.kind in ("mfma", "vmem", "ds") and pv & (c.uses | c.defs): n = max(n, 3)
        if c.kind == "mfma" and ps & EXEC: n = max(n, 4)
        if c.kind == "vmem" and ps & c.uses: n = max(n, 5)
    if p.kind == "mfma":
        d = p.defs
        if c.kind == "mfma":
            if d & c.srcAB: n = max(n, 8)
            if d & c.srcC and c.srcC != d: n = max(n, 6)
            if d & c.defs and not (d & c.srcC): n = max(n, 8)
        elif c.kind in ("valu", "vmem", "ds"):
            if d & (c.uses | c.defs): n = max(n, 8)
        if c.kind == "valu" and p.srcC & c.defs: n = max(n, 3)
    if p.kind == "vmem" and getattr(p, "wide", False):
        if p.data & c.defs:
            n = max(n, 2 if c.kind in ("valu", "mfma") else 1)
    return n

MAXD = 8

class Asm:
    def __init__(self):
        self.items = []
        self.uid = 0
    def e(self, text):
        for ln in text.split("\n"):
            ln = ln.strip()
            if not ln: continue
            if ln.endswith(":") and " " not in ln:
                self.items.append(("l", ln[:-1]))
            elif ln.startswith(".") or ln.startswith(";"):
                self.items.append(("t", ln))
            else:
                self.items.append(("i", Ins(ln)))
    def label(self, stem="L"):
        self.uid += 1
        return f"{stem}_{self.uid}"
    def fix_hazards(self):
        inserted = 0
        while True:
            items = self.items
            lab = {it[1]: k for k, it in enumerate(items) if it[0] == "l"}
            src = {}
            for k, it in enumerate(items):
                if it[0] == "i" and it[1].kind == "branch":
                    src.setdefault(lab[it[1].toks[0]], []).append(k)
            change = None
            for k, it in enumerate(items):
                if it[0] != "i": continue
                c = it[1]
                if c.kind in ("nop", "branch", "end"): continue
                worst = 0
                stack = [(k - 1, 0)]
                seen = set()
                while stack:
                    j, dist = stack.pop()
                    while j >= 0 and dist < MAXD:
                        if (j, dist) in seen: break
                        seen.add((j, dist))
                        x = items[j]
                        if x[0] == "l":
                            for b in src.get(j, []):
                                stack.append((b, dist))
                            j -= 1
                            jj = j
                            while jj >= 0 and items[jj][0] != "i":
                                if items[jj][0] == "l": break
                                jj -= 1
                            if jj >= 0 and items[jj][0] == "i" and (items[jj][1].op == "s_branch" or items[jj][1].kind == "end"):
                                break
                            continue
                        if x[0] == "t":
                            j -= 1; continue
                        p = x[1]
                        nd = need(p, c)
                        if nd - dist > worst: worst = nd - dist
                        dist += p.states()
                        j -= 1
                if worst > 0:
                    change = (k, worst); break
            if not change: break
            k, w = change
            self.items.insert(k, ("i", Ins(f"s_nop {w-1}")))
            inserted += 1
        return inserted
    def text(self):
        out = []
        for kind, x in self.items:
            if kind == "i": out.append("    " + x.text)
            elif kind == "l": out.append(x + ":")
            else: out.append(x)
        return "\n".join(out) + "\n"
```

```python
import sys, struct, math
sys.path.insert(0, "dev")
from asmlib import Asm

NAME = "recurrent_scan__gqa_block_cached__mixer_channel_mlp__decode_kernel"

def f2u(x):
    return struct.unpack("<I", struct.pack("<f", x))[0]
def hx(x):
    return f"0x{x & 0xffffffff:08x}"

QG, HG, PG, MLG, SG, PROFB = 0x1000, 0x10000, 0x20000, 0x120000, 0x130000, 0x200000
WS_SIZE = 0x300000
L_ACC, L_MC, L_L, L_CNT, L_Q = 0x0000, 0x2000, 0x2040, 0x2080, 0x2100
L_P1, L_P2, L_P3, L_G, L_OP, L_SP = 0x2500, 0x2700, 0x2900, 0x2B00, 0x2C00, 0x3000
LDS_SIZE = 0x3200

C_SC = (128 ** -0.5) * math.log2(math.e)
DPPM = "row_mask:0xf bank_mask:0xf"

def gen(prof=False, spin=1 << 16, win=8, qsleep=2, tsleep=1, dbg=False):
    a = Asm()
    e = a.e
    nstamp = [0]

    def stamp(k):
        if prof:
            e(f"s_memrealtime s[{8+2*k}:{9+2*k}]")
            e("s_waitcnt lgkmcnt(0)")

    def prof_out(srd_ready):
        if not prof:
            return
        e("s_mov_b64 exec, -1")
        e("s_load_dwordx2 s[56:57], s[0:1], 96")
        e(f"s_mov_b32 s58, {WS_SIZE}")
        e("s_mov_b32 s59, 0x00020000")
        e("s_lshl_b32 s4, s2, 3")
        e("s_add_u32 s4, s4, s3")
        e("s_lshl_b32 s4, s4, 5")
        e(f"s_add_u32 s4, s4, {PROFB}")
        for k in range(8):
            e(f"v_mov_b32 v{8+k}, s{8+2*k}")
        e("v_mov_b32 v7, 0")
        e("s_waitcnt lgkmcnt(0)")
        e("s_mov_b64 exec, 1")
        e("buffer_store_dwordx4 v[8:11], v7, s[56:59], s4 offen")
        e("buffer_store_dwordx4 v[12:15], v7, s[56:59], s4 offen offset:16")
        e("s_waitcnt vmcnt(0)")

    e(f"{NAME}:")
    e("s_cmp_ge_u32 s2, 256")
    e("s_cbranch_scc1 L_end")
    e("v_lshrrev_b32 v1, 6, v0")
    e("s_and_b32 s34, s2, 7")
    e("v_readfirstlane_b32 s3, v1")
    e("s_lshr_b32 s35, s2, 3")
    e("v_and_b32 v0, 63, v0")
    e("s_lshr_b32 s36, s35, 4")
    e("s_and_b32 s37, s35, 15")
    if prof:
        for k in range(8):
            e(f"s_mov_b32 s{8+2*k}, 0")
    e("s_cmp_ge_u32 s3, 4")
    e("s_cbranch_scc1 L_helper")

    e("s_load_dwordx4 s[4:7], s[0:1], 8")
    stamp(0)
    e("s_lshl_b32 s39, s36, 3")
    e("s_add_u32 s39, s39, s34")
    e("s_lshl_b32 s39, s39, 23")
    e("s_lshl_b32 s48, s37, 19")
    e("s_add_u32 s39, s39, s48")
    e("s_lshl_b32 s48, s3, 13")
    e("s_add_u32 s39, s39, s48")
    e(f"s_mov_b32 s42, {15*32768+8192}")
    e("s_mov_b32 s43, 0x00020000")
    e(f"s_mov_b32 s46, {15*32768+8192}")
    e("s_mov_b32 s47, 0x00020000")
    e("v_and_b32 v5, 15, v0")
    e("v_lshrrev_b32 v6, 4, v0")
    e("v_lshlrev_b32 v1, 8, v5")
    e("v_lshl_add_u32 v1, v6, 4, v1")
    e("v_add_u32 v2, 4096, v1")
    e("v_lshlrev_b32 v3, 10, v6")
    e("v_lshl_add_u32 v3, v5, 4, v3")
    e("v_add_u32 v4, 4096, v3")
    e(f"s_mov_b32 s51, {hx(f2u(C_SC))}")
    e(f"s_mov_b32 s52, {hx(f2u(-C_SC))}")
    e("s_mov_b32 s53, 0x05040100")
    e("s_mov_b32 s54, 0x07060302")
    e("s_waitcnt lgkmcnt(0)")
    e("s_add_u32 s40, s4, s39")
    e("s_addc_u32 s41, s5, 0")
    e("s_add_u32 s44, s6, s39")
    e("s_addc_u32 s45, s7, 0")

    def issue_k(slot, soff):
        kb = 64 + 64 * slot
        for T in range(2):
            for t in range(4):
                r = kb + 16 * T + 4 * t
                e(f"buffer_load_dwordx4 v[{r}:{r+3}], v{1+T}, s[40:43], {soff} offen offset:{64*t} nt")
    def issue_v(slot, soff):
        vb = 96 + 64 * slot
        for i in range(8):
            r = vb + 4 * i
            e(f"buffer_load_dwordx4 v[{r}:{r+3}], v{3+(i>>2)}, s[44:47], {soff} offen offset:{256*(i&3)} nt")

    e("s_mov_b32 s49, 0x8000")
    e("s_mov_b32 s50, 0x10000")
    e("s_barrier")
    issue_k(0, "0")
    issue_v(0, "0")
    for r in range(32, 64):
        e(f"v_mov_b32 v{r}, 0")
    e("v_and_b32 v7, 3, v5")
    e("v_lshlrev_b32 v7, 8, v7")
    e("v_lshl_add_u32 v7, v6, 4, v7")
    e("v_mov_b32 v5, 0xff800000")
    e("v_mov_b32 v6, 0")
    e(f"s_waitcnt vmcnt({win})")
    issue_k(1, "s49")
    e(f"s_waitcnt vmcnt({win})")
    issue_v(1, "s49")
    e(f"s_waitcnt vmcnt({win})")
    issue_k(2, "s50")
    e(f"s_waitcnt vmcnt({win})")
    issue_v(2, "s50")
    stamp(1)
    e("s_barrier")
    for t in range(4):
        e(f"ds_read_b128 v[{16+4*t}:{19+4*t}], v7 offset:{L_Q+64*t}")
    e("s_mov_b32 s48, 0")
    e("s_mov_b32 s49, 0x18000")
    e("s_waitcnt lgkmcnt(0)")
    stamp(2)
    e("s_branch L_st_entry")

    e("L_st_loop:")
    for slot in range(3):
        kb = 64 + 64 * slot
        vb = kb + 32
        e(f"s_waitcnt vmcnt({win})")
        e("s_cmp_ge_u32 s48, 14")
        e(f"s_cbranch_scc1 L_st_nov{slot}")
        e("s_sub_u32 s50, s49, 0x8000")
        issue_v((slot + 2) % 3, "s50")
        e(f"L_st_nov{slot}:")
        if slot == 0:
            e("L_st_entry:")
        for t in range(4):
            for T in range(2):
                d = 8 + 4 * T
                c = "0" if t == 0 else f"v[{d}:{d+3}]"
                r = kb + 16 * T + 4 * t
                e(f"v_mfma_f32_16x16x32_bf16 v[{d}:{d+3}], v[{r}:{r+3}], v[{16+4*t}:{19+4*t}], {c}")
        t0, t1, al, nm = kb + 28, kb + 29, kb + 30, kb + 31
        e(f"v_max3_f32 v{t0}, v8, v9, v10")
        e(f"v_max3_f32 v{t1}, v12, v13, v14")
        e(f"v_max3_f32 v{t0}, v{t0}, v11, v5")
        e(f"v_max3_f32 v{t0}, v{t0}, v{t1}, v15")
        e(f"v_mov_b32 v{t1}, v{t0}")
        e(f"v_permlane32_swap_b32 v{t0}, v{t1}")
        e(f"v_max_f32 v{t0}, v{t0}, v{t1}")
        e(f"v_mov_b32 v{t1}, v{t0}")
        e(f"v_permlane16_swap_b32 v{t0}, v{t1}")
        e(f"v_max_f32 v{t0}, v{t0}, v{t1}")
        e(f"v_sub_f32 v{t1}, v5, v{t0}")
        e(f"v_mul_f32 v{nm}, s52, v{t0}")
        e(f"v_mul_f32 v{t1}, s51, v{t1}")
        e(f"v_mov_b32 v5, v{t0}")
        e(f"v_exp_f32 v{al}, v{t1}")
        for i in range(8):
            e(f"v_fma_f32 v{8+i}, v{8+i}, s51, v{nm}")
        for i in range(8):
            e(f"v_exp_f32 v{8+i}, v{8+i}")
        for k in range(16):
            e(f"v_pk_mul_f32 v[{32+2*k}:{33+2*k}], v[{32+2*k}:{33+2*k}], v[{al}:{al+1}] op_sel_hi:[1,0]")
        e(f"v_mul_f32 v6, v6, v{al}")
        e(f"v_add_f32 v{t0}, v8, v9")
        e(f"v_add_f32 v{t1}, v10, v11")
        e(f"v_add_f32 v6, v6, v12")
        e(f"v_add_f32 v{t0}, v{t0}, v13")
        e(f"v_add_f32 v{t1}, v{t1}, v14")
        e(f"v_add_f32 v6, v6, v15")
        e(f"v_add_f32 v{t0}, v{t0}, v{t1}")
        e("v_cvt_pk_bf16_f32 v8, v8, v9")
        e("v_cvt_pk_bf16_f32 v9, v10, v11")
        e("v_cvt_pk_bf16_f32 v10, v12, v13")
        e("v_cvt_pk_bf16_f32 v11, v14, v15")
        e(f"v_add_f32 v6, v6, v{t0}")
        if slot == 0:
            e("s_cmp_lg_u32 s48, 15")
            e("s_cbranch_scc1 L_st_notlast")
            e("s_waitcnt vmcnt(0)")
            e("L_st_notlast:")
        def perms(jj):
            sel = "s53" if (jj & 1) == 0 else "s54"
            for q in range(4):
                e(f"v_perm_b32 v{kb+4*jj+q}, v{vb+4*(2*q+1)+(jj>>1)}, v{vb+4*(2*q)+(jj>>1)}, {sel}")
        def pv(jj):
            d = 32 + 4 * jj
            e(f"v_mfma_f32_16x16x32_bf16 v[{d}:{d+3}], v[{kb+4*jj}:{kb+4*jj+3}], v[8:11], v[{d}:{d+3}]")
        perms(0)
        for jj in range(8):
            if jj + 1 < 8:
                perms(jj + 1)
            pv(jj)
        if slot == 0:
            e("s_cmp_eq_u32 s48, 15")
            e("s_cbranch_scc1 L_st_done")
        e("s_cmp_ge_u32 s48, 13")
        e(f"s_cbranch_scc1 L_st_nok{slot}")
        e(f"s_waitcnt vmcnt({win})")
        issue_k(slot, "s49")
        e(f"L_st_nok{slot}:")
        e("s_add_u32 s48, s48, 1")
        e("s_add_u32 s49, s49, 0x8000")
    e("s_branch L_st_loop")

    e("L_st_done:")
    stamp(3)
    e("v_mov_b32 v7, v6")
    e("v_permlane32_swap_b32 v6, v7")
    e("v_add_f32 v6, v6, v7")
    e("v_mov_b32 v7, v6")
    e("v_permlane16_swap_b32 v6, v7")
    e("v_add_f32 v6, v6, v7")
    e("v_mul_f32 v5, s51, v5")
    e("v_and_b32 v1, 15, v0")
    e("v_lshrrev_b32 v2, 4, v0")
    e("v_lshl_add_u32 v2, v1, 2, v2")
    e("v_lshlrev_b32 v2, 4, v2")
    e("s_lshl_b32 s4, s3, 11")
    e("v_add_u32 v2, s4, v2")
    e("s_lshl_b32 s4, s3, 2")
    e("v_lshl_add_u32 v1, v1, 4, s4")
    e("s_mov_b32 exec_lo, 0x000f000f")
    e("s_mov_b32 exec_hi, 0x000f000f")
    for jj in range(8):
        e(f"ds_write_b128 v2, v[{32+4*jj}:{35+4*jj}] offset:{L_ACC+256*jj}")
    e("s_mov_b64 exec, 15")
    e(f"ds_write_b32 v1, v5 offset:{L_MC}")
    e(f"ds_write_b32 v1, v6 offset:{L_L}")
    e("s_waitcnt lgkmcnt(0)")
    e("s_barrier")
    stamp(4)
    prof_out(False)
    e("s_endpgm")

    X, WQ, W1, B1, WS, W2, B2, WO, OUT = 40, 44, 48, 52, 56, 60, 64, 68, 72
    def srd(r):
        return f"s[{r}:{r+3}]"
    e("L_helper:")
    e(f"s_load_dwordx2 s[{X}:{X+1}], s[0:1], 0")
    e(f"s_load_dwordx2 s[{WQ}:{WQ+1}], s[0:1], 24")
    e(f"s_load_dwordx2 s[{W1}:{W1+1}], s[0:1], 48")
    e(f"s_load_dwordx2 s[{B1}:{B1+1}], s[0:1], 56")
    e(f"s_load_dwordx2 s[{WS}:{WS+1}], s[0:1], 96")
    e(f"s_load_dwordx2 s[{W2}:{W2+1}], s[0:1], 64")
    e(f"s_load_dwordx2 s[{B2}:{B2+1}], s[0:1], 72")
    e(f"s_load_dwordx2 s[{WO}:{WO+1}], s[0:1], 32")
    e(f"s_load_dwordx2 s[{OUT}:{OUT+1}], s[0:1], 80")
    e("s_setprio 3")
    e("s_sub_u32 s39, s3, 4")
    e(f"s_mov_b32 s{X+2}, 2048")
    e(f"s_mov_b32 s{WQ+2}, {512*4096*2}")
    e("s_cmp_lt_u32 s35, 14")
    e(f"s_cselect_b32 s{W1+2}, {512*1792*2}, 0")
    e(f"s_cselect_b32 s{B1+2}, {1792*2}, 0")
    e(f"s_mov_b32 s{WS+2}, {WS_SIZE}")
    e(f"s_mov_b32 s{W2+2}, {1792*512*2}")
    e(f"s_mov_b32 s{B2+2}, 1024")
    e(f"s_mov_b32 s{WO+2}, {4096*512*2}")
    e(f"s_mov_b32 s{OUT+2}, 2048")
    for r in (X, WQ, W1, B1, WS, W2, B2, WO, OUT):
        e(f"s_mov_b32 s{r+3}, 0x00020000")
    e("v_lshrrev_b32 v1, 1, v0")
    e("v_and_b32 v14, 1, v0")
    e("v_lshlrev_b32 v15, 5, v0")
    e("s_lshl_b32 s4, s39, 7")
    e("v_lshl_add_u32 v96, v1, 2, s4")
    e("v_lshlrev_b32 v97, 1, v96")
    e("v_lshlrev_b32 v98, 13, v96")
    e("v_lshl_add_u32 v98, v14, 4, v98")
    e("s_lshl_b32 s5, s34, 10")
    e("s_lshl_b32 s6, s35, 5")
    e("s_add_u32 s5, s5, s6")
    e("s_add_u32 s6, s5, 0x2000")
    e("s_add_u32 s7, s5, 0x4000")
    e("s_add_u32 s93, s5, 0x6000")
    e("s_movk_i32 s94, 3584")
    e("v_mul_u32_u24 v99, s94, v96")
    e("v_lshl_add_u32 v99, v14, 4, v99")
    e("s_mul_i32 s95, s34, 14")
    e("s_add_u32 s95, s95, s35")
    e("s_lshl_b32 s96, s95, 5")
    e("s_add_u32 s97, s96, 7168")
    e("v_and_b32 v100, 3, v0")
    e("v_lshlrev_b32 v100, 3, v100")
    e("v_mov_b32 v101, 0")
    e(f"ds_write_b32 v100, v101 offset:{L_CNT}")
    e(f"ds_write_b32 v100, v101 offset:{L_CNT+4}")
    e("s_waitcnt lgkmcnt(0)")
    e(f"buffer_load_dwordx4 v[2:5], v15, {srd(X)}, 0 offen")
    e(f"buffer_load_dwordx4 v[6:9], v15, {srd(X)}, 0 offen offset:16")
    e(f"buffer_load_dwordx2 v[10:11], v97, {srd(X)}, 0 offen")
    e(f"buffer_load_dwordx2 v[12:13], v97, {srd(X)}, 0 offen offset:1024")
    for i, so in enumerate(("s5", "s6", "s7", "s93")):
        e(f"buffer_load_dwordx4 v[{16+4*i}:{19+4*i}], v98, {srd(WQ)}, {so} offen")
    e(f"s_load_dword s38, s[{WS}:{WS+1}], 4")
    e("s_barrier")
    stamp(0)
    for i in range(4):
        so = "s96" if i < 2 else "s97"
        e(f"buffer_load_dwordx4 v[{104+4*i}:{107+4*i}], v99, {srd(W1)}, {so} offen offset:{3584*(i&1)}")
    e(f"buffer_load_dwordx2 v[102:103], v100, {srd(B1)}, s96 offen")
    e("s_mov_b32 s76, 0x05040100")
    e("s_mov_b32 s77, 0x07060302")

    def unpack(dst, src):
        e(f"v_lshlrev_b32 v{dst}, 16, v{src}")
        e(f"v_and_b32 v{dst+1}, 0xffff0000, v{src}")

    def half_sum(r, t):
        for s in (8, 4, 2, 1):
            e(f"v_add_f32_dpp v{r}, v{r}, v{r} row_ror:{s} {DPPM}")
        e(f"v_mov_b32 v{t}, v{r}")
        e(f"v_permlane16_swap_b32 v{r}, v{t}")
        e(f"v_add_f32 v{r}, v{r}, v{t}")

    def tree16(dst, src, tmp):
        for k in range(4):
            e(f"v_pk_add_f32 v[{tmp+2*k}:{tmp+2*k+1}], v[{src+4*k}:{src+4*k+1}], v[{src+4*k+2}:{src+4*k+3}]")
        e(f"v_pk_add_f32 v[{tmp}:{tmp+1}], v[{tmp}:{tmp+1}], v[{tmp+2}:{tmp+3}]")
        e(f"v_pk_add_f32 v[{tmp+4}:{tmp+5}], v[{tmp+4}:{tmp+5}], v[{tmp+6}:{tmp+7}]")
        e(f"v_pk_add_f32 v[{tmp}:{tmp+1}], v[{tmp}:{tmp+1}], v[{tmp+4}:{tmp+5}]")
        e(f"v_add_f32 v{dst}, v{tmp}, v{tmp+1}")

    def bfr(r, t=None):
        e(f"v_cvt_pk_bf16_f32 v{r}, v{r}, v{r}")
        e(f"v_and_b32 v{r}, 0xffff0000, v{r}")

    def ln_stats(XF, MEAN, RS, TMP):
        tree16(MEAN, XF, TMP)
        half_sum(MEAN, TMP)
        e(f"v_mul_f32 v{MEAN}, {hx(f2u(1/512))}, v{MEAN}")
        D = TMP + 8
        e(f"v_mov_b32 v{TMP+1}, v{MEAN}")
        e(f"v_mov_b32 v{TMP}, v{MEAN}")
        for k in range(8):
            e(f"v_pk_add_f32 v[{D+2*k}:{D+2*k+1}], v[{XF+2*k}:{XF+2*k+1}], v[{TMP}:{TMP+1}] neg_lo:[0,1] neg_hi:[0,1]")
        for k in range(8):
            e(f"v_pk_mul_f32 v[{D+2*k}:{D+2*k+1}], v[{D+2*k}:{D+2*k+1}], v[{D+2*k}:{D+2*k+1}]")
        tree16(RS, D, TMP)
        half_sum(RS, TMP)
        e(f"v_mul_f32 v{RS}, {hx(f2u(1/512))}, v{RS}")
        bfr(MEAN)
        bfr(RS)
        e(f"v_add_f32 v{RS}, {hx(f2u(1e-5))}, v{RS}")
        bfr(RS)
        e(f"v_sqrt_f32 v{RS}, v{RS}")
        bfr(RS)
        e(f"v_rcp_f32 v{RS}, v{RS}")

    def norm_pair(r, m, rs, pk):
        e(f"v_subrev_f32 v{r}, {m}, v{r}")
        e(f"v_subrev_f32 v{r+1}, {m}, v{r+1}")
        e(f"v_cvt_pk_bf16_f32 v{pk}, v{r}, v{r+1}")
        unpack(r, pk)
        e(f"v_mul_f32 v{r}, {rs}, v{r}")
        e(f"v_mul_f32 v{r+1}, {rs}, v{r+1}")
        e(f"v_cvt_pk_bf16_f32 v{pk}, v{r}, v{r+1}")

    def slices_norm(MEAN, RS, keep):
        e(f"v_readlane_b32 s98, v{MEAN}, 0")
        e(f"v_readlane_b32 s99, v{MEAN}, 32")
        e(f"v_readlane_b32 s100, v{RS}, 0")
        e(f"v_readlane_b32 s101, v{RS}, 32")
        for bb in range(2):
            for p in range(2):
                norm_pair(48 + 4 * bb + 2 * p, f"s{98+bb}", f"s{100+bb}", 56 + 2 * bb + p)
        if keep:
            for bb in range(2):
                for p in range(2):
                    unpack(48 + 4 * bb + 2 * p, 56 + 2 * bb + p)

    def wperm(dst, r0, r1):
        for c in range(8):
            sel = "s76" if (c & 1) == 0 else "s77"
            e(f"v_perm_b32 v{dst+c}, v{r1+(c>>1)}, v{r0+(c>>1)}, {sel}")

    ACC = 80
    def dots(wp, x0, x1, first):
        for bb, xr in ((0, x0), (1, x1)):
            for c in range(8):
                d = ACC + 8 * bb + c
                if first:
                    e(f"v_dot2_f32_bf16 v{d}, v{wp+c}, v{xr}, 0")
                else:
                    e(f"v_dot2c_f32_bf16 v{d}, v{wp+c}, v{xr}")

    def reduce_publish(area, cnt, addr_reg, lab):
        for k in range(8):
            e(f"v_permlane32_swap_b32 v{ACC+k}, v{ACC+8+k}")
        for k in range(4):
            e(f"v_pk_add_f32 v[{ACC+2*k}:{ACC+2*k+1}], v[{ACC+2*k}:{ACC+2*k+1}], v[{ACC+8+2*k}:{ACC+9+2*k}]")
        for k in range(4):
            e(f"v_permlane16_swap_b32 v{ACC+k}, v{ACC+4+k}")
        for k in range(2):
            e(f"v_pk_add_f32 v[{ACC+2*k}:{ACC+2*k+1}], v[{ACC+2*k}:{ACC+2*k+1}], v[{ACC+4+2*k}:{ACC+5+2*k}]")
        for s in (8, 4, 2):
            for k in range(4):
                e(f"v_add_f32_dpp v{ACC+k}, v{ACC+k}, v{ACC+k} row_ror:{s} {DPPM}")
        e("s_mov_b32 exec_lo, 0x00030003")
        e("s_mov_b32 exec_hi, 0x00030003")
        e(f"ds_write_b128 v{addr_reg}, v[{ACC}:{ACC+3}] offset:{area}")
        e("s_mov_b64 exec, 1")
        e(f"ds_add_rtn_u32 v64, v101, v121 offset:{cnt}")
        e("s_waitcnt lgkmcnt(0)")
        e("v_readfirstlane_b32 s4, v64")
        e("s_mov_b64 exec, -1")
        e("s_cmp_lg_u32 s4, 3")
        e(f"s_cbranch_scc1 {lab}")
        e("s_mov_b64 exec, 0xff")
        for w in range(4):
            e(f"ds_read_b128 v[{64+4*w}:{67+4*w}], v122 offset:{area+128*w}")
        e("s_waitcnt lgkmcnt(0)")
        for k in range(2):
            e(f"v_pk_add_f32 v[{64+2*k}:{65+2*k}], v[{64+2*k}:{65+2*k}], v[{68+2*k}:{69+2*k}]")
            e(f"v_pk_add_f32 v[{72+2*k}:{73+2*k}], v[{72+2*k}:{73+2*k}], v[{76+2*k}:{77+2*k}]")
        for k in range(2):
            e(f"v_pk_add_f32 v[{64+2*k}:{65+2*k}], v[{64+2*k}:{65+2*k}], v[{72+2*k}:{73+2*k}]")

    def poll(loads, lab, sleep):
        n = len(loads)
        P = [78 + 2 * i for i in range(n)]
        assert P[-1] + 1 <= 91 or n <= 7
        for p in P:
            e(f"s_mov_b64 s[{p}:{p+1}], -1")
        e(f"s_mov_b32 s92, {spin}")
        e(f"{lab}_top:")
        for i, (txt, tags) in enumerate(loads):
            e(f"s_mov_b64 exec, s[{P[i]}:{P[i]+1}]")
            e(f"s_cbranch_execz {lab}_s{i}")
            e(txt)
            e(f"{lab}_s{i}:")
        e("s_waitcnt vmcnt(0)")
        for i, (txt, tags) in enumerate(loads):
            e(f"s_mov_b64 exec, s[{P[i]}:{P[i]+1}]")
            e(f"v_cmp_ne_u32_e64 s[{P[i]}:{P[i]+1}], v{tags[0]}, s38")
            for tg in tags[1:]:
                e(f"v_cmp_ne_u32_e64 vcc, v{tg}, s38")
                e(f"s_or_b64 s[{P[i]}:{P[i]+1}], s[{P[i]}:{P[i]+1}], vcc")
        e("s_mov_b64 exec, -1")
        e(f"s_mov_b64 s[4:5], s[{P[0]}:{P[0]+1}]")
        for p in P[1:]:
            e(f"s_or_b64 s[4:5], s[4:5], s[{p}:{p+1}]")
        e("s_cmp_eq_u64 s[4:5], 0")
        e(f"s_cbranch_scc1 {lab}_done")
        if sleep:
            e(f"s_sleep {sleep}")
        e("s_sub_u32 s92, s92, 1")
        e("s_cmp_lg_u32 s92, 0")
        e(f"s_cbranch_scc1 {lab}_top")
        e(f"{lab}_done:")

    e("v_mov_b32 v121, 1")
    e("v_lshrrev_b32 v120, 4, v0")
    e("v_lshrrev_b32 v123, 1, v120")
    e("v_and_b32 v120, 1, v120")
    e("v_lshlrev_b32 v120, 4, v120")
    e("v_lshl_add_u32 v120, v14, 5, v120")
    e("s_lshl_b32 s4, s39, 7")
    e("v_add_u32 v120, s4, v120")
    e("v_xor_b32 v124, v123, v14")
    e("v_lshl_add_u32 v124, v124, 6, v120")
    e("v_lshl_add_u32 v120, v123, 6, v120")
    e("v_lshlrev_b32 v122, 4, v0")
    e("v_lshrrev_b32 v125, 2, v0")
    e("v_and_b32 v126, 3, v0")
    e("v_lshlrev_b32 v126, 4, v126")

    XF = 32
    e("s_waitcnt vmcnt(11) lgkmcnt(0)")
    e("s_mul_i32 s38, s38, 0x9E3779B1")
    e("s_add_u32 s38, s38, 0x7F4A7C15")
    for k in range(8):
        unpack(XF + 2 * k, 2 + k)
    ln_stats(XF, 60, 61, 64)
    e("s_waitcnt vmcnt(9)")
    for k in range(4):
        unpack(48 + 2 * k, 10 + k)
    slices_norm(60, 61, True)
    e("s_waitcnt vmcnt(5)")
    stamp(1)
    wperm(64, 16, 20)
    wperm(72, 24, 28)
    dots(64, 56, 58, True)
    dots(72, 57, 59, False)
    reduce_publish(L_P1, L_CNT, 120, "L_h1_skip")
    e("v_cvt_pk_bf16_f32 v64, v64, v65")
    e("v_cvt_pk_bf16_f32 v66, v66, v67")
    e("v_mov_b32 v65, s38")
    e("v_mov_b32 v67, s38")
    e("v_lshl_add_u32 v68, v125, 11, v126")
    e("s_lshl_b32 s4, s34, 12")
    e("s_lshl_b32 s5, s35, 6")
    e("s_add_u32 s4, s4, s5")
    e(f"s_add_u32 s4, s4, {QG}")
    e(f"buffer_store_dwordx4 v[64:67], v68, {srd(WS)}, s4 offen sc1")
    e("s_mov_b64 exec, -1")
    e("L_h1_skip:")
    stamp(2)
    e("s_cmp_lg_u32 s39, 0")
    e("s_cbranch_scc1 L_qpoll_done2")
    e("s_lshl_b32 s93, s34, 12")
    e("s_lshl_b32 s5, s36, 11")
    e("s_add_u32 s93, s93, s5")
    e(f"s_add_u32 s93, s93, {QG}")
    poll([(f"buffer_load_dwordx4 v[64:67], v122, {srd(WS)}, s93 offen sc1", (65, 67)),
          (f"buffer_load_dwordx4 v[68:71], v122, {srd(WS)}, s93 offen offset:1024 sc1", (69, 71))], "L_qpoll", qsleep)
    e("v_lshlrev_b32 v72, 3, v0")
    e(f"v_add_u32 v72, {L_Q}, v72")
    e("ds_write2_b32 v72, v64, v66 offset0:0 offset1:1")
    e("ds_write2_b32 v72, v68, v70 offset0:128 offset1:129")
    e("s_waitcnt lgkmcnt(0)")
    e("L_qpoll_done2:")
    stamp(3)
    e("s_barrier")
    e("s_waitcnt vmcnt(0)")

    e("s_lshr_b32 s93, s35, 3")
    e("s_bfe_u32 s94, s35, 0x10002")
    e("s_and_b32 s96, s35, 3")
    e("s_cmp_lg_u32 s39, 3")
    e("s_cbranch_scc1 L_h4a_skip")
    e("s_lshl_b32 s4, s34, 2")
    e("s_add_u32 s4, s4, s93")
    e("s_lshl_b32 s4, s4, 1")
    e("s_add_u32 s4, s4, s94")
    e("s_lshl_b32 s4, s4, 16")
    e("s_lshl_b32 s5, s96, 8")
    e("s_add_u32 s4, s4, s5")
    e("v_lshrrev_b32 v64, 4, v0")
    e("v_lshlrev_b32 v64, 13, v64")
    e("v_and_b32 v65, 15, v0")
    e("v_lshl_add_u32 v64, v65, 4, v64")
    for s in range(2):
        for h in range(2):
            if s or h:
                e(f"s_add_u32 s5, s4, {s*32768+h*4096}")
            so = "s5" if (s or h) else "s4"
            for i4 in range(4):
                r = 128 + 4 * (8 * s + 4 * h + i4)
                e(f"buffer_load_dwordx4 v[{r}:{r+3}], v64, {srd(WO)}, {so} offen offset:{1024*i4}")
    e("L_h4a_skip:")

    e("s_cmp_ge_u32 s35, 14")
    e("s_cbranch_scc1 L_h2_skip")
    for k in range(8):
        norm_pair(XF + 2 * k, "v60", "v61", 62)
        unpack(XF + 2 * k, 62)
    ln_stats(XF, 60, 61, 64)
    slices_norm(60, 61, False)
    wperm(64, 104, 108)
    wperm(72, 112, 116)
    dots(64, 56, 58, True)
    dots(72, 57, 59, False)
    reduce_publish(L_P2, L_CNT + 4, 120, "L_h2_skip")
    e("v_cvt_pk_bf16_f32 v68, v64, v65")
    e("v_cvt_pk_bf16_f32 v69, v66, v67")
    unpack(64, 68); unpack(66, 69)
    unpack(68, 102); unpack(70, 103)
    e("v_pk_add_f32 v[64:65], v[64:65], v[68:69]")
    e("v_pk_add_f32 v[66:67], v[66:67], v[70:71]")
    e("v_cvt_pk_bf16_f32 v68, v64, v65")
    e("v_cvt_pk_bf16_f32 v69, v66, v67")
    unpack(64, 68); unpack(66, 69)
    k1 = -2.0 * math.sqrt(2.0 / math.pi) * math.log2(math.e)
    e(f"s_mov_b32 s4, {hx(f2u(k1*0.044715))}")
    e(f"v_mov_b32 v72, {hx(f2u(k1))}")
    for k in range(4):
        e(f"v_mul_f32 v{68+k}, v{64+k}, v{64+k}")
    for k in range(4):
        e(f"v_fma_f32 v{68+k}, v{68+k}, s4, v72")
    for k in range(4):
        e(f"v_mul_f32 v{68+k}, v{68+k}, v{64+k}")
    for k in range(4):
        e(f"v_exp_f32 v{68+k}, v{68+k}")
    for k in range(4):
        e(f"v_add_f32 v{68+k}, 1.0, v{68+k}")
    for k in range(4):
        e(f"v_rcp_f32 v{68+k}, v{68+k}")
    for k in range(4):
        e(f"v_mul_f32 v{64+k}, v{64+k}, v{68+k}")
    e("v_cvt_pk_bf16_f32 v64, v64, v65")
    e("v_cvt_pk_bf16_f32 v66, v66, v67")
    e("v_mov_b32 v65, s38")
    e("v_mov_b32 v67, s38")
    e("s_movk_i32 s4, 7168")
    e("v_mad_u32_u24 v68, v125, s4, v126")
    e("s_lshl_b32 s4, s95, 6")
    e(f"s_add_u32 s4, s4, {HG}")
    e(f"buffer_store_dwordx4 v[64:67], v68, {srd(WS)}, s4 offen sc1")
    e("s_mov_b64 exec, -1")
    e("L_h2_skip:")

    e("s_cmp_lg_u32 s39, 3")
    e("s_cbranch_scc1 L_h4b_skip")
    e("s_waitcnt vmcnt(0)")
    for s in range(2):
        for jj in range(8):
            sel = "s76" if (jj & 1) == 0 else "s77"
            for q in range(4):
                r0 = 128 + 4 * (8 * s + 2 * q) + (jj >> 1)
                e(f"v_perm_b32 v{192+4*(8*s+jj)+q}, v{r0+4}, v{r0}, {sel}")
    e("L_h4b_skip:")

    e("s_lshl_b32 s95, s34, 2")
    e("s_add_u32 s95, s95, s35")
    e("s_cmp_ge_u32 s2, 32")
    e("s_cbranch_scc1 L_h3_skip")
    e("s_mul_i32 s4, s39, 448")
    e("v_lshl_add_u32 v64, v1, 1, s4")
    e("v_lshlrev_b32 v65, 10, v64")
    e("v_lshl_add_u32 v65, v14, 4, v65")
    e("s_lshl_b32 s4, s95, 5")
    for i in range(7):
        for ee in range(2):
            r = 128 + 4 * (2 * i + ee)
            e(f"buffer_load_dwordx4 v[{r}:{r+3}], v65, {srd(W2)}, s4 offen offset:{1024*ee}")
        if i < 6:
            e("s_add_u32 s4, s4, 0x10000")
    e("s_lshl_b32 s4, s95, 5")
    e(f"buffer_load_dwordx2 v[102:103], v100, {srd(B2)}, s4 offen")
    e("v_bfe_u32 v66, v0, 1, 3")
    e("v_bfe_u32 v67, v0, 4, 1")
    e("v_lshl_add_u32 v66, v67, 3, v66")
    e("v_lshlrev_b32 v118, 2, v66")
    e("v_lshl_add_u32 v118, v14, 6, v118")
    e("v_lshlrev_b32 v119, 1, v66")
    e("v_lshl_add_u32 v119, v14, 10, v119")
    e("v_add_u32 v119, s4, v119")
    e(f"buffer_load_ushort v117, v119, {srd(X)}, 0 offen")
    e("s_movk_i32 s4, 7168")
    e("v_mul_u32_u24 v66, s4, v14")
    e("v_lshl_add_u32 v66, v64, 2, v66")
    e(f"s_mov_b32 s97, {HG}")
    poll([(f"buffer_load_dwordx2 v[{16+2*i}:{17+2*i}], v66, {srd(WS)}, s97 offen offset:{256*i} sc1", (17 + 2 * i,)) for i in range(7)],
         "L_hpoll", 8)
    for i in range(7):
        e(f"v_mov_b32_dpp v{17+2*i}, v{16+2*i} quad_perm:[1,0,3,2] {DPPM}")
    for i in range(7):
        wp = 64 + 8 * (i & 1)
        wperm(wp, 128 + 8 * i, 132 + 8 * i)
        dots(wp, 16 + 2 * i, 17 + 2 * i, i == 0)
    reduce_publish(L_P3, L_CNT + 8, 124, "L_h3_skip")
    e("v_cvt_pk_bf16_f32 v68, v64, v65")
    e("v_cvt_pk_bf16_f32 v69, v66, v67")
    unpack(64, 68); unpack(66, 69)
    unpack(68, 102); unpack(70, 103)
    e("v_pk_add_f32 v[64:65], v[64:65], v[68:69]")
    e("v_pk_add_f32 v[66:67], v[66:67], v[70:71]")
    e("v_cvt_pk_bf16_f32 v68, v64, v65")
    e("v_cvt_pk_bf16_f32 v69, v66, v67")
    unpack(64, 68); unpack(66, 69)
    for k in range(4):
        e(f"v_mul_f32 v{68+k}, {hx(f2u(-math.log2(math.e)))}, v{64+k}")
    for k in range(4):
        e(f"v_exp_f32 v{68+k}, v{68+k}")
    for k in range(4):
        e(f"v_add_f32 v{68+k}, 1.0, v{68+k}")
    for k in range(4):
        e(f"v_rcp_f32 v{68+k}, v{68+k}")
    for k in range(4):
        e(f"v_mul_f32 v{64+k}, v{64+k}, v{68+k}")
    e("v_cvt_pk_bf16_f32 v68, v64, v65")
    e("v_cvt_pk_bf16_f32 v69, v66, v67")
    unpack(64, 68); unpack(66, 69)
    e(f"ds_write_b128 v122, v[64:67] offset:{L_G}")
    e("s_mov_b64 exec, -1")
    e("L_h3_skip:")

    e("v_and_b32 v2, 3, v0")
    e("v_lshlrev_b32 v2, 9, v2")
    e("v_lshrrev_b32 v3, 4, v0")
    e("v_lshl_add_u32 v2, v3, 4, v2")
    e("v_bfe_u32 v3, v0, 2, 2")
    e("v_lshl_add_u32 v2, v3, 2, v2")
    e("s_lshl_b32 s4, s39, 6")
    e("v_add_u32 v2, s4, v2")
    e("s_lshl_b32 s4, s39, 4")
    e("v_mov_b32 v3, s4")
    e("s_lshl_b32 s4, s34, 1")
    e("s_add_u32 s4, s4, s36")
    e("s_lshl_b32 s4, s4, 4")
    e("s_add_u32 s4, s4, s37")
    e("s_lshl_b32 s4, s4, 2")
    e("s_add_u32 s4, s4, s39")
    e("s_lshl_b32 s4, s4, 10")
    e(f"s_add_u32 s88, s4, {PG}")
    e("s_lshl_b32 s4, s34, 2")
    e("s_add_u32 s4, s4, s39")
    e("s_lshl_b32 s4, s4, 1")
    e("s_add_u32 s4, s4, s36")
    e("s_lshl_b32 s4, s4, 4")
    e("s_add_u32 s4, s4, s37")
    e("s_lshl_b32 s4, s4, 4")
    e(f"s_add_u32 s89, s4, {MLG}")
    e("s_lshr_b32 s5, s39, 1")
    e("s_and_b32 s6, s39, 1")
    e("s_lshl_b32 s6, s6, 3")
    e("s_lshl_b32 s4, s34, 1")
    e("s_add_u32 s4, s4, s5")
    e("s_lshl_b32 s4, s4, 4")
    e("s_add_u32 s4, s4, s6")
    e("s_lshl_b32 s4, s4, 2")
    e("s_add_u32 s4, s4, s93")
    e("s_lshl_b32 s4, s4, 1")
    e("s_add_u32 s4, s4, s94")
    e("s_lshl_b32 s4, s4, 9")
    e(f"s_add_u32 s98, s4, {PG}")
    e("s_add_u32 s99, s98, 0x2000")
    e("s_add_u32 s100, s98, 0x4000")
    e("s_add_u32 s101, s98, 0x6000")
    e("s_lshl_b32 s4, s34, 2")
    e("s_add_u32 s4, s4, s93")
    e("s_lshl_b32 s7, s4, 1")
    e("s_add_u32 s90, s7, s94")
    e("s_add_u32 s4, s7, s5")
    e("s_lshl_b32 s4, s4, 8")
    e(f"s_add_u32 s97, s4, {MLG}")
    e("v_lshrrev_b32 v6, 5, v0")
    e("v_and_b32 v7, 31, v0")
    e("v_lshlrev_b32 v4, 4, v7")
    e("v_lshl_add_u32 v4, v6, 12, v4")
    e("v_and_b32 v8, 15, v0")
    e("v_add3_u32 v5, v8, v6, s6")
    e("v_and_b32 v5, 15, v5")
    e("v_lshlrev_b32 v5, 4, v5")
    e("v_lshl_add_u32 v6, v7, 1, v6")
    e("v_lshlrev_b32 v6, 2, v6")
    e("s_lshl_b32 s4, s39, 8")
    e("v_add_u32 v6, s4, v6")
    e("v_lshrrev_b32 v9, 4, v0")
    e("v_lshlrev_b32 v7, 5, v9")
    e("v_lshl_add_u32 v7, v14, 9, v7")
    e("v_lshlrev_b32 v10, 15, v9")
    e("v_lshl_add_u32 v10, v8, 4, v10")
    e("s_lshl_b32 s4, s96, 17")
    e("s_lshl_b32 s90, s90, 8")
    e("s_add_u32 s90, s90, s4")
    e(f"s_add_u32 s90, s90, {SG}")
    e("s_add_u32 s91, s90, 0x4000")
    e("v_lshrrev_b32 v11, 5, v0")
    e("v_lshl_add_u32 v11, v11, 4, v8")
    e("v_lshlrev_b32 v11, 2, v11")
    e("s_lshl_b32 s4, s39, 7")
    e("v_add_u32 v11, s4, v11")
    e("v_mov_b32 v41, s38")
    e("v_mov_b32 v43, s38")
    e("v_mov_b32 v45, s38")
    e("v_mov_b32 v47, s38")
    e("s_waitcnt lgkmcnt(0)")
    stamp(4)
    e("s_barrier")
    e(f"ds_read_b128 v[16:19], v3 offset:{L_MC}")
    e(f"ds_read_b128 v[20:23], v3 offset:{L_L}")
    for sw in range(4):
        e(f"ds_read2st64_b32 v[{24+2*sw}:{25+2*sw}], v2 offset0:{8*sw} offset1:{8*sw+1}")
    e("s_waitcnt lgkmcnt(0)")
    e("v_max3_f32 v44, v16, v17, v18")
    e("v_max_f32 v44, v44, v19")
    for k in range(4):
        e(f"v_sub_f32 v{16+k}, v{16+k}, v44")
    for k in range(4):
        e(f"v_exp_f32 v{16+k}, v{16+k}")
    e("v_mul_f32 v40, v16, v24")
    e("v_mul_f32 v42, v16, v25")
    e("v_mul_f32 v46, v16, v20")
    for k in range(1, 4):
        e(f"v_fmac_f32 v40, v{16+k}, v{24+2*k}")
        e(f"v_fmac_f32 v42, v{16+k}, v{25+2*k}")
        e(f"v_fmac_f32 v46, v{16+k}, v{20+k}")
    e(f"buffer_store_dwordx4 v[40:43], v122, {srd(WS)}, s88 offen sc1")
    e("s_mov_b64 exec, 1")
    e(f"buffer_store_dwordx4 v[44:47], v101, {srd(WS)}, s89 offen sc1")
    e("s_mov_b64 exec, -1")
    stamp(5)
    poll([(f"buffer_load_dwordx4 v[16:19], v5, {srd(WS)}, s97 offen sc1", (17, 19))] +
         [(f"buffer_load_dwordx4 v[{20+4*i}:{23+4*i}], v4, {srd(WS)}, s{98+i} offen sc1", (21 + 4 * i, 23 + 4 * i)) for i in range(4)],
         "L_ppoll", tsleep)
    e("v_mov_b32 v17, v16")
    for s in (8, 4, 2, 1):
        e(f"v_max_f32_dpp v17, v17, v17 row_ror:{s} {DPPM}")
    e("v_sub_f32 v16, v16, v17")
    e("v_exp_f32 v16, v16")
    e("v_mul_f32 v18, v16, v18")
    for s in (8, 4, 2, 1):
        e(f"v_add_f32_dpp v18, v18, v18 row_ror:{s} {DPPM}")
    e("v_rcp_f32 v18, v18")
    e("v_mul_f32 v16, v16, v18")
    e(f"v_mul_f32_dpp v36, v16, v20 row_newbcast:0 {DPPM}")
    e(f"v_mul_f32_dpp v37, v16, v22 row_newbcast:0 {DPPM}")
    for i in range(1, 4):
        e(f"v_fmac_f32_dpp v36, v16, v{20+4*i} row_newbcast:{2*i} {DPPM}")
        e(f"v_fmac_f32_dpp v37, v16, v{22+4*i} row_newbcast:{2*i} {DPPM}")
    e("v_permlane32_swap_b32 v36, v37")
    e("v_add_f32 v36, v36, v37")
    e(f"ds_write_b32 v6, v36 offset:{L_OP}")
    e("s_waitcnt lgkmcnt(0)")
    stamp(6)
    e("s_barrier")
    e("s_cmp_lg_u32 s39, 3")
    e("s_cbranch_scc1 L_h6_skip")
    for s in range(2):
        for w in range(2):
            for c in range(2):
                r = 48 + 16 * s + 8 * w + 4 * c
                e(f"ds_read_b128 v[{r}:{r+3}], v7 offset:{L_OP+128*s+256*w+16*c}")
    e("s_mov_b32 s78, 0xcccccccc")
    e("s_mov_b32 s79, 0xcccccccc")
    e("s_mov_b32 s80, 0xf0f0f0f0")
    e("s_mov_b32 s81, 0xf0f0f0f0")
    e("s_mov_b32 s82, 0xff00ff00")
    e("s_mov_b32 s83, 0xff00ff00")
    e("s_waitcnt lgkmcnt(0)")
    for s in range(2):
        for k in range(4):
            r = 48 + 16 * s + 2 * k
            e(f"v_pk_add_f32 v[{r}:{r+1}], v[{r}:{r+1}], v[{r+8}:{r+9}]")
    for s in range(2):
        for k in range(4):
            r = 48 + 16 * s + 2 * k
            e(f"v_cvt_pk_bf16_f32 v{16+4*s+k}, v{r}, v{r+1}")
    for s in range(2):
        for jj in range(8):
            d = 128 + 4 * jj
            c = "0" if s == 0 else f"v[{d}:{d+3}]"
            w = 192 + 4 * (8 * s + jj)
            e(f"v_mfma_f32_16x16x32_bf16 v[{d}:{d+3}], v[{w}:{w+3}], v[{16+4*s}:{19+4*s}], {c}")
    for k in range(4):
        for r in range(4):
            e(f"v_cndmask_b32_e64 v{160+4*k+r}, v{128+8*k+r}, v{132+8*k+r}, s[78:79]")
    for k in range(2):
        for r in range(4):
            e(f"v_cndmask_b32_e64 v{176+4*k+r}, v{160+8*k+r}, v{164+8*k+r}, s[80:81]")
    for r in range(4):
        e(f"v_cndmask_b32_e64 v{40+2*r}, v{176+r}, v{180+r}, s[82:83]")
    e(f"buffer_store_dwordx4 v[40:43], v10, {srd(WS)}, s90 offen sc1")
    e(f"buffer_store_dwordx4 v[44:47], v10, {srd(WS)}, s91 offen sc1")
    e("L_h6_skip:")
    e("s_cmp_ge_u32 s2, 32")
    e("s_cbranch_scc1 L_h_exit")
    e("s_lshl_b32 s97, s95, 14")
    e("s_lshl_b32 s4, s39, 12")
    e("s_add_u32 s97, s97, s4")
    e(f"s_add_u32 s97, s97, {SG}")
    poll([(f"buffer_load_dwordx4 v[{20+4*i}:{23+4*i}], v122, {srd(WS)}, s97 offen offset:{1024*i} sc1", (21 + 4 * i, 23 + 4 * i)) for i in range(4)],
         "L_spoll", tsleep)
    e("v_add_f32 v20, v20, v24")
    e("v_add_f32 v22, v22, v26")
    e("v_add_f32 v28, v28, v32")
    e("v_add_f32 v30, v30, v34")
    e("v_add_f32 v20, v20, v28")
    e("v_add_f32 v22, v22, v30")
    e("v_permlane32_swap_b32 v20, v22")
    e("v_add_f32 v20, v20, v22")
    e("v_mov_b32 v22, v20")
    e("v_permlane16_swap_b32 v20, v22")
    e("v_add_f32 v20, v20, v22")
    e(f"ds_write_b32 v11, v20 offset:{L_SP}")
    e("s_waitcnt lgkmcnt(0)")
    e("s_barrier")
    e("s_cmp_lg_u32 s39, 0")
    e("s_cbranch_scc1 L_h_exit")
    e("s_mov_b32 exec_hi, 0")
    e("v_lshlrev_b32 v16, 2, v0")
    e(f"v_add_u32 v16, {L_SP}, v16")
    e("ds_read2_b32 v[20:21], v16 offset0:0 offset1:32")
    e("ds_read2_b32 v[22:23], v16 offset0:64 offset1:96")
    e(f"ds_read_b32 v24, v118 offset:{L_G}")
    e("v_lshlrev_b32 v117, 16, v117")
    e("s_waitcnt lgkmcnt(0)")
    e("v_pk_add_f32 v[20:21], v[20:21], v[22:23]")
    e("v_add_f32 v20, v20, v21")
    bfr(20)
    e("v_mul_f32 v20, v20, v24")
    bfr(20)
    e("v_add_f32 v20, v20, v117")
    e("v_cvt_pk_bf16_f32 v20, v20, v20")
    e(f"buffer_store_short v20, v119, {srd(OUT)}, 0 offen")
    e("s_cmp_lg_u32 s2, 0")
    e("s_cbranch_scc1 L_h_exit")
    e("s_mov_b64 exec, 1")
    e(f"buffer_store_dword v41, v101, {srd(WS)}, 0 offen offset:4")
    e("L_h_exit:")
    stamp(7)
    prof_out(True)
    e("L_end:")
    e("s_endpgm")

    n = a.fix_hazards()
    head = open("recurrent_scan__gqa_block_cached__mixer_channel_mlp__decode.s.ref").read().split("\n")
    hdr = [ln for ln in head if ln.startswith(";") and "@launch" not in ln and not ln.startswith(";;")]
    lead = []
    for ln in head:
        if not ln.startswith(";"):
            break
        if "@launch" in ln and ln.startswith("; @launch"):
            lead.append(f"; @launch grid=(256,1,1) block=(512,1,1) lds={LDS_SIZE}")
        else:
            lead.append(ln)
    out = "\n".join(lead) + "\n"
    out += '.amdgcn_target "amdgcn-amd-amdhsa--gfx950"\n.text\n'
    out += f".globl {NAME}\n.p2align 8\n.type {NAME},@function\n"
    out += a.text()
    out += '.section .rodata,"a"\n.p2align 6\n'
    out += f".amdhsa_kernel {NAME}\n"
    out += "  .amdhsa_next_free_vgpr 256\n  .amdhsa_next_free_sgpr 102\n  .amdhsa_accum_offset 256\n"
    out += "  .amdhsa_group_segment_fixed_size 0\n  .amdhsa_kernarg_size 104\n  .amdhsa_user_sgpr_count 2\n"
    out += "  .amdhsa_user_sgpr_kernarg_segment_ptr 1\n  .amdhsa_system_sgpr_workgroup_id_x 1\n.end_amdhsa_kernel\n"
    return out, n

if __name__ == "__main__":
    kw = eval("dict(" + (sys.argv[2] if len(sys.argv) > 2 else "") + ")")
    txt, n = gen(**kw)
    path = sys.argv[1] if len(sys.argv) > 1 else "recurrent_scan__gqa_block_cached__mixer_channel_mlp__decode.s"
    open(path, "w").write(txt)
    print("wrote", path, "nops inserted:", n, "bytes:", len(txt))
```

```python
import sys, struct, math
sys.path.insert(0, "dev")
from asmlib import Asm

NAME = "recurrent_scan__gqa_block_cached__mixer_channel_mlp__decode_kernel"

def f2u(x):
    return struct.unpack("<I", struct.pack("<f", x))[0]
def hx(x):
    return f"0x{x & 0xffffffff:08x}"

QG, HG, PG, MLG, SG, PROFB = 0x1000, 0x10000, 0x20000, 0x120000, 0x130000, 0x200000
WS_SIZE = 0x300000
L_ACC, L_MC, L_L, L_CNT, L_Q = 0x0000, 0x2000, 0x2040, 0x2080, 0x2100
L_P1, L_P2, L_P3, L_G, L_OP, L_SP = 0x2500, 0x2700, 0x2900, 0x2B00, 0x2C00, 0x3000
LDS_SIZE = 0x3200

C_SC = (128 ** -0.5) * math.log2(math.e)
DPPM = "row_mask:0xf bank_mask:0xf"

def gen(prof=False, spin=1 << 16, win=8, qsleep=2, tsleep=1, dbg=False, kpol='nt', vpol='nt'):
    a = Asm()
    e = a.e
    nstamp = [0]

    def stamp(k):
        if prof:
            e(f"s_memrealtime s[{8+2*k}:{9+2*k}]")
            e("s_waitcnt lgkmcnt(0)")

    def prof_out(helper):
        if not prof:
            return
        e("s_mov_b64 exec, -1")
        if prof == "dbg":
            e("s_load_dwordx2 s[56:57], s[0:1], 88")
            e("s_mov_b32 s58, 256")
            e("s_mov_b32 s59, 0x00020000")
            if not helper:
                e("s_not_b32 s8, s8")
            e("v_mov_b32 v8, 0")
            for k in range(8):
                e(f"v_writelane_b32 v8, s{8+2*k}, {k}")
            e("v_lshlrev_b32 v7, 2, v0")
            e("s_waitcnt lgkmcnt(0)")
            e("s_mov_b64 exec, 0xff")
            e(f"buffer_atomic_umax v8, v7, s[56:59], 0 offen offset:{32 if helper else 0} sc1")
            e("s_waitcnt vmcnt(0)")
            return
        e("s_load_dwordx2 s[56:57], s[0:1], 96")
        e(f"s_mov_b32 s58, {WS_SIZE}")
        e("s_mov_b32 s59, 0x00020000")
        e("s_lshl_b32 s4, s2, 3")
        e("s_add_u32 s4, s4, s3")
        e("s_lshl_b32 s4, s4, 5")
        e(f"s_add_u32 s4, s4, {PROFB}")
        for k in range(8):
            e(f"v_mov_b32 v{8+k}, s{8+2*k}")
        e("v_mov_b32 v7, 0")
        e("s_waitcnt lgkmcnt(0)")
        e("s_mov_b64 exec, 1")
        e("buffer_store_dwordx4 v[8:11], v7, s[56:59], s4 offen")
        e("buffer_store_dwordx4 v[12:15], v7, s[56:59], s4 offen offset:16")
        e("s_waitcnt vmcnt(0)")

    e(f"{NAME}:")
    e("s_cmp_ge_u32 s2, 256")
    e("s_cbranch_scc1 L_end")
    e("v_lshrrev_b32 v1, 6, v0")
    e("s_and_b32 s34, s2, 7")
    e("v_readfirstlane_b32 s3, v1")
    e("s_lshr_b32 s35, s2, 3")
    e("v_and_b32 v0, 63, v0")
    e("s_lshr_b32 s36, s35, 4")
    e("s_and_b32 s37, s35, 15")
    if prof:
        for k in range(8):
            e(f"s_mov_b32 s{8+2*k}, 0")
    e("s_cmp_ge_u32 s3, 4")
    e("s_cbranch_scc1 L_helper")

    e("s_load_dwordx4 s[4:7], s[0:1], 8")
    stamp(0)
    e("s_lshl_b32 s39, s36, 3")
    e("s_add_u32 s39, s39, s34")
    e("s_lshl_b32 s39, s39, 23")
    e("s_lshl_b32 s48, s37, 19")
    e("s_add_u32 s39, s39, s48")
    e("s_lshl_b32 s48, s3, 13")
    e("s_add_u32 s39, s39, s48")
    e(f"s_mov_b32 s42, {15*32768+8192}")
    e("s_mov_b32 s43, 0x00020000")
    e(f"s_mov_b32 s46, {15*32768+8192}")
    e("s_mov_b32 s47, 0x00020000")
    e("v_and_b32 v5, 15, v0")
    e("v_lshrrev_b32 v6, 4, v0")
    e("v_lshlrev_b32 v1, 8, v5")
    e("v_lshl_add_u32 v1, v6, 4, v1")
    e("v_add_u32 v2, 4096, v1")
    e("v_lshlrev_b32 v3, 10, v6")
    e("v_lshl_add_u32 v3, v5, 4, v3")
    e("v_add_u32 v4, 4096, v3")
    e(f"s_mov_b32 s51, {hx(f2u(C_SC))}")
    e(f"s_mov_b32 s52, {hx(f2u(-C_SC))}")
    e("s_mov_b32 s53, 0x05040100")
    e("s_mov_b32 s54, 0x07060302")
    e("s_waitcnt lgkmcnt(0)")
    e("s_add_u32 s40, s4, s39")
    e("s_addc_u32 s41, s5, 0")
    e("s_add_u32 s44, s6, s39")
    e("s_addc_u32 s45, s7, 0")

    def issue_k(slot, soff):
        kb = 64 + 64 * slot
        for T in range(2):
            for t in range(4):
                r = kb + 16 * T + 4 * t
                e(f"buffer_load_dwordx4 v[{r}:{r+3}], v{1+T}, s[40:43], {soff} offen offset:{64*t} {kpol}")
    def issue_v(slot, soff):
        vb = 96 + 64 * slot
        for i in range(8):
            r = vb + 4 * i
            e(f"buffer_load_dwordx4 v[{r}:{r+3}], v{3+(i>>2)}, s[44:47], {soff} offen offset:{256*(i&3)} {vpol}")

    e("s_mov_b32 s49, 0x8000")
    e("s_mov_b32 s50, 0x10000")
    e("s_barrier")
    issue_k(0, "0")
    issue_v(0, "0")
    for r in range(32, 64):
        e(f"v_mov_b32 v{r}, 0")
    e("v_and_b32 v7, 3, v5")
    e("v_lshlrev_b32 v7, 8, v7")
    e("v_lshl_add_u32 v7, v6, 4, v7")
    e("v_mov_b32 v5, 0xff800000")
    e("v_mov_b32 v6, 0")
    e(f"s_waitcnt vmcnt({win})")
    issue_k(1, "s49")
    e(f"s_waitcnt vmcnt({win})")
    issue_v(1, "s49")
    e(f"s_waitcnt vmcnt({win})")
    issue_k(2, "s50")
    e(f"s_waitcnt vmcnt({win})")
    issue_v(2, "s50")
    stamp(1)
    e("s_barrier")
    for t in range(4):
        e(f"ds_read_b128 v[{16+4*t}:{19+4*t}], v7 offset:{L_Q+64*t}")
    e("s_mov_b32 s48, 0")
    e("s_mov_b32 s49, 0x18000")
    e("s_waitcnt lgkmcnt(0)")
    stamp(2)
    e("s_branch L_st_entry")

    e("L_st_loop:")
    for slot in range(3):
        kb = 64 + 64 * slot
        vb = kb + 32
        e(f"s_waitcnt vmcnt({win})")
        e("s_cmp_ge_u32 s48, 14")
        e(f"s_cbranch_scc1 L_st_nov{slot}")
        e("s_sub_u32 s50, s49, 0x8000")
        issue_v((slot + 2) % 3, "s50")
        e(f"L_st_nov{slot}:")
        if slot == 0:
            e("L_st_entry:")
        for t in range(4):
            for T in range(2):
                d = 8 + 4 * T
                c = "0" if t == 0 else f"v[{d}:{d+3}]"
                r = kb + 16 * T + 4 * t
                e(f"v_mfma_f32_16x16x32_bf16 v[{d}:{d+3}], v[{r}:{r+3}], v[{16+4*t}:{19+4*t}], {c}")
        t0, t1, al, nm = kb + 28, kb + 29, kb + 30, kb + 31
        e(f"v_max3_f32 v{t0}, v8, v9, v10")
        e(f"v_max3_f32 v{t1}, v12, v13, v14")
        e(f"v_max3_f32 v{t0}, v{t0}, v11, v5")
        e(f"v_max3_f32 v{t0}, v{t0}, v{t1}, v15")
        e(f"v_mov_b32 v{t1}, v{t0}")
        e(f"v_permlane32_swap_b32 v{t0}, v{t1}")
        e(f"v_max_f32 v{t0}, v{t0}, v{t1}")
        e(f"v_mov_b32 v{t1}, v{t0}")
        e(f"v_permlane16_swap_b32 v{t0}, v{t1}")
        e(f"v_max_f32 v{t0}, v{t0}, v{t1}")
        e(f"v_sub_f32 v{t1}, v5, v{t0}")
        e(f"v_mul_f32 v{nm}, s52, v{t0}")
        e(f"v_mul_f32 v{t1}, s51, v{t1}")
        e(f"v_mov_b32 v5, v{t0}")
        e(f"v_exp_f32 v{al}, v{t1}")
        for i in range(8):
            e(f"v_fma_f32 v{8+i}, v{8+i}, s51, v{nm}")
        for i in range(8):
            e(f"v_exp_f32 v{8+i}, v{8+i}")
        for k in range(16):
            e(f"v_pk_mul_f32 v[{32+2*k}:{33+2*k}], v[{32+2*k}:{33+2*k}], v[{al}:{al+1}] op_sel_hi:[1,0]")
        e(f"v_mul_f32 v6, v6, v{al}")
        e(f"v_add_f32 v{t0}, v8, v9")
        e(f"v_add_f32 v{t1}, v10, v11")
        e(f"v_add_f32 v6, v6, v12")
        e(f"v_add_f32 v{t0}, v{t0}, v13")
        e(f"v_add_f32 v{t1}, v{t1}, v14")
        e(f"v_add_f32 v6, v6, v15")
        e(f"v_add_f32 v{t0}, v{t0}, v{t1}")
        e("v_cvt_pk_bf16_f32 v8, v8, v9")
        e("v_cvt_pk_bf16_f32 v9, v10, v11")
        e("v_cvt_pk_bf16_f32 v10, v12, v13")
        e("v_cvt_pk_bf16_f32 v11, v14, v15")
        e(f"v_add_f32 v6, v6, v{t0}")
        if slot == 0:
            e("s_cmp_lg_u32 s48, 15")
            e("s_cbranch_scc1 L_st_notlast")
            e("s_waitcnt vmcnt(0)")
            e("L_st_notlast:")
        def perms(jj):
            sel = "s53" if (jj & 1) == 0 else "s54"
            for q in range(4):
                e(f"v_perm_b32 v{kb+4*jj+q}, v{vb+4*(2*q+1)+(jj>>1)}, v{vb+4*(2*q)+(jj>>1)}, {sel}")
        def pv(jj):
            d = 32 + 4 * jj
            e(f"v_mfma_f32_16x16x32_bf16 v[{d}:{d+3}], v[{kb+4*jj}:{kb+4*jj+3}], v[8:11], v[{d}:{d+3}]")
        perms(0)
        for jj in range(8):
            if jj + 1 < 8:
                perms(jj + 1)
            pv(jj)
        if slot == 0:
            e("s_cmp_eq_u32 s48, 15")
            e("s_cbranch_scc1 L_st_done")
        e("s_cmp_ge_u32 s48, 13")
        e(f"s_cbranch_scc1 L_st_nok{slot}")
        e(f"s_waitcnt vmcnt({win})")
        issue_k(slot, "s49")
        e(f"L_st_nok{slot}:")
        e("s_add_u32 s48, s48, 1")
        e("s_add_u32 s49, s49, 0x8000")
    e("s_branch L_st_loop")

    e("L_st_done:")
    stamp(3)
    e("v_mov_b32 v7, v6")
    e("v_permlane32_swap_b32 v6, v7")
    e("v_add_f32 v6, v6, v7")
    e("v_mov_b32 v7, v6")
    e("v_permlane16_swap_b32 v6, v7")
    e("v_add_f32 v6, v6, v7")
    e("v_mul_f32 v5, s51, v5")
    e("v_and_b32 v1, 15, v0")
    e("v_lshrrev_b32 v2, 4, v0")
    e("v_lshl_add_u32 v2, v1, 2, v2")
    e("v_lshlrev_b32 v2, 4, v2")
    e("s_lshl_b32 s4, s3, 11")
    e("v_add_u32 v2, s4, v2")
    e("s_lshl_b32 s4, s3, 2")
    e("v_lshl_add_u32 v1, v1, 4, s4")
    e("s_mov_b32 exec_lo, 0x000f000f")
    e("s_mov_b32 exec_hi, 0x000f000f")
    for jj in range(8):
        e(f"ds_write_b128 v2, v[{32+4*jj}:{35+4*jj}] offset:{L_ACC+256*jj}")
    e("s_mov_b64 exec, 15")
    e(f"ds_write_b32 v1, v5 offset:{L_MC}")
    e(f"ds_write_b32 v1, v6 offset:{L_L}")
    e("s_waitcnt lgkmcnt(0)")
    e("s_barrier")
    stamp(4)
    prof_out(False)
    e("s_endpgm")

    X, WQ, W1, B1, WS, W2, B2, WO, OUT = 40, 44, 48, 52, 56, 60, 64, 68, 72
    def srd(r):
        return f"s[{r}:{r+3}]"
    e("L_helper:")
    e(f"s_load_dwordx2 s[{X}:{X+1}], s[0:1], 0")
    e(f"s_load_dwordx2 s[{WQ}:{WQ+1}], s[0:1], 24")
    e(f"s_load_dwordx2 s[{W1}:{W1+1}], s[0:1], 48")
    e(f"s_load_dwordx2 s[{B1}:{B1+1}], s[0:1], 56")
    e(f"s_load_dwordx2 s[{WS}:{WS+1}], s[0:1], 96")
    e(f"s_load_dwordx2 s[{W2}:{W2+1}], s[0:1], 64")
    e(f"s_load_dwordx2 s[{B2}:{B2+1}], s[0:1], 72")
    e(f"s_load_dwordx2 s[{WO}:{WO+1}], s[0:1], 32")
    e(f"s_load_dwordx2 s[{OUT}:{OUT+1}], s[0:1], 80")
    e("s_setprio 3")
    e("s_sub_u32 s39, s3, 4")
    e(f"s_mov_b32 s{X+2}, 2048")
    e(f"s_mov_b32 s{WQ+2}, {512*4096*2}")
    e("s_cmp_lt_u32 s35, 14")
    e(f"s_cselect_b32 s{W1+2}, {512*1792*2}, 0")
    e(f"s_cselect_b32 s{B1+2}, {1792*2}, 0")
    e(f"s_mov_b32 s{WS+2}, {WS_SIZE}")
    e(f"s_mov_b32 s{W2+2}, {1792*512*2}")
    e(f"s_mov_b32 s{B2+2}, 1024")
    e(f"s_mov_b32 s{WO+2}, {4096*512*2}")
    e(f"s_mov_b32 s{OUT+2}, 2048")
    for r in (X, WQ, W1, B1, WS, W2, B2, WO, OUT):
        e(f"s_mov_b32 s{r+3}, 0x00020000")
    e("v_lshrrev_b32 v1, 1, v0")
    e("v_and_b32 v14, 1, v0")
    e("v_lshlrev_b32 v15, 5, v0")
    e("s_lshl_b32 s4, s39, 7")
    e("v_lshl_add_u32 v96, v1, 2, s4")
    e("v_lshlrev_b32 v97, 1, v96")
    e("v_lshlrev_b32 v98, 13, v96")
    e("v_lshl_add_u32 v98, v14, 4, v98")
    e("s_lshl_b32 s5, s34, 10")
    e("s_lshl_b32 s6, s35, 5")
    e("s_add_u32 s5, s5, s6")
    e("s_add_u32 s6, s5, 0x2000")
    e("s_add_u32 s7, s5, 0x4000")
    e("s_add_u32 s93, s5, 0x6000")
    e("s_movk_i32 s94, 3584")
    e("v_mul_u32_u24 v99, s94, v96")
    e("v_lshl_add_u32 v99, v14, 4, v99")
    e("s_mul_i32 s95, s34, 14")
    e("s_add_u32 s95, s95, s35")
    e("s_lshl_b32 s96, s95, 5")
    e("s_add_u32 s97, s96, 7168")
    e("v_and_b32 v100, 3, v0")
    e("v_lshlrev_b32 v100, 3, v100")
    e("v_mov_b32 v101, 0")
    e(f"ds_write_b32 v100, v101 offset:{L_CNT}")
    e(f"ds_write_b32 v100, v101 offset:{L_CNT+4}")
    e("s_waitcnt lgkmcnt(0)")
    e(f"buffer_load_dwordx4 v[2:5], v15, {srd(X)}, 0 offen")
    e(f"buffer_load_dwordx4 v[6:9], v15, {srd(X)}, 0 offen offset:16")
    e(f"buffer_load_dwordx2 v[10:11], v97, {srd(X)}, 0 offen")
    e(f"buffer_load_dwordx2 v[12:13], v97, {srd(X)}, 0 offen offset:1024")
    for i, so in enumerate(("s5", "s6", "s7", "s93")):
        e(f"buffer_load_dwordx4 v[{16+4*i}:{19+4*i}], v98, {srd(WQ)}, {so} offen")
    e(f"s_load_dword s38, s[{WS}:{WS+1}], 4")
    e("s_barrier")
    stamp(0)
    for i in range(4):
        so = "s96" if i < 2 else "s97"
        e(f"buffer_load_dwordx4 v[{104+4*i}:{107+4*i}], v99, {srd(W1)}, {so} offen offset:{3584*(i&1)}")
    e(f"buffer_load_dwordx2 v[102:103], v100, {srd(B1)}, s96 offen")
    e("s_mov_b32 s76, 0x05040100")
    e("s_mov_b32 s77, 0x07060302")

    def unpack(dst, src):
        e(f"v_lshlrev_b32 v{dst}, 16, v{src}")
        e(f"v_and_b32 v{dst+1}, 0xffff0000, v{src}")

    def half_sum(r, t):
        for s in (8, 4, 2, 1):
            e(f"v_add_f32_dpp v{r}, v{r}, v{r} row_ror:{s} {DPPM}")
        e(f"v_mov_b32 v{t}, v{r}")
        e(f"v_permlane16_swap_b32 v{r}, v{t}")
        e(f"v_add_f32 v{r}, v{r}, v{t}")

    def tree16(dst, src, tmp):
        for k in range(4):
            e(f"v_pk_add_f32 v[{tmp+2*k}:{tmp+2*k+1}], v[{src+4*k}:{src+4*k+1}], v[{src+4*k+2}:{src+4*k+3}]")
        e(f"v_pk_add_f32 v[{tmp}:{tmp+1}], v[{tmp}:{tmp+1}], v[{tmp+2}:{tmp+3}]")
        e(f"v_pk_add_f32 v[{tmp+4}:{tmp+5}], v[{tmp+4}:{tmp+5}], v[{tmp+6}:{tmp+7}]")
        e(f"v_pk_add_f32 v[{tmp}:{tmp+1}], v[{tmp}:{tmp+1}], v[{tmp+4}:{tmp+5}]")
        e(f"v_add_f32 v{dst}, v{tmp}, v{tmp+1}")

    def bfr(r, t=None):
        e(f"v_cvt_pk_bf16_f32 v{r}, v{r}, v{r}")
        e(f"v_and_b32 v{r}, 0xffff0000, v{r}")

    def ln_stats(XF, MEAN, RS, TMP):
        tree16(MEAN, XF, TMP)
        half_sum(MEAN, TMP)
        e(f"v_mul_f32 v{MEAN}, {hx(f2u(1/512))}, v{MEAN}")
        D = TMP + 8
        e(f"v_mov_b32 v{TMP+1}, v{MEAN}")
        e(f"v_mov_b32 v{TMP}, v{MEAN}")
        for k in range(8):
            e(f"v_pk_add_f32 v[{D+2*k}:{D+2*k+1}], v[{XF+2*k}:{XF+2*k+1}], v[{TMP}:{TMP+1}] neg_lo:[0,1] neg_hi:[0,1]")
        for k in range(8):
            e(f"v_pk_mul_f32 v[{D+2*k}:{D+2*k+1}], v[{D+2*k}:{D+2*k+1}], v[{D+2*k}:{D+2*k+1}]")
        tree16(RS, D, TMP)
        half_sum(RS, TMP)
        e(f"v_mul_f32 v{RS}, {hx(f2u(1/512))}, v{RS}")
        bfr(MEAN)
        bfr(RS)
        e(f"v_add_f32 v{RS}, {hx(f2u(1e-5))}, v{RS}")
        bfr(RS)
        e(f"v_sqrt_f32 v{RS}, v{RS}")
        bfr(RS)
        e(f"v_rcp_f32 v{RS}, v{RS}")

    def norm_pair(r, m, rs, pk):
        e(f"v_subrev_f32 v{r}, {m}, v{r}")
        e(f"v_subrev_f32 v{r+1}, {m}, v{r+1}")
        e(f"v_cvt_pk_bf16_f32 v{pk}, v{r}, v{r+1}")
        unpack(r, pk)
        e(f"v_mul_f32 v{r}, {rs}, v{r}")
        e(f"v_mul_f32 v{r+1}, {rs}, v{r+1}")
        e(f"v_cvt_pk_bf16_f32 v{pk}, v{r}, v{r+1}")

    def slices_norm(MEAN, RS, keep):
        e(f"v_readlane_b32 s98, v{MEAN}, 0")
        e(f"v_readlane_b32 s99, v{MEAN}, 32")
        e(f"v_readlane_b32 s100, v{RS}, 0")
        e(f"v_readlane_b32 s101, v{RS}, 32")
        for bb in range(2):
            for p in range(2):
                norm_pair(48 + 4 * bb + 2 * p, f"s{98+bb}", f"s{100+bb}", 56 + 2 * bb + p)
        if keep:
            for bb in range(2):
                for p in range(2):
                    unpack(48 + 4 * bb + 2 * p, 56 + 2 * bb + p)

    def wperm(dst, r0, r1):
        for c in range(8):
            sel = "s76" if (c & 1) == 0 else "s77"
            e(f"v_perm_b32 v{dst+c}, v{r1+(c>>1)}, v{r0+(c>>1)}, {sel}")

    ACC = 80
    def dots(wp, x0, x1, first):
        for bb, xr in ((0, x0), (1, x1)):
            for c in range(8):
                d = ACC + 8 * bb + c
                if first:
                    e(f"v_dot2_f32_bf16 v{d}, v{wp+c}, v{xr}, 0")
                else:
                    e(f"v_dot2c_f32_bf16 v{d}, v{wp+c}, v{xr}")

    def reduce_publish(area, cnt, addr_reg, lab):
        for k in range(8):
            e(f"v_permlane32_swap_b32 v{ACC+k}, v{ACC+8+k}")
        for k in range(4):
            e(f"v_pk_add_f32 v[{ACC+2*k}:{ACC+2*k+1}], v[{ACC+2*k}:{ACC+2*k+1}], v[{ACC+8+2*k}:{ACC+9+2*k}]")
        for k in range(4):
            e(f"v_permlane16_swap_b32 v{ACC+k}, v{ACC+4+k}")
        for k in range(2):
            e(f"v_pk_add_f32 v[{ACC+2*k}:{ACC+2*k+1}], v[{ACC+2*k}:{ACC+2*k+1}], v[{ACC+4+2*k}:{ACC+5+2*k}]")
        for s in (8, 4, 2):
            for k in range(4):
                e(f"v_add_f32_dpp v{ACC+k}, v{ACC+k}, v{ACC+k} row_ror:{s} {DPPM}")
        e("s_mov_b32 exec_lo, 0x00030003")
        e("s_mov_b32 exec_hi, 0x00030003")
        e(f"ds_write_b128 v{addr_reg}, v[{ACC}:{ACC+3}] offset:{area}")
        e("s_mov_b64 exec, 1")
        e(f"ds_add_rtn_u32 v64, v101, v121 offset:{cnt}")
        e("s_waitcnt lgkmcnt(0)")
        e("v_readfirstlane_b32 s4, v64")
        e("s_mov_b64 exec, -1")
        e("s_cmp_lg_u32 s4, 3")
        e(f"s_cbranch_scc1 {lab}")
        e("s_mov_b64 exec, 0xff")
        for w in range(4):
            e(f"ds_read_b128 v[{64+4*w}:{67+4*w}], v122 offset:{area+128*w}")
        e("s_waitcnt lgkmcnt(0)")
        for k in range(2):
            e(f"v_pk_add_f32 v[{64+2*k}:{65+2*k}], v[{64+2*k}:{65+2*k}], v[{68+2*k}:{69+2*k}]")
            e(f"v_pk_add_f32 v[{72+2*k}:{73+2*k}], v[{72+2*k}:{73+2*k}], v[{76+2*k}:{77+2*k}]")
        for k in range(2):
            e(f"v_pk_add_f32 v[{64+2*k}:{65+2*k}], v[{64+2*k}:{65+2*k}], v[{72+2*k}:{73+2*k}]")

    def poll(loads, lab, sleep):
        n = len(loads)
        P = [78 + 2 * i for i in range(n)]
        assert P[-1] + 1 <= 91 or n <= 7
        for p in P:
            e(f"s_mov_b64 s[{p}:{p+1}], -1")
        e(f"s_mov_b32 s92, {spin}")
        e(f"{lab}_top:")
        for i, (txt, tags) in enumerate(loads):
            e(f"s_mov_b64 exec, s[{P[i]}:{P[i]+1}]")
            e(f"s_cbranch_execz {lab}_s{i}")
            e(txt)
            e(f"{lab}_s{i}:")
        e("s_waitcnt vmcnt(0)")
        for i, (txt, tags) in enumerate(loads):
            e(f"s_mov_b64 exec, s[{P[i]}:{P[i]+1}]")
            e(f"v_cmp_ne_u32_e64 s[{P[i]}:{P[i]+1}], v{tags[0]}, s38")
            for tg in tags[1:]:
                e(f"v_cmp_ne_u32_e64 vcc, v{tg}, s38")
                e(f"s_or_b64 s[{P[i]}:{P[i]+1}], s[{P[i]}:{P[i]+1}], vcc")
        e("s_mov_b64 exec, -1")
        e(f"s_mov_b64 s[4:5], s[{P[0]}:{P[0]+1}]")
        for p in P[1:]:
            e(f"s_or_b64 s[4:5], s[4:5], s[{p}:{p+1}]")
        e("s_cmp_eq_u64 s[4:5], 0")
        e(f"s_cbranch_scc1 {lab}_done")
        if sleep:
            e(f"s_sleep {sleep}")
        e("s_sub_u32 s92, s92, 1")
        e("s_cmp_lg_u32 s92, 0")
        e(f"s_cbranch_scc1 {lab}_top")
        e(f"{lab}_done:")

    e("v_mov_b32 v121, 1")
    e("v_lshrrev_b32 v120, 4, v0")
    e("v_lshrrev_b32 v123, 1, v120")
    e("v_and_b32 v120, 1, v120")
    e("v_lshlrev_b32 v120, 4, v120")
    e("v_lshl_add_u32 v120, v14, 5, v120")
    e("s_lshl_b32 s4, s39, 7")
    e("v_add_u32 v120, s4, v120")
    e("v_xor_b32 v124, v123, v14")
    e("v_lshl_add_u32 v124, v124, 6, v120")
    e("v_lshl_add_u32 v120, v123, 6, v120")
    e("v_lshlrev_b32 v122, 4, v0")
    e("v_lshrrev_b32 v125, 2, v0")
    e("v_and_b32 v126, 3, v0")
    e("v_lshlrev_b32 v126, 4, v126")

    XF = 32
    e("s_waitcnt vmcnt(11) lgkmcnt(0)")
    e("s_mul_i32 s38, s38, 0x9E3779B1")
    e("s_add_u32 s38, s38, 0x7F4A7C15")
    for k in range(8):
        unpack(XF + 2 * k, 2 + k)
    ln_stats(XF, 60, 61, 64)
    e("s_waitcnt vmcnt(9)")
    for k in range(4):
        unpack(48 + 2 * k, 10 + k)
    slices_norm(60, 61, True)
    e("s_waitcnt vmcnt(5)")
    stamp(1)
    wperm(64, 16, 20)
    wperm(72, 24, 28)
    dots(64, 56, 58, True)
    dots(72, 57, 59, False)
    reduce_publish(L_P1, L_CNT, 120, "L_h1_skip")
    e("v_cvt_pk_bf16_f32 v64, v64, v65")
    e("v_cvt_pk_bf16_f32 v66, v66, v67")
    e("v_mov_b32 v65, s38")
    e("v_mov_b32 v67, s38")
    e("v_lshl_add_u32 v68, v125, 11, v126")
    e("s_lshl_b32 s4, s34, 12")
    e("s_lshl_b32 s5, s35, 6")
    e("s_add_u32 s4, s4, s5")
    e(f"s_add_u32 s4, s4, {QG}")
    e(f"buffer_store_dwordx4 v[64:67], v68, {srd(WS)}, s4 offen sc1")
    e("s_mov_b64 exec, -1")
    e("L_h1_skip:")
    stamp(2)
    e("s_cmp_lg_u32 s39, 0")
    e("s_cbranch_scc1 L_qpoll_done2")
    e("s_lshl_b32 s93, s34, 12")
    e("s_lshl_b32 s5, s36, 11")
    e("s_add_u32 s93, s93, s5")
    e(f"s_add_u32 s93, s93, {QG}")
    poll([(f"buffer_load_dwordx4 v[64:67], v122, {srd(WS)}, s93 offen sc1", (65, 67)),
          (f"buffer_load_dwordx4 v[68:71], v122, {srd(WS)}, s93 offen offset:1024 sc1", (69, 71))], "L_qpoll", qsleep)
    e("v_lshlrev_b32 v72, 3, v0")
    e(f"v_add_u32 v72, {L_Q}, v72")
    e("ds_write2_b32 v72, v64, v66 offset0:0 offset1:1")
    e("ds_write2_b32 v72, v68, v70 offset0:128 offset1:129")
    e("s_waitcnt lgkmcnt(0)")
    e("L_qpoll_done2:")
    stamp(3)
    e("s_barrier")
    e("s_waitcnt vmcnt(0)")

    e("s_lshr_b32 s93, s35, 3")
    e("s_bfe_u32 s94, s35, 0x10002")
    e("s_and_b32 s96, s35, 3")
    e("s_cmp_lg_u32 s39, 3")
    e("s_cbranch_scc1 L_h4a_skip")
    e("s_lshl_b32 s4, s34, 2")
    e("s_add_u32 s4, s4, s93")
    e("s_lshl_b32 s4, s4, 1")
    e("s_add_u32 s4, s4, s94")
    e("s_lshl_b32 s4, s4, 16")
    e("s_lshl_b32 s5, s96, 8")
    e("s_add_u32 s4, s4, s5")
    e("v_lshrrev_b32 v64, 4, v0")
    e("v_lshlrev_b32 v64, 13, v64")
    e("v_and_b32 v65, 15, v0")
    e("v_lshl_add_u32 v64, v65, 4, v64")
    for s in range(2):
        for h in range(2):
            if s or h:
                e(f"s_add_u32 s5, s4, {s*32768+h*4096}")
            so = "s5" if (s or h) else "s4"
            for i4 in range(4):
                r = 128 + 4 * (8 * s + 4 * h + i4)
                e(f"buffer_load_dwordx4 v[{r}:{r+3}], v64, {srd(WO)}, {so} offen offset:{1024*i4}")
    e("L_h4a_skip:")

    e("s_cmp_ge_u32 s35, 14")
    e("s_cbranch_scc1 L_h2_skip")
    for k in range(8):
        norm_pair(XF + 2 * k, "v60", "v61", 62)
        unpack(XF + 2 * k, 62)
    ln_stats(XF, 60, 61, 64)
    slices_norm(60, 61, False)
    wperm(64, 104, 108)
    wperm(72, 112, 116)
    dots(64, 56, 58, True)
    dots(72, 57, 59, False)
    reduce_publish(L_P2, L_CNT + 4, 120, "L_h2_skip")
    e("v_cvt_pk_bf16_f32 v68, v64, v65")
    e("v_cvt_pk_bf16_f32 v69, v66, v67")
    unpack(64, 68); unpack(66, 69)
    unpack(68, 102); unpack(70, 103)
    e("v_pk_add_f32 v[64:65], v[64:65], v[68:69]")
    e("v_pk_add_f32 v[66:67], v[66:67], v[70:71]")
    e("v_cvt_pk_bf16_f32 v68, v64, v65")
    e("v_cvt_pk_bf16_f32 v69, v66, v67")
    unpack(64, 68); unpack(66, 69)
    k1 = -2.0 * math.sqrt(2.0 / math.pi) * math.log2(math.e)
    e(f"s_mov_b32 s4, {hx(f2u(k1*0.044715))}")
    e(f"v_mov_b32 v72, {hx(f2u(k1))}")
    for k in range(4):
        e(f"v_mul_f32 v{68+k}, v{64+k}, v{64+k}")
    for k in range(4):
        e(f"v_fma_f32 v{68+k}, v{68+k}, s4, v72")
    for k in range(4):
        e(f"v_mul_f32 v{68+k}, v{68+k}, v{64+k}")
    for k in range(4):
        e(f"v_exp_f32 v{68+k}, v{68+k}")
    for k in range(4):
        e(f"v_add_f32 v{68+k}, 1.0, v{68+k}")
    for k in range(4):
        e(f"v_rcp_f32 v{68+k}, v{68+k}")
    for k in range(4):
        e(f"v_mul_f32 v{64+k}, v{64+k}, v{68+k}")
    e("v_cvt_pk_bf16_f32 v64, v64, v65")
    e("v_cvt_pk_bf16_f32 v66, v66, v67")
    e("v_mov_b32 v65, s38")
    e("v_mov_b32 v67, s38")
    e("s_movk_i32 s4, 7168")
    e("v_mad_u32_u24 v68, v125, s4, v126")
    e("s_lshl_b32 s4, s95, 6")
    e(f"s_add_u32 s4, s4, {HG}")
    e(f"buffer_store_dwordx4 v[64:67], v68, {srd(WS)}, s4 offen sc1")
    e("s_mov_b64 exec, -1")
    e("L_h2_skip:")

    e("s_cmp_lg_u32 s39, 3")
    e("s_cbranch_scc1 L_h4b_skip")
    e("s_waitcnt vmcnt(0)")
    for s in range(2):
        for jj in range(8):
            sel = "s76" if (jj & 1) == 0 else "s77"
            for q in range(4):
                r0 = 128 + 4 * (8 * s + 2 * q) + (jj >> 1)
                e(f"v_perm_b32 v{192+4*(8*s+jj)+q}, v{r0+4}, v{r0}, {sel}")
    e("L_h4b_skip:")

    e("s_lshl_b32 s95, s34, 2")
    e("s_add_u32 s95, s95, s35")
    e("s_cmp_ge_u32 s2, 32")
    e("s_cbranch_scc1 L_h3_skip")
    e("s_mul_i32 s4, s39, 448")
    e("v_lshl_add_u32 v64, v1, 1, s4")
    e("v_lshlrev_b32 v65, 10, v64")
    e("v_lshl_add_u32 v65, v14, 4, v65")
    e("s_lshl_b32 s4, s95, 5")
    for i in range(7):
        for ee in range(2):
            r = 128 + 4 * (2 * i + ee)
            e(f"buffer_load_dwordx4 v[{r}:{r+3}], v65, {srd(W2)}, s4 offen offset:{1024*ee}")
        if i < 6:
            e("s_add_u32 s4, s4, 0x10000")
    e("s_lshl_b32 s4, s95, 5")
    e(f"buffer_load_dwordx2 v[102:103], v100, {srd(B2)}, s4 offen")
    e("v_bfe_u32 v66, v0, 1, 3")
    e("v_bfe_u32 v67, v0, 4, 1")
    e("v_lshl_add_u32 v66, v67, 3, v66")
    e("v_lshlrev_b32 v118, 2, v66")
    e("v_lshl_add_u32 v118, v14, 6, v118")
    e("v_lshlrev_b32 v119, 1, v66")
    e("v_lshl_add_u32 v119, v14, 10, v119")
    e("v_add_u32 v119, s4, v119")
    e(f"buffer_load_ushort v117, v119, {srd(X)}, 0 offen")
    e("s_movk_i32 s4, 7168")
    e("v_mul_u32_u24 v66, s4, v14")
    e("v_lshl_add_u32 v66, v64, 2, v66")
    e(f"s_mov_b32 s97, {HG}")
    poll([(f"buffer_load_dwordx2 v[{16+2*i}:{17+2*i}], v66, {srd(WS)}, s97 offen offset:{256*i} sc1", (17 + 2 * i,)) for i in range(7)],
         "L_hpoll", 8)
    for i in range(7):
        e(f"v_mov_b32_dpp v{17+2*i}, v{16+2*i} quad_perm:[1,0,3,2] {DPPM}")
    for i in range(7):
        wp = 64 + 8 * (i & 1)
        wperm(wp, 128 + 8 * i, 132 + 8 * i)
        dots(wp, 16 + 2 * i, 17 + 2 * i, i == 0)
    reduce_publish(L_P3, L_CNT + 8, 124, "L_h3_skip")
    e("v_cvt_pk_bf16_f32 v68, v64, v65")
    e("v_cvt_pk_bf16_f32 v69, v66, v67")
    unpack(64, 68); unpack(66, 69)
    unpack(68, 102); unpack(70, 103)
    e("v_pk_add_f32 v[64:65], v[64:65], v[68:69]")
    e("v_pk_add_f32 v[66:67], v[66:67], v[70:71]")
    e("v_cvt_pk_bf16_f32 v68, v64, v65")
    e("v_cvt_pk_bf16_f32 v69, v66, v67")
    unpack(64, 68); unpack(66, 69)
    for k in range(4):
        e(f"v_mul_f32 v{68+k}, {hx(f2u(-math.log2(math.e)))}, v{64+k}")
    for k in range(4):
        e(f"v_exp_f32 v{68+k}, v{68+k}")
    for k in range(4):
        e(f"v_add_f32 v{68+k}, 1.0, v{68+k}")
    for k in range(4):
        e(f"v_rcp_f32 v{68+k}, v{68+k}")
    for k in range(4):
        e(f"v_mul_f32 v{64+k}, v{64+k}, v{68+k}")
    e("v_cvt_pk_bf16_f32 v68, v64, v65")
    e("v_cvt_pk_bf16_f32 v69, v66, v67")
    unpack(64, 68); unpack(66, 69)
    e(f"ds_write_b128 v122, v[64:67] offset:{L_G}")
    e("s_mov_b64 exec, -1")
    e("L_h3_skip:")

    e("v_and_b32 v2, 3, v0")
    e("v_lshlrev_b32 v2, 9, v2")
    e("v_lshrrev_b32 v3, 4, v0")
    e("v_lshl_add_u32 v2, v3, 4, v2")
    e("v_bfe_u32 v3, v0, 2, 2")
    e("v_lshl_add_u32 v2, v3, 2, v2")
    e("s_lshl_b32 s4, s39, 6")
    e("v_add_u32 v2, s4, v2")
    e("s_lshl_b32 s4, s39, 4")
    e("v_mov_b32 v3, s4")
    e("s_lshl_b32 s4, s34, 1")
    e("s_add_u32 s4, s4, s36")
    e("s_lshl_b32 s4, s4, 4")
    e("s_add_u32 s4, s4, s37")
    e("s_lshl_b32 s4, s4, 2")
    e("s_add_u32 s4, s4, s39")
    e("s_lshl_b32 s4, s4, 10")
    e(f"s_add_u32 s88, s4, {PG}")
    e("s_lshl_b32 s4, s34, 2")
    e("s_add_u32 s4, s4, s39")
    e("s_lshl_b32 s4, s4, 1")
    e("s_add_u32 s4, s4, s36")
    e("s_lshl_b32 s4, s4, 4")
    e("s_add_u32 s4, s4, s37")
    e("s_lshl_b32 s4, s4, 4")
    e(f"s_add_u32 s89, s4, {MLG}")
    e("s_lshr_b32 s5, s39, 1")
    e("s_and_b32 s6, s39, 1")
    e("s_lshl_b32 s6, s6, 3")
    e("s_lshl_b32 s4, s34, 1")
    e("s_add_u32 s4, s4, s5")
    e("s_lshl_b32 s4, s4, 4")
    e("s_add_u32 s4, s4, s6")
    e("s_lshl_b32 s4, s4, 2")
    e("s_add_u32 s4, s4, s93")
    e("s_lshl_b32 s4, s4, 1")
    e("s_add_u32 s4, s4, s94")
    e("s_lshl_b32 s4, s4, 9")
    e(f"s_add_u32 s98, s4, {PG}")
    e("s_add_u32 s99, s98, 0x2000")
    e("s_add_u32 s100, s98, 0x4000")
    e("s_add_u32 s101, s98, 0x6000")
    e("s_lshl_b32 s4, s34, 2")
    e("s_add_u32 s4, s4, s93")
    e("s_lshl_b32 s7, s4, 1")
    e("s_add_u32 s90, s7, s94")
    e("s_add_u32 s4, s7, s5")
    e("s_lshl_b32 s4, s4, 8")
    e(f"s_add_u32 s97, s4, {MLG}")
    e("v_lshrrev_b32 v6, 5, v0")
    e("v_and_b32 v7, 31, v0")
    e("v_lshlrev_b32 v4, 4, v7")
    e("v_lshl_add_u32 v4, v6, 12, v4")
    e("v_and_b32 v8, 15, v0")
    e("v_add3_u32 v5, v8, v6, s6")
    e("v_and_b32 v5, 15, v5")
    e("v_lshlrev_b32 v5, 4, v5")
    e("v_lshl_add_u32 v6, v7, 1, v6")
    e("v_lshlrev_b32 v6, 2, v6")
    e("s_lshl_b32 s4, s39, 8")
    e("v_add_u32 v6, s4, v6")
    e("v_lshrrev_b32 v9, 4, v0")
    e("v_lshlrev_b32 v7, 5, v9")
    e("v_lshl_add_u32 v7, v14, 9, v7")
    e("v_lshlrev_b32 v10, 15, v9")
    e("v_lshl_add_u32 v10, v8, 4, v10")
    e("s_lshl_b32 s4, s96, 17")
    e("s_lshl_b32 s90, s90, 8")
    e("s_add_u32 s90, s90, s4")
    e(f"s_add_u32 s90, s90, {SG}")
    e("s_add_u32 s91, s90, 0x4000")
    e("v_lshrrev_b32 v11, 5, v0")
    e("v_lshl_add_u32 v11, v11, 4, v8")
    e("v_lshlrev_b32 v11, 2, v11")
    e("s_lshl_b32 s4, s39, 7")
    e("v_add_u32 v11, s4, v11")
    e("v_mov_b32 v41, s38")
    e("v_mov_b32 v43, s38")
    e("v_mov_b32 v45, s38")
    e("v_mov_b32 v47, s38")
    e("s_waitcnt lgkmcnt(0)")
    stamp(4)
    e("s_barrier")
    e(f"ds_read_b128 v[16:19], v3 offset:{L_MC}")
    e(f"ds_read_b128 v[20:23], v3 offset:{L_L}")
    for sw in range(4):
        e(f"ds_read2st64_b32 v[{24+2*sw}:{25+2*sw}], v2 offset0:{8*sw} offset1:{8*sw+1}")
    e("s_waitcnt lgkmcnt(0)")
    e("v_max3_f32 v44, v16, v17, v18")
    e("v_max_f32 v44, v44, v19")
    for k in range(4):
        e(f"v_sub_f32 v{16+k}, v{16+k}, v44")
    for k in range(4):
        e(f"v_exp_f32 v{16+k}, v{16+k}")
    e("v_mul_f32 v40, v16, v24")
    e("v_mul_f32 v42, v16, v25")
    e("v_mul_f32 v46, v16, v20")
    for k in range(1, 4):
        e(f"v_fmac_f32 v40, v{16+k}, v{24+2*k}")
        e(f"v_fmac_f32 v42, v{16+k}, v{25+2*k}")
        e(f"v_fmac_f32 v46, v{16+k}, v{20+k}")
    e(f"buffer_store_dwordx4 v[40:43], v122, {srd(WS)}, s88 offen sc1")
    e("s_mov_b64 exec, 1")
    e(f"buffer_store_dwordx4 v[44:47], v101, {srd(WS)}, s89 offen sc1")
    e("s_mov_b64 exec, -1")
    stamp(5)
    poll([(f"buffer_load_dwordx4 v[16:19], v5, {srd(WS)}, s97 offen sc1", (17, 19))] +
         [(f"buffer_load_dwordx4 v[{20+4*i}:{23+4*i}], v4, {srd(WS)}, s{98+i} offen sc1", (21 + 4 * i, 23 + 4 * i)) for i in range(4)],
         "L_ppoll", tsleep)
    e("v_mov_b32 v17, v16")
    for s in (8, 4, 2, 1):
        e(f"v_max_f32_dpp v17, v17, v17 row_ror:{s} {DPPM}")
    e("v_sub_f32 v16, v16, v17")
    e("v_exp_f32 v16, v16")
    e("v_mul_f32 v18, v16, v18")
    for s in (8, 4, 2, 1):
        e(f"v_add_f32_dpp v18, v18, v18 row_ror:{s} {DPPM}")
    e("v_rcp_f32 v18, v18")
    e("v_mul_f32 v16, v16, v18")
    e(f"v_mul_f32_dpp v36, v16, v20 row_newbcast:0 {DPPM}")
    e(f"v_mul_f32_dpp v37, v16, v22 row_newbcast:0 {DPPM}")
    for i in range(1, 4):
        e(f"v_fmac_f32_dpp v36, v16, v{20+4*i} row_newbcast:{2*i} {DPPM}")
        e(f"v_fmac_f32_dpp v37, v16, v{22+4*i} row_newbcast:{2*i} {DPPM}")
    e("v_permlane32_swap_b32 v36, v37")
    e("v_add_f32 v36, v36, v37")
    e(f"ds_write_b32 v6, v36 offset:{L_OP}")
    e("s_waitcnt lgkmcnt(0)")
    stamp(6)
    e("s_barrier")
    e("s_cmp_lg_u32 s39, 3")
    e("s_cbranch_scc1 L_h6_skip")
    for s in range(2):
        for w in range(2):
            for c in range(2):
                r = 48 + 16 * s + 8 * w + 4 * c
                e(f"ds_read_b128 v[{r}:{r+3}], v7 offset:{L_OP+128*s+256*w+16*c}")
    e("s_mov_b32 s78, 0xcccccccc")
    e("s_mov_b32 s79, 0xcccccccc")
    e("s_mov_b32 s80, 0xf0f0f0f0")
    e("s_mov_b32 s81, 0xf0f0f0f0")
    e("s_mov_b32 s82, 0xff00ff00")
    e("s_mov_b32 s83, 0xff00ff00")
    e("s_waitcnt lgkmcnt(0)")
    for s in range(2):
        for k in range(4):
            r = 48 + 16 * s + 2 * k
            e(f"v_pk_add_f32 v[{r}:{r+1}], v[{r}:{r+1}], v[{r+8}:{r+9}]")
    for s in range(2):
        for k in range(4):
            r = 48 + 16 * s + 2 * k
            e(f"v_cvt_pk_bf16_f32 v{16+4*s+k}, v{r}, v{r+1}")
    for s in range(2):
        for jj in range(8):
            d = 128 + 4 * jj
            c = "0" if s == 0 else f"v[{d}:{d+3}]"
            w = 192 + 4 * (8 * s + jj)
            e(f"v_mfma_f32_16x16x32_bf16 v[{d}:{d+3}], v[{w}:{w+3}], v[{16+4*s}:{19+4*s}], {c}")
    for k in range(4):
        for r in range(4):
            e(f"v_cndmask_b32_e64 v{160+4*k+r}, v{128+8*k+r}, v{132+8*k+r}, s[78:79]")
    for k in range(2):
        for r in range(4):
            e(f"v_cndmask_b32_e64 v{176+4*k+r}, v{160+8*k+r}, v{164+8*k+r}, s[80:81]")
    for r in range(4):
        e(f"v_cndmask_b32_e64 v{40+2*r}, v{176+r}, v{180+r}, s[82:83]")
    e(f"buffer_store_dwordx4 v[40:43], v10, {srd(WS)}, s90 offen sc1")
    e(f"buffer_store_dwordx4 v[44:47], v10, {srd(WS)}, s91 offen sc1")
    e("L_h6_skip:")
    e("s_cmp_ge_u32 s2, 32")
    e("s_cbranch_scc1 L_h_exit")
    e("s_lshl_b32 s97, s95, 14")
    e("s_lshl_b32 s4, s39, 12")
    e("s_add_u32 s97, s97, s4")
    e(f"s_add_u32 s97, s97, {SG}")
    poll([(f"buffer_load_dwordx4 v[{20+4*i}:{23+4*i}], v122, {srd(WS)}, s97 offen offset:{1024*i} sc1", (21 + 4 * i, 23 + 4 * i)) for i in range(4)],
         "L_spoll", tsleep)
    e("v_add_f32 v20, v20, v24")
    e("v_add_f32 v22, v22, v26")
    e("v_add_f32 v28, v28, v32")
    e("v_add_f32 v30, v30, v34")
    e("v_add_f32 v20, v20, v28")
    e("v_add_f32 v22, v22, v30")
    e("v_permlane32_swap_b32 v20, v22")
    e("v_add_f32 v20, v20, v22")
    e("v_mov_b32 v22, v20")
    e("v_permlane16_swap_b32 v20, v22")
    e("v_add_f32 v20, v20, v22")
    e(f"ds_write_b32 v11, v20 offset:{L_SP}")
    e("s_waitcnt lgkmcnt(0)")
    e("s_barrier")
    e("s_cmp_lg_u32 s39, 0")
    e("s_cbranch_scc1 L_h_exit")
    e("s_mov_b32 exec_hi, 0")
    e("v_lshlrev_b32 v16, 2, v0")
    e(f"v_add_u32 v16, {L_SP}, v16")
    e("ds_read2_b32 v[20:21], v16 offset0:0 offset1:32")
    e("ds_read2_b32 v[22:23], v16 offset0:64 offset1:96")
    e(f"ds_read_b32 v24, v118 offset:{L_G}")
    e("v_lshlrev_b32 v117, 16, v117")
    e("s_waitcnt lgkmcnt(0)")
    e("v_pk_add_f32 v[20:21], v[20:21], v[22:23]")
    e("v_add_f32 v20, v20, v21")
    bfr(20)
    e("v_mul_f32 v20, v20, v24")
    bfr(20)
    e("v_add_f32 v20, v20, v117")
    e("v_cvt_pk_bf16_f32 v20, v20, v20")
    e(f"buffer_store_short v20, v119, {srd(OUT)}, 0 offen")
    e("s_cmp_lg_u32 s2, 0")
    e("s_cbranch_scc1 L_h_exit")
    e("s_mov_b64 exec, 1")
    e(f"buffer_store_dword v41, v101, {srd(WS)}, 0 offen offset:4")
    e("L_h_exit:")
    stamp(7)
    prof_out(True)
    e("L_end:")
    e("s_endpgm")

    n = a.fix_hazards()
    head = open("recurrent_scan__gqa_block_cached__mixer_channel_mlp__decode.s.ref").read().split("\n")
    hdr = [ln for ln in head if ln.startswith(";") and "@launch" not in ln and not ln.startswith(";;")]
    lead = []
    for ln in head:
        if not ln.startswith(";"):
            break
        if "@launch" in ln and ln.startswith("; @launch"):
            lead.append(f"; @launch grid=(256,1,1) block=(512,1,1) lds={LDS_SIZE}")
        else:
            lead.append(ln)
    out = "\n".join(lead) + "\n"
    out += '.amdgcn_target "amdgcn-amd-amdhsa--gfx950"\n.text\n'
    out += f".globl {NAME}\n.p2align 8\n.type {NAME},@function\n"
    out += a.text()
    out += '.section .rodata,"a"\n.p2align 6\n'
    out += f".amdhsa_kernel {NAME}\n"
    out += "  .amdhsa_next_free_vgpr 256\n  .amdhsa_next_free_sgpr 102\n  .amdhsa_accum_offset 256\n"
    out += "  .amdhsa_group_segment_fixed_size 0\n  .amdhsa_kernarg_size 104\n  .amdhsa_user_sgpr_count 2\n"
    out += "  .amdhsa_user_sgpr_kernarg_segment_ptr 1\n  .amdhsa_system_sgpr_workgroup_id_x 1\n.end_amdhsa_kernel\n"
    return out, n

if __name__ == "__main__":
    kw = eval("dict(" + (sys.argv[2] if len(sys.argv) > 2 else "") + ")")
    txt, n = gen(**kw)
    path = sys.argv[1] if len(sys.argv) > 1 else "recurrent_scan__gqa_block_cached__mixer_channel_mlp__decode.s"
    open(path, "w").write(txt)
    print("wrote", path, "nops inserted:", n, "bytes:", len(txt))
```

```python
import sys, struct, math
sys.path.insert(0, "dev")
from asmlib import Asm

NAME = "recurrent_scan__gqa_block_cached__mixer_channel_mlp__decode_kernel"

def f2u(x):
    return struct.unpack("<I", struct.pack("<f", x))[0]
def hx(x):
    return f"0x{x & 0xffffffff:08x}"

QG, HG, PG, MLG, SG, PROFB = 0x1000, 0x10000, 0x20000, 0x120000, 0x130000, 0x200000
WS_SIZE = 0x300000
L_ACC, L_MC, L_L, L_CNT, L_Q = 0x0000, 0x2000, 0x2040, 0x2080, 0x2100
L_P1, L_P2, L_P3, L_G, L_OP, L_SP = 0x2500, 0x2700, 0x2900, 0x2B00, 0x2C00, 0x3000
LDS_SIZE = 0x3200

C_SC = (128 ** -0.5) * math.log2(math.e)
DPPM = "row_mask:0xf bank_mask:0xf"

def gen(prof=False, spin=1 << 16, win=8, qsleep=2, tsleep=1, dbg=False, kpol='nt', vpol='nt', skip='', qpol='', w1pol='', w2pol='', opol=''):
    a = Asm()
    e = a.e
    nstamp = [0]

    def stamp(k):
        if prof:
            e(f"s_memrealtime s[{8+2*k}:{9+2*k}]")
            e("s_waitcnt lgkmcnt(0)")

    def prof_out(helper):
        if not prof:
            return
        e("s_mov_b64 exec, -1")
        if prof == "dbg":
            e("s_load_dwordx2 s[56:57], s[0:1], 88")
            e("s_mov_b32 s58, 256")
            e("s_mov_b32 s59, 0x00020000")
            if not helper:
                e("s_not_b32 s8, s8")
            e("v_mov_b32 v8, 0")
            for k in range(8):
                e(f"v_writelane_b32 v8, s{8+2*k}, {k}")
            e("v_lshlrev_b32 v7, 2, v0")
            e("s_waitcnt lgkmcnt(0)")
            e("s_mov_b64 exec, 0xff")
            e(f"buffer_atomic_umax v8, v7, s[56:59], 0 offen offset:{32 if helper else 0} sc1")
            e("s_waitcnt vmcnt(0)")
            return
        e("s_load_dwordx2 s[56:57], s[0:1], 96")
        e(f"s_mov_b32 s58, {WS_SIZE}")
        e("s_mov_b32 s59, 0x00020000")
        e("s_lshl_b32 s4, s2, 3")
        e("s_add_u32 s4, s4, s3")
        e("s_lshl_b32 s4, s4, 5")
        e(f"s_add_u32 s4, s4, {PROFB}")
        for k in range(8):
            e(f"v_mov_b32 v{8+k}, s{8+2*k}")
        e("v_mov_b32 v7, 0")
        e("s_waitcnt lgkmcnt(0)")
        e("s_mov_b64 exec, 1")
        e("buffer_store_dwordx4 v[8:11], v7, s[56:59], s4 offen")
        e("buffer_store_dwordx4 v[12:15], v7, s[56:59], s4 offen offset:16")
        e("s_waitcnt vmcnt(0)")

    e(f"{NAME}:")
    e("s_cmp_ge_u32 s2, 256")
    e("s_cbranch_scc1 L_end")
    e("v_lshrrev_b32 v1, 6, v0")
    e("s_and_b32 s34, s2, 7")
    e("v_readfirstlane_b32 s3, v1")
    e("s_lshr_b32 s35, s2, 3")
    e("v_and_b32 v0, 63, v0")
    e("s_lshr_b32 s36, s35, 4")
    e("s_and_b32 s37, s35, 15")
    if prof:
        for k in range(8):
            e(f"s_mov_b32 s{8+2*k}, 0")
    e("s_cmp_ge_u32 s3, 4")
    e("s_cbranch_scc1 L_helper")

    e("s_load_dwordx4 s[4:7], s[0:1], 8")
    stamp(0)
    e("s_lshl_b32 s39, s36, 3")
    e("s_add_u32 s39, s39, s34")
    e("s_lshl_b32 s39, s39, 23")
    e("s_lshl_b32 s48, s37, 19")
    e("s_add_u32 s39, s39, s48")
    e("s_lshl_b32 s48, s3, 13")
    e("s_add_u32 s39, s39, s48")
    e(f"s_mov_b32 s42, {15*32768+8192}")
    e("s_mov_b32 s43, 0x00020000")
    e(f"s_mov_b32 s46, {15*32768+8192}")
    e("s_mov_b32 s47, 0x00020000")
    e("v_and_b32 v5, 15, v0")
    e("v_lshrrev_b32 v6, 4, v0")
    e("v_lshlrev_b32 v1, 8, v5")
    e("v_lshl_add_u32 v1, v6, 4, v1")
    e("v_add_u32 v2, 4096, v1")
    e("v_lshlrev_b32 v3, 10, v6")
    e("v_lshl_add_u32 v3, v5, 4, v3")
    e("v_add_u32 v4, 4096, v3")
    e(f"s_mov_b32 s51, {hx(f2u(C_SC))}")
    e(f"s_mov_b32 s52, {hx(f2u(-C_SC))}")
    e("s_mov_b32 s53, 0x05040100")
    e("s_mov_b32 s54, 0x07060302")
    e("s_waitcnt lgkmcnt(0)")
    e("s_add_u32 s40, s4, s39")
    e("s_addc_u32 s41, s5, 0")
    e("s_add_u32 s44, s6, s39")
    e("s_addc_u32 s45, s7, 0")

    def issue_k(slot, soff):
        kb = 64 + 64 * slot
        for T in range(2):
            for t in range(4):
                r = kb + 16 * T + 4 * t
                e(f"buffer_load_dwordx4 v[{r}:{r+3}], v{1+T}, s[40:43], {soff} offen offset:{64*t} {kpol}")
    def issue_v(slot, soff):
        vb = 96 + 64 * slot
        for i in range(8):
            r = vb + 4 * i
            e(f"buffer_load_dwordx4 v[{r}:{r+3}], v{3+(i>>2)}, s[44:47], {soff} offen offset:{256*(i&3)} {vpol}")

    e("s_mov_b32 s49, 0x8000")
    e("s_mov_b32 s50, 0x10000")
    e("s_barrier")
    issue_k(0, "0")
    issue_v(0, "0")
    for r in range(32, 64):
        e(f"v_mov_b32 v{r}, 0")
    e("v_and_b32 v7, 3, v5")
    e("v_lshlrev_b32 v7, 8, v7")
    e("v_lshl_add_u32 v7, v6, 4, v7")
    e("v_mov_b32 v5, 0xff800000")
    e("v_mov_b32 v6, 0")
    e(f"s_waitcnt vmcnt({win})")
    issue_k(1, "s49")
    e(f"s_waitcnt vmcnt({win})")
    issue_v(1, "s49")
    e(f"s_waitcnt vmcnt({win})")
    issue_k(2, "s50")
    e(f"s_waitcnt vmcnt({win})")
    issue_v(2, "s50")
    stamp(1)
    e("s_barrier")
    for t in range(4):
        e(f"ds_read_b128 v[{16+4*t}:{19+4*t}], v7 offset:{L_Q+64*t}")
    e("s_mov_b32 s48, 0")
    e("s_mov_b32 s49, 0x18000")
    e("s_waitcnt lgkmcnt(0)")
    stamp(2)
    e("s_branch L_st_entry")

    e("L_st_loop:")
    for slot in range(3):
        kb = 64 + 64 * slot
        vb = kb + 32
        e(f"s_waitcnt vmcnt({win})")
        e("s_cmp_ge_u32 s48, 14")
        e(f"s_cbranch_scc1 L_st_nov{slot}")
        e("s_sub_u32 s50, s49, 0x8000")
        issue_v((slot + 2) % 3, "s50")
        e(f"L_st_nov{slot}:")
        if slot == 0:
            e("L_st_entry:")
        for t in range(4):
            for T in range(2):
                d = 8 + 4 * T
                c = "0" if t == 0 else f"v[{d}:{d+3}]"
                r = kb + 16 * T + 4 * t
                e(f"v_mfma_f32_16x16x32_bf16 v[{d}:{d+3}], v[{r}:{r+3}], v[{16+4*t}:{19+4*t}], {c}")
        t0, t1, al, nm = kb + 28, kb + 29, kb + 30, kb + 31
        e(f"v_max3_f32 v{t0}, v8, v9, v10")
        e(f"v_max3_f32 v{t1}, v12, v13, v14")
        e(f"v_max3_f32 v{t0}, v{t0}, v11, v5")
        e(f"v_max3_f32 v{t0}, v{t0}, v{t1}, v15")
        e(f"v_mov_b32 v{t1}, v{t0}")
        e(f"v_permlane32_swap_b32 v{t0}, v{t1}")
        e(f"v_max_f32 v{t0}, v{t0}, v{t1}")
        e(f"v_mov_b32 v{t1}, v{t0}")
        e(f"v_permlane16_swap_b32 v{t0}, v{t1}")
        e(f"v_max_f32 v{t0}, v{t0}, v{t1}")
        e(f"v_sub_f32 v{t1}, v5, v{t0}")
        e(f"v_mul_f32 v{nm}, s52, v{t0}")
        e(f"v_mul_f32 v{t1}, s51, v{t1}")
        e(f"v_mov_b32 v5, v{t0}")
        e(f"v_exp_f32 v{al}, v{t1}")
        for i in range(8):
            e(f"v_fma_f32 v{8+i}, v{8+i}, s51, v{nm}")
        for i in range(8):
            e(f"v_exp_f32 v{8+i}, v{8+i}")
        for k in range(16):
            e(f"v_pk_mul_f32 v[{32+2*k}:{33+2*k}], v[{32+2*k}:{33+2*k}], v[{al}:{al+1}] op_sel_hi:[1,0]")
        e(f"v_mul_f32 v6, v6, v{al}")
        e(f"v_add_f32 v{t0}, v8, v9")
        e(f"v_add_f32 v{t1}, v10, v11")
        e(f"v_add_f32 v6, v6, v12")
        e(f"v_add_f32 v{t0}, v{t0}, v13")
        e(f"v_add_f32 v{t1}, v{t1}, v14")
        e(f"v_add_f32 v6, v6, v15")
        e(f"v_add_f32 v{t0}, v{t0}, v{t1}")
        e("v_cvt_pk_bf16_f32 v8, v8, v9")
        e("v_cvt_pk_bf16_f32 v9, v10, v11")
        e("v_cvt_pk_bf16_f32 v10, v12, v13")
        e("v_cvt_pk_bf16_f32 v11, v14, v15")
        e(f"v_add_f32 v6, v6, v{t0}")
        if slot == 0:
            e("s_cmp_lg_u32 s48, 15")
            e("s_cbranch_scc1 L_st_notlast")
            e("s_waitcnt vmcnt(0)")
            e("L_st_notlast:")
        def perms(jj):
            sel = "s53" if (jj & 1) == 0 else "s54"
            for q in range(4):
                e(f"v_perm_b32 v{kb+4*jj+q}, v{vb+4*(2*q+1)+(jj>>1)}, v{vb+4*(2*q)+(jj>>1)}, {sel}")
        def pv(jj):
            d = 32 + 4 * jj
            e(f"v_mfma_f32_16x16x32_bf16 v[{d}:{d+3}], v[{kb+4*jj}:{kb+4*jj+3}], v[8:11], v[{d}:{d+3}]")
        perms(0)
        for jj in range(8):
            if jj + 1 < 8:
                perms(jj + 1)
            pv(jj)
        if slot == 0:
            e("s_cmp_eq_u32 s48, 15")
            e("s_cbranch_scc1 L_st_done")
        e("s_cmp_ge_u32 s48, 13")
        e(f"s_cbranch_scc1 L_st_nok{slot}")
        e(f"s_waitcnt vmcnt({win})")
        issue_k(slot, "s49")
        e(f"L_st_nok{slot}:")
        e("s_add_u32 s48, s48, 1")
        e("s_add_u32 s49, s49, 0x8000")
    e("s_branch L_st_loop")

    e("L_st_done:")
    stamp(3)
    e("v_mov_b32 v7, v6")
    e("v_permlane32_swap_b32 v6, v7")
    e("v_add_f32 v6, v6, v7")
    e("v_mov_b32 v7, v6")
    e("v_permlane16_swap_b32 v6, v7")
    e("v_add_f32 v6, v6, v7")
    e("v_mul_f32 v5, s51, v5")
    e("v_and_b32 v1, 15, v0")
    e("v_lshrrev_b32 v2, 4, v0")
    e("v_lshl_add_u32 v2, v1, 2, v2")
    e("v_lshlrev_b32 v2, 4, v2")
    e("s_lshl_b32 s4, s3, 11")
    e("v_add_u32 v2, s4, v2")
    e("s_lshl_b32 s4, s3, 2")
    e("v_lshl_add_u32 v1, v1, 4, s4")
    e("s_mov_b32 exec_lo, 0x000f000f")
    e("s_mov_b32 exec_hi, 0x000f000f")
    for jj in range(8):
        e(f"ds_write_b128 v2, v[{32+4*jj}:{35+4*jj}] offset:{L_ACC+256*jj}")
    e("s_mov_b64 exec, 15")
    e(f"ds_write_b32 v1, v5 offset:{L_MC}")
    e(f"ds_write_b32 v1, v6 offset:{L_L}")
    e("s_waitcnt lgkmcnt(0)")
    e("s_barrier")
    stamp(4)
    prof_out(False)
    e("s_endpgm")

    X, WQ, W1, B1, WS, W2, B2, WO, OUT = 40, 44, 48, 52, 56, 60, 64, 68, 72
    def srd(r):
        return f"s[{r}:{r+3}]"
    e("L_helper:")
    e(f"s_load_dwordx2 s[{X}:{X+1}], s[0:1], 0")
    e(f"s_load_dwordx2 s[{WQ}:{WQ+1}], s[0:1], 24")
    e(f"s_load_dwordx2 s[{W1}:{W1+1}], s[0:1], 48")
    e(f"s_load_dwordx2 s[{B1}:{B1+1}], s[0:1], 56")
    e(f"s_load_dwordx2 s[{WS}:{WS+1}], s[0:1], 96")
    e(f"s_load_dwordx2 s[{W2}:{W2+1}], s[0:1], 64")
    e(f"s_load_dwordx2 s[{B2}:{B2+1}], s[0:1], 72")
    e(f"s_load_dwordx2 s[{WO}:{WO+1}], s[0:1], 32")
    e(f"s_load_dwordx2 s[{OUT}:{OUT+1}], s[0:1], 80")
    e("s_setprio 3")
    e("s_sub_u32 s39, s3, 4")
    e(f"s_mov_b32 s{X+2}, 2048")
    e(f"s_mov_b32 s{WQ+2}, {0 if 'q' in skip else 512*4096*2}")
    e("s_cmp_lt_u32 s35, 14")
    e(f"s_cselect_b32 s{W1+2}, {0 if 'h' in skip else 512*1792*2}, 0")
    e(f"s_cselect_b32 s{B1+2}, {1792*2}, 0")
    e(f"s_mov_b32 s{WS+2}, {WS_SIZE}")
    e(f"s_mov_b32 s{W2+2}, {0 if 'w' in skip else 1792*512*2}")
    e(f"s_mov_b32 s{B2+2}, 1024")
    e(f"s_mov_b32 s{WO+2}, {0 if 'o' in skip else 4096*512*2}")
    e(f"s_mov_b32 s{OUT+2}, 2048")
    for r in (X, WQ, W1, B1, WS, W2, B2, WO, OUT):
        e(f"s_mov_b32 s{r+3}, 0x00020000")
    e("v_lshrrev_b32 v1, 1, v0")
    e("v_and_b32 v14, 1, v0")
    e("v_lshlrev_b32 v15, 5, v0")
    e("s_lshl_b32 s4, s39, 7")
    e("v_lshl_add_u32 v96, v1, 2, s4")
    e("v_lshlrev_b32 v97, 1, v96")
    e("v_lshlrev_b32 v98, 13, v96")
    e("v_lshl_add_u32 v98, v14, 4, v98")
    e("s_lshl_b32 s5, s34, 10")
    e("s_lshl_b32 s6, s35, 5")
    e("s_add_u32 s5, s5, s6")
    e("s_add_u32 s6, s5, 0x2000")
    e("s_add_u32 s7, s5, 0x4000")
    e("s_add_u32 s93, s5, 0x6000")
    e("s_movk_i32 s94, 3584")
    e("v_mul_u32_u24 v99, s94, v96")
    e("v_lshl_add_u32 v99, v14, 4, v99")
    e("s_mul_i32 s95, s34, 14")
    e("s_add_u32 s95, s95, s35")
    e("s_lshl_b32 s96, s95, 5")
    e("s_add_u32 s97, s96, 7168")
    e("v_and_b32 v100, 3, v0")
    e("v_lshlrev_b32 v100, 3, v100")
    e("v_mov_b32 v101, 0")
    e(f"ds_write_b32 v100, v101 offset:{L_CNT}")
    e(f"ds_write_b32 v100, v101 offset:{L_CNT+4}")
    e("s_waitcnt lgkmcnt(0)")
    e(f"buffer_load_dwordx4 v[2:5], v15, {srd(X)}, 0 offen")
    e(f"buffer_load_dwordx4 v[6:9], v15, {srd(X)}, 0 offen offset:16")
    e(f"buffer_load_dwordx2 v[10:11], v97, {srd(X)}, 0 offen")
    e(f"buffer_load_dwordx2 v[12:13], v97, {srd(X)}, 0 offen offset:1024")
    for i, so in enumerate(("s5", "s6", "s7", "s93")):
        e(f"buffer_load_dwordx4 v[{16+4*i}:{19+4*i}], v98, {srd(WQ)}, {so} offen {qpol}")
    e(f"s_load_dword s38, s[{WS}:{WS+1}], 4")
    e("s_barrier")
    stamp(0)
    for i in range(4):
        so = "s96" if i < 2 else "s97"
        e(f"buffer_load_dwordx4 v[{104+4*i}:{107+4*i}], v99, {srd(W1)}, {so} offen offset:{3584*(i&1)} {w1pol}")
    e(f"buffer_load_dwordx2 v[102:103], v100, {srd(B1)}, s96 offen")
    e("s_mov_b32 s76, 0x05040100")
    e("s_mov_b32 s77, 0x07060302")

    def unpack(dst, src):
        e(f"v_lshlrev_b32 v{dst}, 16, v{src}")
        e(f"v_and_b32 v{dst+1}, 0xffff0000, v{src}")

    def half_sum(r, t):
        for s in (8, 4, 2, 1):
            e(f"v_add_f32_dpp v{r}, v{r}, v{r} row_ror:{s} {DPPM}")
        e(f"v_mov_b32 v{t}, v{r}")
        e(f"v_permlane16_swap_b32 v{r}, v{t}")
        e(f"v_add_f32 v{r}, v{r}, v{t}")

    def tree16(dst, src, tmp):
        for k in range(4):
            e(f"v_pk_add_f32 v[{tmp+2*k}:{tmp+2*k+1}], v[{src+4*k}:{src+4*k+1}], v[{src+4*k+2}:{src+4*k+3}]")
        e(f"v_pk_add_f32 v[{tmp}:{tmp+1}], v[{tmp}:{tmp+1}], v[{tmp+2}:{tmp+3}]")
        e(f"v_pk_add_f32 v[{tmp+4}:{tmp+5}], v[{tmp+4}:{tmp+5}], v[{tmp+6}:{tmp+7}]")
        e(f"v_pk_add_f32 v[{tmp}:{tmp+1}], v[{tmp}:{tmp+1}], v[{tmp+4}:{tmp+5}]")
        e(f"v_add_f32 v{dst}, v{tmp}, v{tmp+1}")

    def bfr(r, t=None):
        e(f"v_cvt_pk_bf16_f32 v{r}, v{r}, v{r}")
        e(f"v_and_b32 v{r}, 0xffff0000, v{r}")

    def ln_stats(XF, MEAN, RS, TMP):
        tree16(MEAN, XF, TMP)
        half_sum(MEAN, TMP)
        e(f"v_mul_f32 v{MEAN}, {hx(f2u(1/512))}, v{MEAN}")
        D = TMP + 8
        e(f"v_mov_b32 v{TMP+1}, v{MEAN}")
        e(f"v_mov_b32 v{TMP}, v{MEAN}")
        for k in range(8):
            e(f"v_pk_add_f32 v[{D+2*k}:{D+2*k+1}], v[{XF+2*k}:{XF+2*k+1}], v[{TMP}:{TMP+1}] neg_lo:[0,1] neg_hi:[0,1]")
        for k in range(8):
            e(f"v_pk_mul_f32 v[{D+2*k}:{D+2*k+1}], v[{D+2*k}:{D+2*k+1}], v[{D+2*k}:{D+2*k+1}]")
        tree16(RS, D, TMP)
        half_sum(RS, TMP)
        e(f"v_mul_f32 v{RS}, {hx(f2u(1/512))}, v{RS}")
        bfr(MEAN)
        bfr(RS)
        e(f"v_add_f32 v{RS}, {hx(f2u(1e-5))}, v{RS}")
        bfr(RS)
        e(f"v_sqrt_f32 v{RS}, v{RS}")
        bfr(RS)
        e(f"v_rcp_f32 v{RS}, v{RS}")

    def norm_pair(r, m, rs, pk):
        e(f"v_subrev_f32 v{r}, {m}, v{r}")
        e(f"v_subrev_f32 v{r+1}, {m}, v{r+1}")
        e(f"v_cvt_pk_bf16_f32 v{pk}, v{r}, v{r+1}")
        unpack(r, pk)
        e(f"v_mul_f32 v{r}, {rs}, v{r}")
        e(f"v_mul_f32 v{r+1}, {rs}, v{r+1}")
        e(f"v_cvt_pk_bf16_f32 v{pk}, v{r}, v{r+1}")

    def slices_norm(MEAN, RS, keep):
        e(f"v_readlane_b32 s98, v{MEAN}, 0")
        e(f"v_readlane_b32 s99, v{MEAN}, 32")
        e(f"v_readlane_b32 s100, v{RS}, 0")
        e(f"v_readlane_b32 s101, v{RS}, 32")
        for bb in range(2):
            for p in range(2):
                norm_pair(48 + 4 * bb + 2 * p, f"s{98+bb}", f"s{100+bb}", 56 + 2 * bb + p)
        if keep:
            for bb in range(2):
                for p in range(2):
                    unpack(48 + 4 * bb + 2 * p, 56 + 2 * bb + p)

    def wperm(dst, r0, r1):
        for c in range(8):
            sel = "s76" if (c & 1) == 0 else "s77"
            e(f"v_perm_b32 v{dst+c}, v{r1+(c>>1)}, v{r0+(c>>1)}, {sel}")

    ACC = 80
    def dots(wp, x0, x1, first):
        for bb, xr in ((0, x0), (1, x1)):
            for c in range(8):
                d = ACC + 8 * bb + c
                if first:
                    e(f"v_dot2_f32_bf16 v{d}, v{wp+c}, v{xr}, 0")
                else:
                    e(f"v_dot2c_f32_bf16 v{d}, v{wp+c}, v{xr}")

    def reduce_publish(area, cnt, addr_reg, lab):
        for k in range(8):
            e(f"v_permlane32_swap_b32 v{ACC+k}, v{ACC+8+k}")
        for k in range(4):
            e(f"v_pk_add_f32 v[{ACC+2*k}:{ACC+2*k+1}], v[{ACC+2*k}:{ACC+2*k+1}], v[{ACC+8+2*k}:{ACC+9+2*k}]")
        for k in range(4):
            e(f"v_permlane16_swap_b32 v{ACC+k}, v{ACC+4+k}")
        for k in range(2):
            e(f"v_pk_add_f32 v[{ACC+2*k}:{ACC+2*k+1}], v[{ACC+2*k}:{ACC+2*k+1}], v[{ACC+4+2*k}:{ACC+5+2*k}]")
        for s in (8, 4, 2):
            for k in range(4):
                e(f"v_add_f32_dpp v{ACC+k}, v{ACC+k}, v{ACC+k} row_ror:{s} {DPPM}")
        e("s_mov_b32 exec_lo, 0x00030003")
        e("s_mov_b32 exec_hi, 0x00030003")
        e(f"ds_write_b128 v{addr_reg}, v[{ACC}:{ACC+3}] offset:{area}")
        e("s_mov_b64 exec, 1")
        e(f"ds_add_rtn_u32 v64, v101, v121 offset:{cnt}")
        e("s_waitcnt lgkmcnt(0)")
        e("v_readfirstlane_b32 s4, v64")
        e("s_mov_b64 exec, -1")
        e("s_cmp_lg_u32 s4, 3")
        e(f"s_cbranch_scc1 {lab}")
        e("s_mov_b64 exec, 0xff")
        for w in range(4):
            e(f"ds_read_b128 v[{64+4*w}:{67+4*w}], v122 offset:{area+128*w}")
        e("s_waitcnt lgkmcnt(0)")
        for k in range(2):
            e(f"v_pk_add_f32 v[{64+2*k}:{65+2*k}], v[{64+2*k}:{65+2*k}], v[{68+2*k}:{69+2*k}]")
            e(f"v_pk_add_f32 v[{72+2*k}:{73+2*k}], v[{72+2*k}:{73+2*k}], v[{76+2*k}:{77+2*k}]")
        for k in range(2):
            e(f"v_pk_add_f32 v[{64+2*k}:{65+2*k}], v[{64+2*k}:{65+2*k}], v[{72+2*k}:{73+2*k}]")

    def poll(loads, lab, sleep):
        n = len(loads)
        P = [78 + 2 * i for i in range(n)]
        assert P[-1] + 1 <= 91 or n <= 7
        for p in P:
            e(f"s_mov_b64 s[{p}:{p+1}], -1")
        e(f"s_mov_b32 s92, {spin}")
        e(f"{lab}_top:")
        for i, (txt, tags) in enumerate(loads):
            e(f"s_mov_b64 exec, s[{P[i]}:{P[i]+1}]")
            e(f"s_cbranch_execz {lab}_s{i}")
            e(txt)
            e(f"{lab}_s{i}:")
        e("s_waitcnt vmcnt(0)")
        for i, (txt, tags) in enumerate(loads):
            e(f"s_mov_b64 exec, s[{P[i]}:{P[i]+1}]")
            e(f"v_cmp_ne_u32_e64 s[{P[i]}:{P[i]+1}], v{tags[0]}, s38")
            for tg in tags[1:]:
                e(f"v_cmp_ne_u32_e64 vcc, v{tg}, s38")
                e(f"s_or_b64 s[{P[i]}:{P[i]+1}], s[{P[i]}:{P[i]+1}], vcc")
        e("s_mov_b64 exec, -1")
        e(f"s_mov_b64 s[4:5], s[{P[0]}:{P[0]+1}]")
        for p in P[1:]:
            e(f"s_or_b64 s[4:5], s[4:5], s[{p}:{p+1}]")
        e("s_cmp_eq_u64 s[4:5], 0")
        e(f"s_cbranch_scc1 {lab}_done")
        if sleep:
            e(f"s_sleep {sleep}")
        e("s_sub_u32 s92, s92, 1")
        e("s_cmp_lg_u32 s92, 0")
        e(f"s_cbranch_scc1 {lab}_top")
        e(f"{lab}_done:")

    e("v_mov_b32 v121, 1")
    e("v_lshrrev_b32 v120, 4, v0")
    e("v_lshrrev_b32 v123, 1, v120")
    e("v_and_b32 v120, 1, v120")
    e("v_lshlrev_b32 v120, 4, v120")
    e("v_lshl_add_u32 v120, v14, 5, v120")
    e("s_lshl_b32 s4, s39, 7")
    e("v_add_u32 v120, s4, v120")
    e("v_xor_b32 v124, v123, v14")
    e("v_lshl_add_u32 v124, v124, 6, v120")
    e("v_lshl_add_u32 v120, v123, 6, v120")
    e("v_lshlrev_b32 v122, 4, v0")
    e("v_lshrrev_b32 v125, 2, v0")
    e("v_and_b32 v126, 3, v0")
    e("v_lshlrev_b32 v126, 4, v126")

    XF = 32
    e("s_waitcnt vmcnt(11) lgkmcnt(0)")
    e("s_mul_i32 s38, s38, 0x9E3779B1")
    e("s_add_u32 s38, s38, 0x7F4A7C15")
    for k in range(8):
        unpack(XF + 2 * k, 2 + k)
    ln_stats(XF, 60, 61, 64)
    e("s_waitcnt vmcnt(9)")
    for k in range(4):
        unpack(48 + 2 * k, 10 + k)
    slices_norm(60, 61, True)
    e("s_waitcnt vmcnt(5)")
    stamp(1)
    wperm(64, 16, 20)
    wperm(72, 24, 28)
    dots(64, 56, 58, True)
    dots(72, 57, 59, False)
    reduce_publish(L_P1, L_CNT, 120, "L_h1_skip")
    e("v_cvt_pk_bf16_f32 v64, v64, v65")
    e("v_cvt_pk_bf16_f32 v66, v66, v67")
    e("v_mov_b32 v65, s38")
    e("v_mov_b32 v67, s38")
    e("v_lshl_add_u32 v68, v125, 11, v126")
    e("s_lshl_b32 s4, s34, 12")
    e("s_lshl_b32 s5, s35, 6")
    e("s_add_u32 s4, s4, s5")
    e(f"s_add_u32 s4, s4, {QG}")
    e(f"buffer_store_dwordx4 v[64:67], v68, {srd(WS)}, s4 offen sc1")
    e("s_mov_b64 exec, -1")
    e("L_h1_skip:")
    stamp(2)
    e("s_cmp_lg_u32 s39, 0")
    e("s_cbranch_scc1 L_qpoll_done2")
    if 'p' in skip:
        e("s_branch L_qpoll_done2")
    e("s_lshl_b32 s93, s34, 12")
    e("s_lshl_b32 s5, s36, 11")
    e("s_add_u32 s93, s93, s5")
    e(f"s_add_u32 s93, s93, {QG}")
    poll([(f"buffer_load_dwordx4 v[64:67], v122, {srd(WS)}, s93 offen sc1", (65, 67)),
          (f"buffer_load_dwordx4 v[68:71], v122, {srd(WS)}, s93 offen offset:1024 sc1", (69, 71))], "L_qpoll", qsleep)
    e("v_lshlrev_b32 v72, 3, v0")
    e(f"v_add_u32 v72, {L_Q}, v72")
    e("ds_write2_b32 v72, v64, v66 offset0:0 offset1:1")
    e("ds_write2_b32 v72, v68, v70 offset0:128 offset1:129")
    e("s_waitcnt lgkmcnt(0)")
    e("L_qpoll_done2:")
    stamp(3)
    e("s_barrier")
    e("s_waitcnt vmcnt(0)")

    e("s_lshr_b32 s93, s35, 3")
    e("s_bfe_u32 s94, s35, 0x10002")
    e("s_and_b32 s96, s35, 3")
    e("s_cmp_lg_u32 s39, 3")
    e("s_cbranch_scc1 L_h4a_skip")
    e("s_lshl_b32 s4, s34, 2")
    e("s_add_u32 s4, s4, s93")
    e("s_lshl_b32 s4, s4, 1")
    e("s_add_u32 s4, s4, s94")
    e("s_lshl_b32 s4, s4, 16")
    e("s_lshl_b32 s5, s96, 8")
    e("s_add_u32 s4, s4, s5")
    e("v_lshrrev_b32 v64, 4, v0")
    e("v_lshlrev_b32 v64, 13, v64")
    e("v_and_b32 v65, 15, v0")
    e("v_lshl_add_u32 v64, v65, 4, v64")
    for s in range(2):
        for h in range(2):
            if s or h:
                e(f"s_add_u32 s5, s4, {s*32768+h*4096}")
            so = "s5" if (s or h) else "s4"
            for i4 in range(4):
                r = 128 + 4 * (8 * s + 4 * h + i4)
                e(f"buffer_load_dwordx4 v[{r}:{r+3}], v64, {srd(WO)}, {so} offen offset:{1024*i4} {opol}")
    e("L_h4a_skip:")

    e("s_cmp_ge_u32 s35, 14")
    e("s_cbranch_scc1 L_h2_skip")
    for k in range(8):
        norm_pair(XF + 2 * k, "v60", "v61", 62)
        unpack(XF + 2 * k, 62)
    ln_stats(XF, 60, 61, 64)
    slices_norm(60, 61, False)
    wperm(64, 104, 108)
    wperm(72, 112, 116)
    dots(64, 56, 58, True)
    dots(72, 57, 59, False)
    reduce_publish(L_P2, L_CNT + 4, 120, "L_h2_skip")
    e("v_cvt_pk_bf16_f32 v68, v64, v65")
    e("v_cvt_pk_bf16_f32 v69, v66, v67")
    unpack(64, 68); unpack(66, 69)
    unpack(68, 102); unpack(70, 103)
    e("v_pk_add_f32 v[64:65], v[64:65], v[68:69]")
    e("v_pk_add_f32 v[66:67], v[66:67], v[70:71]")
    e("v_cvt_pk_bf16_f32 v68, v64, v65")
    e("v_cvt_pk_bf16_f32 v69, v66, v67")
    unpack(64, 68); unpack(66, 69)
    k1 = -2.0 * math.sqrt(2.0 / math.pi) * math.log2(math.e)
    e(f"s_mov_b32 s4, {hx(f2u(k1*0.044715))}")
    e(f"v_mov_b32 v72, {hx(f2u(k1))}")
    for k in range(4):
        e(f"v_mul_f32 v{68+k}, v{64+k}, v{64+k}")
    for k in range(4):
        e(f"v_fma_f32 v{68+k}, v{68+k}, s4, v72")
    for k in range(4):
        e(f"v_mul_f32 v{68+k}, v{68+k}, v{64+k}")
    for k in range(4):
        e(f"v_exp_f32 v{68+k}, v{68+k}")
    for k in range(4):
        e(f"v_add_f32 v{68+k}, 1.0, v{68+k}")
    for k in range(4):
        e(f"v_rcp_f32 v{68+k}, v{68+k}")
    for k in range(4):
        e(f"v_mul_f32 v{64+k}, v{64+k}, v{68+k}")
    e("v_cvt_pk_bf16_f32 v64, v64, v65")
    e("v_cvt_pk_bf16_f32 v66, v66, v67")
    e("v_mov_b32 v65, s38")
    e("v_mov_b32 v67, s38")
    e("s_movk_i32 s4, 7168")
    e("v_mad_u32_u24 v68, v125, s4, v126")
    e("s_lshl_b32 s4, s95, 6")
    e(f"s_add_u32 s4, s4, {HG}")
    e(f"buffer_store_dwordx4 v[64:67], v68, {srd(WS)}, s4 offen sc1")
    e("s_mov_b64 exec, -1")
    e("L_h2_skip:")

    e("s_cmp_lg_u32 s39, 3")
    e("s_cbranch_scc1 L_h4b_skip")
    e("s_waitcnt vmcnt(0)")
    for s in range(2):
        for jj in range(8):
            sel = "s76" if (jj & 1) == 0 else "s77"
            for q in range(4):
                r0 = 128 + 4 * (8 * s + 2 * q) + (jj >> 1)
                e(f"v_perm_b32 v{192+4*(8*s+jj)+q}, v{r0+4}, v{r0}, {sel}")
    e("L_h4b_skip:")

    e("s_lshl_b32 s95, s34, 2")
    e("s_add_u32 s95, s95, s35")
    e("s_cmp_ge_u32 s2, 32")
    e("s_cbranch_scc1 L_h3_skip")
    if 'g' in skip:
        e("v_mov_b32 v119, 0")
        e("v_mov_b32 v118, 0")
        e("s_branch L_h3_skip")
    e("s_mul_i32 s4, s39, 448")
    e("v_lshl_add_u32 v64, v1, 1, s4")
    e("v_lshlrev_b32 v65, 10, v64")
    e("v_lshl_add_u32 v65, v14, 4, v65")
    e("s_lshl_b32 s4, s95, 5")
    for i in range(7):
        for ee in range(2):
            r = 128 + 4 * (2 * i + ee)
            e(f"buffer_load_dwordx4 v[{r}:{r+3}], v65, {srd(W2)}, s4 offen offset:{1024*ee} {w2pol}")
        if i < 6:
            e("s_add_u32 s4, s4, 0x10000")
    e("s_lshl_b32 s4, s95, 5")
    e(f"buffer_load_dwordx2 v[102:103], v100, {srd(B2)}, s4 offen")
    e("v_bfe_u32 v66, v0, 1, 3")
    e("v_bfe_u32 v67, v0, 4, 1")
    e("v_lshl_add_u32 v66, v67, 3, v66")
    e("v_lshlrev_b32 v118, 2, v66")
    e("v_lshl_add_u32 v118, v14, 6, v118")
    e("v_lshlrev_b32 v119, 1, v66")
    e("v_lshl_add_u32 v119, v14, 10, v119")
    e("v_add_u32 v119, s4, v119")
    e(f"buffer_load_ushort v117, v119, {srd(X)}, 0 offen")
    e("s_movk_i32 s4, 7168")
    e("v_mul_u32_u24 v66, s4, v14")
    e("v_lshl_add_u32 v66, v64, 2, v66")
    e(f"s_mov_b32 s97, {HG}")
    poll([(f"buffer_load_dwordx2 v[{16+2*i}:{17+2*i}], v66, {srd(WS)}, s97 offen offset:{256*i} sc1", (17 + 2 * i,)) for i in range(7)],
         "L_hpoll", 8)
    for i in range(7):
        e(f"v_mov_b32_dpp v{17+2*i}, v{16+2*i} quad_perm:[1,0,3,2] {DPPM}")
    for i in range(7):
        wp = 64 + 8 * (i & 1)
        wperm(wp, 128 + 8 * i, 132 + 8 * i)
        dots(wp, 16 + 2 * i, 17 + 2 * i, i == 0)
    reduce_publish(L_P3, L_CNT + 8, 124, "L_h3_skip")
    e("v_cvt_pk_bf16_f32 v68, v64, v65")
    e("v_cvt_pk_bf16_f32 v69, v66, v67")
    unpack(64, 68); unpack(66, 69)
    unpack(68, 102); unpack(70, 103)
    e("v_pk_add_f32 v[64:65], v[64:65], v[68:69]")
    e("v_pk_add_f32 v[66:67], v[66:67], v[70:71]")
    e("v_cvt_pk_bf16_f32 v68, v64, v65")
    e("v_cvt_pk_bf16_f32 v69, v66, v67")
    unpack(64, 68); unpack(66, 69)
    for k in range(4):
        e(f"v_mul_f32 v{68+k}, {hx(f2u(-math.log2(math.e)))}, v{64+k}")
    for k in range(4):
        e(f"v_exp_f32 v{68+k}, v{68+k}")
    for k in range(4):
        e(f"v_add_f32 v{68+k}, 1.0, v{68+k}")
    for k in range(4):
        e(f"v_rcp_f32 v{68+k}, v{68+k}")
    for k in range(4):
        e(f"v_mul_f32 v{64+k}, v{64+k}, v{68+k}")
    e("v_cvt_pk_bf16_f32 v68, v64, v65")
    e("v_cvt_pk_bf16_f32 v69, v66, v67")
    unpack(64, 68); unpack(66, 69)
    e(f"ds_write_b128 v122, v[64:67] offset:{L_G}")
    e("s_mov_b64 exec, -1")
    e("L_h3_skip:")

    e("v_and_b32 v2, 3, v0")
    e("v_lshlrev_b32 v2, 9, v2")
    e("v_lshrrev_b32 v3, 4, v0")
    e("v_lshl_add_u32 v2, v3, 4, v2")
    e("v_bfe_u32 v3, v0, 2, 2")
    e("v_lshl_add_u32 v2, v3, 2, v2")
    e("s_lshl_b32 s4, s39, 6")
    e("v_add_u32 v2, s4, v2")
    e("s_lshl_b32 s4, s39, 4")
    e("v_mov_b32 v3, s4")
    e("s_lshl_b32 s4, s34, 1")
    e("s_add_u32 s4, s4, s36")
    e("s_lshl_b32 s4, s4, 4")
    e("s_add_u32 s4, s4, s37")
    e("s_lshl_b32 s4, s4, 2")
    e("s_add_u32 s4, s4, s39")
    e("s_lshl_b32 s4, s4, 10")
    e(f"s_add_u32 s88, s4, {PG}")
    e("s_lshl_b32 s4, s34, 2")
    e("s_add_u32 s4, s4, s39")
    e("s_lshl_b32 s4, s4, 1")
    e("s_add_u32 s4, s4, s36")
    e("s_lshl_b32 s4, s4, 4")
    e("s_add_u32 s4, s4, s37")
    e("s_lshl_b32 s4, s4, 4")
    e(f"s_add_u32 s89, s4, {MLG}")
    e("s_lshr_b32 s5, s39, 1")
    e("s_and_b32 s6, s39, 1")
    e("s_lshl_b32 s6, s6, 3")
    e("s_lshl_b32 s4, s34, 1")
    e("s_add_u32 s4, s4, s5")
    e("s_lshl_b32 s4, s4, 4")
    e("s_add_u32 s4, s4, s6")
    e("s_lshl_b32 s4, s4, 2")
    e("s_add_u32 s4, s4, s93")
    e("s_lshl_b32 s4, s4, 1")
    e("s_add_u32 s4, s4, s94")
    e("s_lshl_b32 s4, s4, 9")
    e(f"s_add_u32 s98, s4, {PG}")
    e("s_add_u32 s99, s98, 0x2000")
    e("s_add_u32 s100, s98, 0x4000")
    e("s_add_u32 s101, s98, 0x6000")
    e("s_lshl_b32 s4, s34, 2")
    e("s_add_u32 s4, s4, s93")
    e("s_lshl_b32 s7, s4, 1")
    e("s_add_u32 s90, s7, s94")
    e("s_add_u32 s4, s7, s5")
    e("s_lshl_b32 s4, s4, 8")
    e(f"s_add_u32 s97, s4, {MLG}")
    e("v_lshrrev_b32 v6, 5, v0")
    e("v_and_b32 v7, 31, v0")
    e("v_lshlrev_b32 v4, 4, v7")
    e("v_lshl_add_u32 v4, v6, 12, v4")
    e("v_and_b32 v8, 15, v0")
    e("v_add3_u32 v5, v8, v6, s6")
    e("v_and_b32 v5, 15, v5")
    e("v_lshlrev_b32 v5, 4, v5")
    e("v_lshl_add_u32 v6, v7, 1, v6")
    e("v_lshlrev_b32 v6, 2, v6")
    e("s_lshl_b32 s4, s39, 8")
    e("v_add_u32 v6, s4, v6")
    e("v_lshrrev_b32 v9, 4, v0")
    e("v_lshlrev_b32 v7, 5, v9")
    e("v_lshl_add_u32 v7, v14, 9, v7")
    e("v_lshlrev_b32 v10, 15, v9")
    e("v_lshl_add_u32 v10, v8, 4, v10")
    e("s_lshl_b32 s4, s96, 17")
    e("s_lshl_b32 s90, s90, 8")
    e("s_add_u32 s90, s90, s4")
    e(f"s_add_u32 s90, s90, {SG}")
    e("s_add_u32 s91, s90, 0x4000")
    e("v_lshrrev_b32 v11, 5, v0")
    e("v_lshl_add_u32 v11, v11, 4, v8")
    e("v_lshlrev_b32 v11, 2, v11")
    e("s_lshl_b32 s4, s39, 7")
    e("v_add_u32 v11, s4, v11")
    e("v_mov_b32 v41, s38")
    e("v_mov_b32 v43, s38")
    e("v_mov_b32 v45, s38")
    e("v_mov_b32 v47, s38")
    e("s_waitcnt lgkmcnt(0)")
    stamp(4)
    e("s_barrier")
    e(f"ds_read_b128 v[16:19], v3 offset:{L_MC}")
    e(f"ds_read_b128 v[20:23], v3 offset:{L_L}")
    for sw in range(4):
        e(f"ds_read2st64_b32 v[{24+2*sw}:{25+2*sw}], v2 offset0:{8*sw} offset1:{8*sw+1}")
    e("s_waitcnt lgkmcnt(0)")
    e("v_max3_f32 v44, v16, v17, v18")
    e("v_max_f32 v44, v44, v19")
    for k in range(4):
        e(f"v_sub_f32 v{16+k}, v{16+k}, v44")
    for k in range(4):
        e(f"v_exp_f32 v{16+k}, v{16+k}")
    e("v_mul_f32 v40, v16, v24")
    e("v_mul_f32 v42, v16, v25")
    e("v_mul_f32 v46, v16, v20")
    for k in range(1, 4):
        e(f"v_fmac_f32 v40, v{16+k}, v{24+2*k}")
        e(f"v_fmac_f32 v42, v{16+k}, v{25+2*k}")
        e(f"v_fmac_f32 v46, v{16+k}, v{20+k}")
    e(f"buffer_store_dwordx4 v[40:43], v122, {srd(WS)}, s88 offen sc1")
    e("s_mov_b64 exec, 1")
    e(f"buffer_store_dwordx4 v[44:47], v101, {srd(WS)}, s89 offen sc1")
    e("s_mov_b64 exec, -1")
    stamp(5)
    poll([(f"buffer_load_dwordx4 v[16:19], v5, {srd(WS)}, s97 offen sc1", (17, 19))] +
         [(f"buffer_load_dwordx4 v[{20+4*i}:{23+4*i}], v4, {srd(WS)}, s{98+i} offen sc1", (21 + 4 * i, 23 + 4 * i)) for i in range(4)],
         "L_ppoll", tsleep)
    e("v_mov_b32 v17, v16")
    for s in (8, 4, 2, 1):
        e(f"v_max_f32_dpp v17, v17, v17 row_ror:{s} {DPPM}")
    e("v_sub_f32 v16, v16, v17")
    e("v_exp_f32 v16, v16")
    e("v_mul_f32 v18, v16, v18")
    for s in (8, 4, 2, 1):
        e(f"v_add_f32_dpp v18, v18, v18 row_ror:{s} {DPPM}")
    e("v_rcp_f32 v18, v18")
    e("v_mul_f32 v16, v16, v18")
    e(f"v_mul_f32_dpp v36, v16, v20 row_newbcast:0 {DPPM}")
    e(f"v_mul_f32_dpp v37, v16, v22 row_newbcast:0 {DPPM}")
    for i in range(1, 4):
        e(f"v_fmac_f32_dpp v36, v16, v{20+4*i} row_newbcast:{2*i} {DPPM}")
        e(f"v_fmac_f32_dpp v37, v16, v{22+4*i} row_newbcast:{2*i} {DPPM}")
    e("v_permlane32_swap_b32 v36, v37")
    e("v_add_f32 v36, v36, v37")
    e(f"ds_write_b32 v6, v36 offset:{L_OP}")
    e("s_waitcnt lgkmcnt(0)")
    stamp(6)
    e("s_barrier")
    e("s_cmp_lg_u32 s39, 3")
    e("s_cbranch_scc1 L_h6_skip")
    for s in range(2):
        for w in range(2):
            for c in range(2):
                r = 48 + 16 * s + 8 * w + 4 * c
                e(f"ds_read_b128 v[{r}:{r+3}], v7 offset:{L_OP+128*s+256*w+16*c}")
    e("s_mov_b32 s78, 0xcccccccc")
    e("s_mov_b32 s79, 0xcccccccc")
    e("s_mov_b32 s80, 0xf0f0f0f0")
    e("s_mov_b32 s81, 0xf0f0f0f0")
    e("s_mov_b32 s82, 0xff00ff00")
    e("s_mov_b32 s83, 0xff00ff00")
    e("s_waitcnt lgkmcnt(0)")
    for s in range(2):
        for k in range(4):
            r = 48 + 16 * s + 2 * k
            e(f"v_pk_add_f32 v[{r}:{r+1}], v[{r}:{r+1}], v[{r+8}:{r+9}]")
    for s in range(2):
        for k in range(4):
            r = 48 + 16 * s + 2 * k
            e(f"v_cvt_pk_bf16_f32 v{16+4*s+k}, v{r}, v{r+1}")
    for s in range(2):
        for jj in range(8):
            d = 128 + 4 * jj
            c = "0" if s == 0 else f"v[{d}:{d+3}]"
            w = 192 + 4 * (8 * s + jj)
            e(f"v_mfma_f32_16x16x32_bf16 v[{d}:{d+3}], v[{w}:{w+3}], v[{16+4*s}:{19+4*s}], {c}")
    for k in range(4):
        for r in range(4):
            e(f"v_cndmask_b32_e64 v{160+4*k+r}, v{128+8*k+r}, v{132+8*k+r}, s[78:79]")
    for k in range(2):
        for r in range(4):
            e(f"v_cndmask_b32_e64 v{176+4*k+r}, v{160+8*k+r}, v{164+8*k+r}, s[80:81]")
    for r in range(4):
        e(f"v_cndmask_b32_e64 v{40+2*r}, v{176+r}, v{180+r}, s[82:83]")
    e(f"buffer_store_dwordx4 v[40:43], v10, {srd(WS)}, s90 offen sc1")
    e(f"buffer_store_dwordx4 v[44:47], v10, {srd(WS)}, s91 offen sc1")
    e("L_h6_skip:")
    e("s_cmp_ge_u32 s2, 32")
    e("s_cbranch_scc1 L_h_exit")
    e("s_lshl_b32 s97, s95, 14")
    e("s_lshl_b32 s4, s39, 12")
    e("s_add_u32 s97, s97, s4")
    e(f"s_add_u32 s97, s97, {SG}")
    poll([(f"buffer_load_dwordx4 v[{20+4*i}:{23+4*i}], v122, {srd(WS)}, s97 offen offset:{1024*i} sc1", (21 + 4 * i, 23 + 4 * i)) for i in range(4)],
         "L_spoll", tsleep)
    e("v_add_f32 v20, v20, v24")
    e("v_add_f32 v22, v22, v26")
    e("v_add_f32 v28, v28, v32")
    e("v_add_f32 v30, v30, v34")
    e("v_add_f32 v20, v20, v28")
    e("v_add_f32 v22, v22, v30")
    e("v_permlane32_swap_b32 v20, v22")
    e("v_add_f32 v20, v20, v22")
    e("v_mov_b32 v22, v20")
    e("v_permlane16_swap_b32 v20, v22")
    e("v_add_f32 v20, v20, v22")
    e(f"ds_write_b32 v11, v20 offset:{L_SP}")
    e("s_waitcnt lgkmcnt(0)")
    e("s_barrier")
    e("s_cmp_lg_u32 s39, 0")
    e("s_cbranch_scc1 L_h_exit")
    e("s_mov_b32 exec_hi, 0")
    e("v_lshlrev_b32 v16, 2, v0")
    e(f"v_add_u32 v16, {L_SP}, v16")
    e("ds_read2_b32 v[20:21], v16 offset0:0 offset1:32")
    e("ds_read2_b32 v[22:23], v16 offset0:64 offset1:96")
    e(f"ds_read_b32 v24, v118 offset:{L_G}")
    e("v_lshlrev_b32 v117, 16, v117")
    e("s_waitcnt lgkmcnt(0)")
    e("v_pk_add_f32 v[20:21], v[20:21], v[22:23]")
    e("v_add_f32 v20, v20, v21")
    bfr(20)
    e("v_mul_f32 v20, v20, v24")
    bfr(20)
    e("v_add_f32 v20, v20, v117")
    e("v_cvt_pk_bf16_f32 v20, v20, v20")
    e(f"buffer_store_short v20, v119, {srd(OUT)}, 0 offen")
    e("s_cmp_lg_u32 s2, 0")
    e("s_cbranch_scc1 L_h_exit")
    e("s_mov_b64 exec, 1")
    e(f"buffer_store_dword v41, v101, {srd(WS)}, 0 offen offset:4")
    e("L_h_exit:")
    stamp(7)
    prof_out(True)
    e("L_end:")
    e("s_endpgm")

    n = a.fix_hazards()
    head = open("recurrent_scan__gqa_block_cached__mixer_channel_mlp__decode.s.ref").read().split("\n")
    hdr = [ln for ln in head if ln.startswith(";") and "@launch" not in ln and not ln.startswith(";;")]
    lead = []
    for ln in head:
        if not ln.startswith(";"):
            break
        if "@launch" in ln and ln.startswith("; @launch"):
            lead.append(f"; @launch grid=(256,1,1) block=(512,1,1) lds={LDS_SIZE}")
        else:
            lead.append(ln)
    out = "\n".join(lead) + "\n"
    out += '.amdgcn_target "amdgcn-amd-amdhsa--gfx950"\n.text\n'
    out += f".globl {NAME}\n.p2align 8\n.type {NAME},@function\n"
    out += a.text()
    out += '.section .rodata,"a"\n.p2align 6\n'
    out += f".amdhsa_kernel {NAME}\n"
    out += "  .amdhsa_next_free_vgpr 256\n  .amdhsa_next_free_sgpr 102\n  .amdhsa_accum_offset 256\n"
    out += "  .amdhsa_group_segment_fixed_size 0\n  .amdhsa_kernarg_size 104\n  .amdhsa_user_sgpr_count 2\n"
    out += "  .amdhsa_user_sgpr_kernarg_segment_ptr 1\n  .amdhsa_system_sgpr_workgroup_id_x 1\n.end_amdhsa_kernel\n"
    return out, n

if __name__ == "__main__":
    kw = eval("dict(" + (sys.argv[2] if len(sys.argv) > 2 else "") + ")")
    txt, n = gen(**kw)
    path = sys.argv[1] if len(sys.argv) > 1 else "recurrent_scan__gqa_block_cached__mixer_channel_mlp__decode.s"
    open(path, "w").write(txt)
    print("wrote", path, "nops inserted:", n, "bytes:", len(txt))
```

```python
import sys, struct, math
sys.path.insert(0, "dev")
from asmlib import Asm

NAME = "recurrent_scan__gqa_block_cached__mixer_channel_mlp__decode_kernel"

def f2u(x):
    return struct.unpack("<I", struct.pack("<f", x))[0]
def hx(x):
    return f"0x{x & 0xffffffff:08x}"

QG, HG, MG, PG, MLG, SG, PROFB = 0x1000, 0x10000, 0x18000, 0x20000, 0x120000, 0x130000, 0x200000
WS_SIZE = 0x300000
L_ACC, L_WO, L_MC, L_L, L_CNT, L_Q = 0x0000, 0x4000, 0x8000, 0x8080, 0x8100, 0x8200
L_P, L_G, L_X, L_OP, L_SP = 0x8600, 0x8E00, 0x8E80, 0x8F00, 0x9300
LDS_SIZE = 0x9500
NWAVE = 8

C_SC = (128 ** -0.5) * math.log2(math.e)
DPPM = "row_mask:0xf bank_mask:0xf"

def gen(prof=False, spin=1 << 16, W=8, G=4, NH=62, qsleep=2, tsleep=1, gsleep=16, kpol='nt', vpol='nt', trace=False,
        wpol='', opol='', PW=None, E=8, hprio=0):
    NL = 128 - NH
    PW = PW or W
    a = Asm()
    e = a.e

    OFF = [24, 25, 26]; REM, VP, LIM, CL, LIME = 27, 28, 29, 30, 97
    SC, NSC, PL, PH, TAG, HW, EP = 32, 33, 34, 35, 36, 37, 39
    K, V, WS, X, WR, BR, WO, OUT = 40, 44, 48, 52, 56, 60, 64, 68
    def srd(r):
        return f"s[{r}:{r+3}]"

    def stamp(k):
        if prof:
            e(f"s_memrealtime s[{8+2*k}:{9+2*k}]")
            e("s_waitcnt lgkmcnt(0)")

    def prof_out():
        if not prof:
            return
        e("s_mov_b64 exec, -1")
        e("s_lshl_b32 s4, s2, 3")
        e("s_add_u32 s4, s4, s3")
        e("s_lshl_b32 s4, s4, 5")
        e(f"s_add_u32 s4, s4, {PROFB}")
        for k in range(8):
            e(f"v_mov_b32 v{8+k}, s{8+2*k}")
        e("v_mov_b32 v7, 0")
        e("s_mov_b64 exec, 1")
        e(f"buffer_store_dwordx4 v[8:11], v7, {srd(WS)}, s4 offen")
        e(f"buffer_store_dwordx4 v[12:15], v7, {srd(WS)}, s4 offen offset:16")
        e("s_waitcnt vmcnt(0)")

    def mk_tag(src):
        e(f"s_mul_i32 s{TAG}, s{src}, 0x9E3779B1")
        e(f"s_add_u32 s{TAG}, s{TAG}, 0x7F4A7C15")

    def set_srd(r, ptr, size):
        e(f"s_mov_b32 s{r}, s{ptr}")
        e(f"s_mov_b32 s{r+1}, s{ptr+1}")
        e(f"s_mov_b32 s{r+2}, {size}")
        e(f"s_mov_b32 s{r+3}, 0x00020000")

    def unpack(dst, src):
        e(f"v_lshlrev_b32 v{dst}, 16, v{src}")
        e(f"v_and_b32 v{dst+1}, 0xffff0000, v{src}")

    def half_sum(r, t):
        for s in (8, 4, 2, 1):
            e(f"v_add_f32_dpp v{r}, v{r}, v{r} row_ror:{s} {DPPM}")
        e(f"v_mov_b32 v{t}, v{r}")
        e(f"v_permlane16_swap_b32 v{r}, v{t}")
        e(f"v_add_f32 v{r}, v{r}, v{t}")

    def tree16(dst, src, tmp):
        for k in range(4):
            e(f"v_pk_add_f32 v[{tmp+2*k}:{tmp+2*k+1}], v[{src+4*k}:{src+4*k+1}], v[{src+4*k+2}:{src+4*k+3}]")
        e(f"v_pk_add_f32 v[{tmp}:{tmp+1}], v[{tmp}:{tmp+1}], v[{tmp+2}:{tmp+3}]")
        e(f"v_pk_add_f32 v[{tmp+4}:{tmp+5}], v[{tmp+4}:{tmp+5}], v[{tmp+6}:{tmp+7}]")
        e(f"v_pk_add_f32 v[{tmp}:{tmp+1}], v[{tmp}:{tmp+1}], v[{tmp+4}:{tmp+5}]")
        e(f"v_add_f32 v{dst}, v{tmp}, v{tmp+1}")

    def bfr(r):
        e(f"v_cvt_pk_bf16_f32 v{r}, v{r}, v{r}")
        e(f"v_and_b32 v{r}, 0xffff0000, v{r}")

    def ln_stats(XF, MEAN, RS, TMP):
        tree16(MEAN, XF, TMP)
        half_sum(MEAN, TMP)
        e(f"v_mul_f32 v{MEAN}, {hx(f2u(1/512))}, v{MEAN}")
        D = TMP + 8
        e(f"v_mov_b32 v{TMP+1}, v{MEAN}")
        e(f"v_mov_b32 v{TMP}, v{MEAN}")
        for k in range(8):
            e(f"v_pk_add_f32 v[{D+2*k}:{D+2*k+1}], v[{XF+2*k}:{XF+2*k+1}], v[{TMP}:{TMP+1}] neg_lo:[0,1] neg_hi:[0,1]")
        for k in range(8):
            e(f"v_pk_mul_f32 v[{D+2*k}:{D+2*k+1}], v[{D+2*k}:{D+2*k+1}], v[{D+2*k}:{D+2*k+1}]")
        tree16(RS, D, TMP)
        half_sum(RS, TMP)
        e(f"v_mul_f32 v{RS}, {hx(f2u(1/512))}, v{RS}")
        bfr(MEAN)
        bfr(RS)
        e(f"v_add_f32 v{RS}, {hx(f2u(1e-5))}, v{RS}")
        bfr(RS)
        e(f"v_sqrt_f32 v{RS}, v{RS}")
        bfr(RS)
        e(f"v_rcp_f32 v{RS}, v{RS}")

    def norm_all(XF, m, rs, PK):
        for k in range(16):
            e(f"v_sub_f32 v{XF+k}, v{XF+k}, v{m}")
        for k in range(8):
            e(f"v_cvt_pk_bf16_f32 v{PK+k}, v{XF+2*k}, v{XF+2*k+1}")
        for k in range(8):
            unpack(XF + 2 * k, PK + k)
        for k in range(16):
            e(f"v_mul_f32 v{XF+k}, v{rs}, v{XF+k}")
        for k in range(8):
            e(f"v_cvt_pk_bf16_f32 v{PK+k}, v{XF+2*k}, v{XF+2*k+1}")

    def wperm(dst, r0, r1):
        for c in range(8):
            sel = f"s{PL}" if (c & 1) == 0 else f"s{PH}"
            e(f"v_perm_b32 v{dst+c}, v{r1+(c>>1)}, v{r0+(c>>1)}, {sel}")

    ACC = 80
    def dots(wp, x0, x1, first):
        for bb, xr in ((0, x0), (1, x1)):
            for c in range(8):
                d = ACC + 8 * bb + c
                if first:
                    e(f"v_dot2_f32_bf16 v{d}, v{wp+c}, v{xr}, 0")
                else:
                    e(f"v_dot2c_f32_bf16 v{d}, v{wp+c}, v{xr}")

    def red_addr():
        e("v_lshrrev_b32 v120, 5, v0")
        e("v_lshlrev_b32 v120, 8, v120")
        e("v_bfe_u32 v123, v0, 4, 1")
        e("v_lshl_add_u32 v120, v123, 4, v120")
        e("v_and_b32 v123, 7, v0")
        e("v_lshl_add_u32 v120, v123, 5, v120")
        e(f"s_lshl_b32 s5, s{HW}, 9")
        e("v_add_u32 v120, s5, v120")
        e("v_lshlrev_b32 v122, 4, v0")
        e("v_mov_b32 v121, 1")
        e("v_mov_b32 v101, 0")

    def reduce_publish(lab):
        for k in range(8):
            e(f"v_permlane32_swap_b32 v{ACC+k}, v{ACC+8+k}")
        for k in range(4):
            e(f"v_pk_add_f32 v[{ACC+2*k}:{ACC+2*k+1}], v[{ACC+2*k}:{ACC+2*k+1}], v[{ACC+8+2*k}:{ACC+9+2*k}]")
        for k in range(4):
            e(f"v_permlane16_swap_b32 v{ACC+k}, v{ACC+4+k}")
        for k in range(2):
            e(f"v_pk_add_f32 v[{ACC+2*k}:{ACC+2*k+1}], v[{ACC+2*k}:{ACC+2*k+1}], v[{ACC+4+2*k}:{ACC+5+2*k}]")
        for k in range(4):
            e(f"v_add_f32_dpp v{ACC+k}, v{ACC+k}, v{ACC+k} row_ror:8 {DPPM}")
        e("s_mov_b32 exec_lo, 0x00ff00ff")
        e("s_mov_b32 exec_hi, 0x00ff00ff")
        e(f"ds_write_b128 v120, v[{ACC}:{ACC+3}] offset:{L_P}")
        e("s_mov_b64 exec, 1")
        e(f"ds_add_rtn_u32 v64, v101, v121 offset:{L_CNT+4}")
        e("s_waitcnt lgkmcnt(0)")
        e("v_readfirstlane_b32 s4, v64")
        e("s_mov_b64 exec, -1")
        e("s_cmp_lg_u32 s4, 3")
        e(f"s_cbranch_scc1 {lab}")
        e("s_mov_b32 exec_hi, 0")
        for w in range(4):
            e(f"ds_read_b128 v[{64+4*w}:{67+4*w}], v122 offset:{L_P+512*w}")
        e("s_waitcnt lgkmcnt(0)")
        for k in range(2):
            e(f"v_pk_add_f32 v[{64+2*k}:{65+2*k}], v[{64+2*k}:{65+2*k}], v[{68+2*k}:{69+2*k}]")
            e(f"v_pk_add_f32 v[{72+2*k}:{73+2*k}], v[{72+2*k}:{73+2*k}], v[{76+2*k}:{77+2*k}]")
        for k in range(2):
            e(f"v_pk_add_f32 v[{64+2*k}:{65+2*k}], v[{64+2*k}:{65+2*k}], v[{72+2*k}:{73+2*k}]")

    def poll(loads, lab, sleep):
        n = len(loads)
        P = [78 + 2 * i for i in range(n)]
        assert n <= 7
        for p in P:
            e(f"s_mov_b64 s[{p}:{p+1}], -1")
        e(f"s_mov_b32 s92, {spin}")
        e(f"{lab}_top:")
        for i, (txt, tags) in enumerate(loads):
            e(f"s_mov_b64 exec, s[{P[i]}:{P[i]+1}]")
            e(f"s_cbranch_execz {lab}_s{i}")
            e(txt)
            e(f"{lab}_s{i}:")
        e("s_waitcnt vmcnt(0)")
        for i, (txt, tags) in enumerate(loads):
            e(f"s_mov_b64 exec, s[{P[i]}:{P[i]+1}]")
            e(f"v_cmp_ne_u32_e64 s[{P[i]}:{P[i]+1}], v{tags[0]}, s{TAG}")
            for tg in tags[1:]:
                e(f"v_cmp_ne_u32_e64 vcc, v{tg}, s{TAG}")
                e(f"s_or_b64 s[{P[i]}:{P[i]+1}], s[{P[i]}:{P[i]+1}], vcc")
        e("s_mov_b64 exec, -1")
        e(f"s_mov_b64 s[4:5], s[{P[0]}:{P[0]+1}]")
        for p in P[1:]:
            e(f"s_or_b64 s[4:5], s[4:5], s[{p}:{p+1}]")
        e("s_cmp_eq_u64 s[4:5], 0")
        e(f"s_cbranch_scc1 {lab}_done")
        if sleep:
            e(f"s_sleep {sleep}")
        e("s_sub_u32 s92, s92, 1")
        e("s_cmp_lg_u32 s92, 0")
        e(f"s_cbranch_scc1 {lab}_top")
        e(f"{lab}_done:")

    e(f"{NAME}:")
    e("s_cmp_ge_u32 s2, 256")
    e("s_cbranch_scc1 L_end")
    e("s_load_dwordx16 s[72:87], s[0:1], 0")
    e("s_load_dwordx8 s[88:95], s[0:1], 64")
    e(f"s_load_dwordx2 s[{WS}:{WS+1}], s[0:1], 96")
    e("v_lshrrev_b32 v1, 6, v0")
    e("v_and_b32 v0, 63, v0")
    e("s_bfe_u32 s4, s2, 0x40003")
    e("v_readfirstlane_b32 s3, v1")
    e("s_lshl_b32 s4, s4, 23")
    e("s_and_b32 s5, s2, 7")
    e("s_lshl_b32 s5, s5, 20")
    e("s_add_u32 s4, s4, s5")
    e("s_cmp_ge_u32 s2, 128")
    e(f"s_cselect_b32 s5, {NH*8192}, 0")
    e(f"s_mov_b32 s{LIM}, {NH*8192}")
    e(f"s_cselect_b32 s{LIM}, {NL*8192}, s{LIM}")
    e("s_add_u32 s4, s4, s5")
    e(f"s_mov_b32 s{K+2}, s{LIM}")
    e(f"s_mov_b32 s{K+3}, 0x00020000")
    e(f"s_mov_b32 s{V+2}, s{LIM}")
    e(f"s_mov_b32 s{V+3}, 0x00020000")
    e(f"s_mov_b32 s{WS+2}, {WS_SIZE}")
    e(f"s_mov_b32 s{WS+3}, 0x00020000")
    e(f"s_mov_b32 s{SC}, {hx(f2u(C_SC))}")
    e(f"s_mov_b32 s{NSC}, {hx(f2u(-C_SC))}")
    e(f"s_mov_b32 s{PL}, 0x05040100")
    e(f"s_mov_b32 s{PH}, 0x07060302")
    e(f"s_mov_b32 s{OUT+2}, 2048")
    e(f"s_mov_b32 s{OUT+3}, 0x00020000")
    if prof:
        for k in range(8):
            e(f"s_mov_b32 s{8+2*k}, 0")
    e("s_waitcnt lgkmcnt(0)")
    e(f"s_add_u32 s{K}, s74, s4")
    e(f"s_addc_u32 s{K+1}, s75, 0")
    e(f"s_add_u32 s{V}, s76, s4")
    e(f"s_addc_u32 s{V+1}, s77, 0")
    e(f"s_mov_b64 s[{OUT}:{OUT+1}], s[92:93]")
    e("s_cmp_ge_u32 s3, 4")
    e("s_cbranch_scc1 L_helper")
    e("s_cmp_eq_u32 s3, 0")
    e("s_cbranch_scc1 L_w0")
    e("s_barrier")
    stamp(0)

    e("L_stream:")
    stamp(1)
    e("v_and_b32 v5, 15, v0")
    e("v_lshrrev_b32 v6, 4, v0")
    e("v_lshlrev_b32 v3, 10, v6")
    e("v_lshl_add_u32 v3, v5, 4, v3")
    e("v_add_u32 v4, 4096, v3")
    e("s_mov_b64 exec, 1")
    for i in range(3):
        e(f"ds_add_rtn_u32 v{8+i}, v3, v4 offset:{L_CNT}")
    e("s_mov_b64 exec, -1")
    if hprio:
        e("s_setprio 0")
        e("s_cmp_lt_u32 s3, 4")
        e("s_cbranch_scc1 L_st_prio")
        e(f"s_setprio {hprio}")
        e("L_st_prio:")
    else:
        e("s_setprio 0")
    e("v_lshlrev_b32 v1, 8, v5")
    e("v_lshl_add_u32 v1, v6, 4, v1")
    e("v_add_u32 v2, 4096, v1")
    e("v_and_b32 v7, 3, v5")
    e("v_lshlrev_b32 v7, 8, v7")
    e("v_lshl_add_u32 v7, v6, 4, v7")
    e("v_mov_b32 v5, 0xff800000")
    e("v_mov_b32 v6, 0")
    e(f"s_mov_b32 s{REM}, 0")
    e(f"s_mov_b32 s{VP}, 0")
    e(f"s_sub_u32 s{LIME}, s{LIM}, {E*8192}")
    if trace:
        e("s_mov_b32 s31, 0")
    e("s_waitcnt lgkmcnt(0)")
    for i in range(3):
        e(f"v_readfirstlane_b32 s{OFF[i]}, v{8+i}")
    e(f"s_load_dword s{EP}, s[{WS}:{WS+1}], 4")
    for i in range(3):
        e(f"s_lshl_b32 s{OFF[i]}, s{OFF[i]}, 1")

    def kload(slot, idx):
        kb = 64 + 64 * slot
        T, t = idx >> 2, idx & 3
        r = kb + 16 * T + 4 * t
        e(f"buffer_load_dwordx4 v[{r}:{r+3}], v{1+T}, {srd(K)}, s{OFF[slot]} offen offset:{64*t} {kpol}")
    def vload(slot, i):
        r = 96 + 64 * slot + 4 * i
        e(f"buffer_load_dwordx4 v[{r}:{r+3}], v{3+(i>>2)}, {srd(V)}, s{OFF[slot]} offen offset:{256*(i&3)} {vpol}")
    def groups(fn, slot, lo, hi, w, first=False):
        for i in range(lo, hi):
            if (i % G) == 0 and not (first and i == lo):
                e(f"s_waitcnt vmcnt({w-G})")
            fn(slot, i)

    for i in range(3):
        e(f"s_cmp_ge_u32 s{OFF[i]}, s{LIM}")
        e(f"s_cbranch_scc1 {'L_st_nowork' if i == 0 else 'L_st_pro_done'}")
        groups(kload, i, 0, 8, PW, first=(i == 0))
        if i == 0:
            for r in range(32, 64):
                e(f"v_mov_b32 v{r}, 0")
        groups(vload, i, 0, 8, PW)
        e(f"s_mov_b32 s{REM}, {i+1}")
    e("L_st_pro_done:")
    stamp(2)
    e(f"s_mov_b32 s{CL}, {spin}")
    e("s_mov_b64 exec, 1")
    e("L_qflag:")
    e(f"ds_read_b32 v8, v3 offset:{L_CNT+8}")
    e("s_waitcnt lgkmcnt(0)")
    e("v_readfirstlane_b32 s4, v8")
    e("s_cmp_lg_u32 s4, 0")
    e("s_cbranch_scc1 L_qflag_done")
    e("s_sleep 1")
    e(f"s_sub_u32 s{CL}, s{CL}, 1")
    e(f"s_cmp_lg_u32 s{CL}, 0")
    e("s_cbranch_scc1 L_qflag")
    e("L_qflag_done:")
    e("s_mov_b64 exec, -1")
    for t in range(4):
        e(f"ds_read_b128 v[{16+4*t}:{19+4*t}], v7 offset:{L_Q+64*t}")
    e("s_waitcnt lgkmcnt(0)")
    stamp(3)

    e("L_st_loop:")
    for slot in range(3):
        kb = 64 + 64 * slot
        vb = kb + 32
        vs = (slot + 2) % 3
        H1 = 8 if G == 8 else 4
        e(f"s_cmp_eq_u32 s{VP}, 0")
        e(f"s_cbranch_scc1 L_st_nova{slot}")
        groups(vload, vs, 0, H1, W)
        e(f"L_st_go{slot}:")
        for t in range(4):
            for T in range(2):
                d = 8 + 4 * T
                c = "0" if t == 0 else f"v[{d}:{d+3}]"
                r = kb + 16 * T + 4 * t
                e(f"v_mfma_f32_16x16x32_bf16 v[{d}:{d+3}], v[{r}:{r+3}], v[{16+4*t}:{19+4*t}], {c}")
        t0, t1, al, nm = kb + 28, kb + 29, kb + 30, kb + 31
        e(f"v_max3_f32 v{t0}, v8, v9, v10")
        e(f"v_max3_f32 v{t1}, v12, v13, v14")
        e(f"v_max3_f32 v{t0}, v{t0}, v11, v5")
        e(f"v_max3_f32 v{t0}, v{t0}, v{t1}, v15")
        e(f"v_mov_b32 v{t1}, v{t0}")
        e(f"v_permlane32_swap_b32 v{t0}, v{t1}")
        e(f"v_max_f32 v{t0}, v{t0}, v{t1}")
        e(f"v_mov_b32 v{t1}, v{t0}")
        e(f"v_permlane16_swap_b32 v{t0}, v{t1}")
        e(f"v_max_f32 v{t0}, v{t0}, v{t1}")
        e(f"v_sub_f32 v{t1}, v5, v{t0}")
        e(f"v_mul_f32 v{nm}, s{NSC}, v{t0}")
        e(f"v_mul_f32 v{t1}, s{SC}, v{t1}")
        e(f"v_mov_b32 v5, v{t0}")
        e(f"v_exp_f32 v{al}, v{t1}")
        for i in range(8):
            e(f"v_fma_f32 v{8+i}, v{8+i}, s{SC}, v{nm}")
        for i in range(8):
            e(f"v_exp_f32 v{8+i}, v{8+i}")
        for k in range(16):
            e(f"v_pk_mul_f32 v[{32+2*k}:{33+2*k}], v[{32+2*k}:{33+2*k}], v[{al}:{al+1}] op_sel_hi:[1,0]")
        e(f"v_mul_f32 v6, v6, v{al}")
        e(f"v_add_f32 v{t0}, v8, v9")
        e(f"v_add_f32 v{t1}, v10, v11")
        e(f"v_add_f32 v6, v6, v12")
        e(f"v_add_f32 v{t0}, v{t0}, v13")
        e(f"v_add_f32 v{t1}, v{t1}, v14")
        e(f"v_add_f32 v6, v6, v15")
        e(f"v_add_f32 v{t0}, v{t0}, v{t1}")
        e("v_cvt_pk_bf16_f32 v8, v8, v9")
        e("v_cvt_pk_bf16_f32 v9, v10, v11")
        e("v_cvt_pk_bf16_f32 v10, v12, v13")
        e("v_cvt_pk_bf16_f32 v11, v14, v15")
        e(f"v_add_f32 v6, v6, v{t0}")
        if H1 < 8:
            e(f"s_cmp_eq_u32 s{VP}, 0")
            e(f"s_cbranch_scc1 L_st_novb{slot}")
            groups(vload, vs, H1, 8, W)
            e(f"L_st_novb{slot}:")
        e(f"s_cmp_lg_u32 s{REM}, 1")
        e(f"s_cbranch_scc1 L_st_notlast{slot}")
        e("s_waitcnt vmcnt(0)")
        e(f"L_st_notlast{slot}:")
        def perms(jj):
            sel = f"s{PL}" if (jj & 1) == 0 else f"s{PH}"
            for q in range(4):
                e(f"v_perm_b32 v{kb+4*jj+q}, v{vb+4*(2*q+1)+(jj>>1)}, v{vb+4*(2*q)+(jj>>1)}, {sel}")
        def pv(jj):
            d = 32 + 4 * jj
            e(f"v_mfma_f32_16x16x32_bf16 v[{d}:{d+3}], v[{kb+4*jj}:{kb+4*jj+3}], v[8:11], v[{d}:{d+3}]")
        perms(0)
        for jj in range(8):
            if jj + 1 < 8:
                perms(jj + 1)
            pv(jj)
        e(f"s_sub_u32 s{REM}, s{REM}, 1")
        e(f"s_cmp_eq_u32 s{REM}, 0")
        e("s_cbranch_scc1 L_st_done")
        e(f"s_mov_b32 s{VP}, 0")
        e(f"s_cmp_lg_u32 s{REM}, 2")
        e(f"s_cbranch_scc1 L_st_nok{slot}")
        e(f"s_cmp_ge_u32 s{OFF[vs]}, s{LIME}")
        e(f"s_cbranch_scc1 L_st_claim{slot}")
        e(f"s_waitcnt vmcnt({W-G})")
        e(f"L_st_claim{slot}:")
        e("s_mov_b64 exec, 1")
        e(f"ds_add_rtn_u32 v7, v3, v4 offset:{L_CNT}")
        e("s_mov_b64 exec, -1")
        e("s_waitcnt lgkmcnt(0)")
        e(f"v_readfirstlane_b32 s{CL}, v7")
        e(f"s_lshl_b32 s{OFF[slot]}, s{CL}, 1")
        e(f"s_cmp_ge_u32 s{OFF[slot]}, s{LIME}")
        e(f"s_cbranch_scc1 L_st_end{slot}")
        groups(kload, slot, 0, 8, W, first=True)
        e(f"s_mov_b32 s{VP}, 1")
        e(f"s_mov_b32 s{REM}, 3")
        e(f"L_st_nok{slot}:")
        if trace:
            e("s_memrealtime s[60:61]")
            e("s_mov_b32 m0, s31")
            e("s_add_u32 s31, s31, 1")
            e("s_waitcnt lgkmcnt(0)")
            e("v_writelane_b32 v0, s60, m0")
    e("s_branch L_st_loop")
    for slot in range(3):
        e(f"L_st_nova{slot}:")
        e("s_waitcnt vmcnt(32)")
        e(f"s_cmp_eq_u32 s{REM}, 3")
        e(f"s_cbranch_scc1 L_st_go{slot}")
        e("s_waitcnt vmcnt(16)")
        e(f"s_cmp_eq_u32 s{REM}, 2")
        e(f"s_cbranch_scc1 L_st_go{slot}")
        e("s_waitcnt vmcnt(8)")
        e(f"s_branch L_st_go{slot}")
        e(f"L_st_end{slot}:")
        e(f"s_cmp_ge_u32 s{OFF[slot]}, s{LIM}")
        e(f"s_cbranch_scc1 L_st_nok{slot}")
        for i in range(8):
            kload(slot, i)
        for i in range(8):
            vload(slot, i)
        e(f"s_mov_b32 s{REM}, 3")
        e(f"s_branch L_st_nok{slot}")

    e("L_st_nowork:")
    for r in range(32, 64):
        e(f"v_mov_b32 v{r}, 0")
    e("L_st_done:")
    stamp(4)
    if trace:
        e("v_mov_b32 v8, v0")
        e("v_mbcnt_lo_u32_b32 v0, -1, 0")
        e("v_mbcnt_hi_u32_b32 v0, -1, v0")
        e("v_writelane_b32 v8, s31, 63")
        e("s_lshl_b32 s4, s2, 3")
        e("s_add_u32 s4, s4, s3")
        e("s_lshl_b32 s4, s4, 8")
        e(f"s_add_u32 s4, s4, {PROFB+0x20000}")
        e("v_lshlrev_b32 v9, 2, v0")
        e(f"buffer_store_dword v8, v9, {srd(WS)}, s4 offen")
    e("v_mov_b32 v7, v6")
    e("v_permlane32_swap_b32 v6, v7")
    e("v_add_f32 v6, v6, v7")
    e("v_mov_b32 v7, v6")
    e("v_permlane16_swap_b32 v6, v7")
    e("v_add_f32 v6, v6, v7")
    e(f"v_mul_f32 v5, s{SC}, v5")
    e("v_and_b32 v1, 15, v0")
    e("v_lshrrev_b32 v2, 4, v0")
    e("v_lshl_add_u32 v2, v1, 2, v2")
    e("v_lshlrev_b32 v2, 4, v2")
    e("s_lshl_b32 s4, s3, 11")
    e("v_add_u32 v2, s4, v2")
    e("s_lshl_b32 s4, s3, 2")
    e("v_lshl_add_u32 v1, v1, 5, s4")
    e("s_mov_b32 exec_lo, 0x000f000f")
    e("s_mov_b32 exec_hi, 0x000f000f")
    for jj in range(8):
        e(f"ds_write_b128 v2, v[{32+4*jj}:{35+4*jj}] offset:{L_ACC+256*jj}")
    e("s_mov_b64 exec, 15")
    e(f"ds_write_b32 v1, v5 offset:{L_MC}")
    e(f"ds_write_b32 v1, v6 offset:{L_L}")
    e("s_mov_b64 exec, -1")
    e("s_cmp_ge_u32 s3, 4")
    e("s_cbranch_scc1 L_tail")
    e("s_waitcnt lgkmcnt(0)")
    e("s_barrier")
    stamp(5)
    prof_out()
    e("s_endpgm")

    e("L_w0:")
    set_srd(WO, 80, 4096 * 512 * 2)
    e(f"s_load_dword s{EP}, s[{WS}:{WS+1}], 4")
    e("s_setprio 3")
    e("s_and_b32 s4, s2, 7")
    e("s_lshl_b32 s4, s4, 3")
    e("s_lshr_b32 s5, s2, 5")
    e("s_add_u32 s4, s4, s5")
    e("s_lshl_b32 s4, s4, 16")
    e("s_bfe_u32 s5, s2, 0x20003")
    e("s_lshl_b32 s5, s5, 8")
    e("s_add_u32 s4, s4, s5")
    e("v_lshrrev_b32 v64, 4, v0")
    e("v_lshlrev_b32 v64, 13, v64")
    e("v_and_b32 v65, 15, v0")
    e("v_lshl_add_u32 v64, v65, 4, v64")
    e("v_lshlrev_b32 v122, 4, v0")
    e("s_barrier")
    stamp(0)
    for s in range(2):
        for h in range(2):
            if s or h:
                e(f"s_add_u32 s5, s4, {s*32768+h*4096}")
            so = "s5" if (s or h) else "s4"
            for i4 in range(4):
                r = 128 + 4 * (8 * s + 4 * h + i4)
                e(f"buffer_load_dwordx4 v[{r}:{r+3}], v64, {srd(WO)}, {so} offen offset:{1024*i4} {opol}")
    e("s_bfe_u32 s93, s2, 0x30003")
    e("s_lshl_b32 s93, s93, 12")
    e("s_bfe_u32 s5, s2, 0x10006")
    e("s_lshl_b32 s5, s5, 11")
    e("s_add_u32 s93, s93, s5")
    e(f"s_add_u32 s93, s93, {QG}")
    e("v_lshlrev_b32 v72, 3, v0")
    e("v_mov_b32 v73, 1")
    e("s_waitcnt lgkmcnt(0)")
    mk_tag(EP)
    for s in range(2):
        e(f"s_waitcnt vmcnt({8-8*s})")
        for jj in range(8):
            sel = f"s{PL}" if (jj & 1) == 0 else f"s{PH}"
            for q in range(4):
                r0 = 128 + 4 * (8 * s + 2 * q) + (jj >> 1)
                e(f"v_perm_b32 v{192+4*(8*s+jj)+q}, v{r0+4}, v{r0}, {sel}")
        for jj in range(8):
            r = 192 + 4 * (8 * s + jj)
            e(f"ds_write_b128 v122, v[{r}:{r+3}] offset:{L_WO+1024*(8*s+jj)}")
    stamp(6)
    poll([(f"buffer_load_dwordx4 v[64:67], v122, {srd(WS)}, s93 offen sc1", (65, 67)),
          (f"buffer_load_dwordx4 v[68:71], v122, {srd(WS)}, s93 offen offset:1024 sc1", (69, 71))], "L_qpoll", qsleep)
    e(f"v_add_u32 v72, {L_Q}, v72")
    e("ds_write2_b32 v72, v64, v66 offset0:0 offset1:1")
    e("ds_write2_b32 v72, v68, v70 offset0:128 offset1:129")
    e("v_mov_b32 v72, 0")
    e("s_waitcnt lgkmcnt(0)")
    e(f"ds_write_b32 v72, v73 offset:{L_CNT+8}")
    e("s_branch L_stream")

    e("L_helper:")
    e(f"s_sub_u32 s{HW}, s3, 4")
    e("v_and_b32 v100, 3, v0")
    e("v_lshlrev_b32 v100, 2, v100")
    e("v_mov_b32 v101, 0")
    e(f"ds_write_b32 v100, v101 offset:{L_CNT}")
    set_srd(X, 72, 2048)
    e("s_setprio 3")
    e("v_lshrrev_b32 v1, 3, v0")
    e("v_and_b32 v14, 7, v0")
    e("s_cmp_lt_u32 s2, 64")
    e("s_cbranch_scc1 L_role_q")
    e("s_cmp_lt_u32 s2, 92")
    e("s_cbranch_scc1 L_role_h")
    e("s_cmp_lt_u32 s2, 96")
    e("s_cbranch_scc1 L_role_none")
    e("s_cmp_lt_u32 s2, 128")
    e("s_cbranch_scc1 L_role_g")
    e("s_cmp_ge_u32 s2, 160")
    e("s_cbranch_scc1 L_role_none")
    e("s_cmp_eq_u32 s3, 7")
    e("s_cbranch_scc1 L_role_f")
    e("L_role_none:")
    e("s_waitcnt lgkmcnt(0)")
    e("s_barrier")
    stamp(0)

    e("L_join:")
    e("s_mov_b64 exec, -1")
    e("s_bfe_u32 s6, s2, 0x30003")
    e("s_bfe_u32 s7, s2, 0x10006")
    e("s_and_b32 s5, s2, 7")
    e("s_lshl_b32 s5, s5, 1")
    e("s_lshr_b32 s4, s2, 7")
    e("s_add_u32 s5, s5, s4")
    e("s_lshl_b32 s4, s6, 1")
    e("s_add_u32 s4, s4, s7")
    e("s_lshl_b32 s4, s4, 4")
    e("s_add_u32 s4, s4, s5")
    e("s_lshl_b32 s4, s4, 2")
    e(f"s_add_u32 s4, s4, s{HW}")
    e("s_lshl_b32 s4, s4, 10")
    e(f"s_add_u32 s72, s4, {PG}")
    e("s_lshl_b32 s4, s6, 2")
    e(f"s_add_u32 s4, s4, s{HW}")
    e("s_lshl_b32 s4, s4, 1")
    e("s_add_u32 s4, s4, s7")
    e("s_lshl_b32 s4, s4, 4")
    e("s_add_u32 s4, s4, s5")
    e("s_lshl_b32 s4, s4, 4")
    e(f"s_add_u32 s73, s4, {MLG}")
    e("s_and_b32 s93, s2, 7")
    e(f"s_lshr_b32 s5, s{HW}, 1")
    e(f"s_and_b32 s38, s{HW}, 1")
    e("s_lshl_b32 s38, s38, 3")
    e("s_lshr_b32 s94, s2, 5")
    e("s_lshl_b32 s4, s93, 1")
    e("s_add_u32 s4, s4, s5")
    e("s_lshl_b32 s4, s4, 4")
    e("s_add_u32 s4, s4, s38")
    e("s_lshl_b32 s4, s4, 3")
    e("s_add_u32 s4, s4, s94")
    e("s_lshl_b32 s4, s4, 9")
    e(f"s_add_u32 s98, s4, {PG}")
    e("s_add_u32 s99, s98, 0x2000")
    e("s_add_u32 s100, s98, 0x4000")
    e("s_add_u32 s101, s98, 0x6000")
    e("s_lshl_b32 s4, s93, 3")
    e("s_add_u32 s4, s4, s94")
    e("s_and_b32 s6, s4, 0xfffffffe")
    e("s_add_u32 s6, s6, s5")
    e("s_lshl_b32 s6, s6, 8")
    e(f"s_add_u32 s74, s6, {MLG}")
    e("s_lshl_b32 s4, s4, 8")
    e("s_bfe_u32 s5, s2, 0x20003")
    e("s_lshl_b32 s5, s5, 17")
    e("s_add_u32 s4, s4, s5")
    e(f"s_add_u32 s75, s4, {SG}")
    e("s_add_u32 s76, s75, 0x4000")
    e("s_and_b32 s4, s2, 31")
    e("s_lshl_b32 s95, s4, 5")
    e("s_lshl_b32 s4, s4, 14")
    e(f"s_lshl_b32 s5, s{HW}, 12")
    e("s_add_u32 s4, s4, s5")
    e(f"s_add_u32 s77, s4, {SG}")
    e("s_branch L_stream")

    XF, PK, XS = 32, 48, 16
    for kind in "qh":
        e(f"L_role_{kind}:")
        if kind == "q":
            stride = 8192
            set_srd(WR, 78, 512 * 4096 * 2)
            e("s_mov_b32 s96, s2")
            e("v_lshlrev_b32 v98, 17, v1")
            e(f"s_lshl_b32 s4, s{HW}, 20")
        else:
            stride = 3584
            set_srd(WR, 84, 512 * 1792 * 2)
            set_srd(BR, 86, 1792 * 2)
            e("s_sub_u32 s96, s2, 64")
            e(f"v_mul_u32_u24 v98, {16*stride}, v1")
            e(f"s_mul_i32 s4, s{HW}, {128*stride}")
        e("v_lshl_add_u32 v98, v14, 4, v98")
        e("s_lshl_b32 s5, s96, 7")
        e("s_add_u32 s4, s4, s5")
        e("v_lshlrev_b32 v15, 5, v0")
        if kind == "h":
            e("v_and_b32 v99, 15, v0")
            e("v_lshlrev_b32 v99, 3, v99")
            e(f"buffer_load_dwordx2 v[102:103], v99, {srd(BR)}, s5 offen")
        e(f"buffer_load_dwordx4 v[2:5], v15, {srd(X)}, 0 offen")
        e(f"buffer_load_dwordx4 v[6:9], v15, {srd(X)}, 0 offen offset:16")
        for i in range(16):
            e(f"buffer_load_dwordx4 v[{128+4*i}:{131+4*i}], v98, {srd(WR)}, s4 offen {wpol}")
            if i < 15:
                e(f"s_add_u32 s4, s4, {stride}")
        e("s_waitcnt lgkmcnt(0)")
        e(f"s_load_dword s{EP}, s[{WS}:{WS+1}], 4")
        e("s_barrier")
        stamp(0)
        red_addr()
        e(f"s_lshl_b32 s4, s{HW}, 5")
        e("v_lshl_add_u32 v97, v1, 2, s4")
        e("v_lshrrev_b32 v125, 4, v0")
        e("v_and_b32 v126, 15, v0")
        e("v_lshlrev_b32 v126, 4, v126")
        e("s_waitcnt vmcnt(16)")
        for k in range(8):
            unpack(XF + 2 * k, 2 + k)
        ln_stats(XF, 60, 61, 64)
        norm_all(XF, 60, 61, PK)
        if kind == "h":
            for k in range(8):
                unpack(XF + 2 * k, PK + k)
            ln_stats(XF, 60, 61, 64)
            norm_all(XF, 60, 61, PK)
        for bb in range(2):
            for k in range(8):
                e(f"ds_bpermute_b32 v{XS+8*bb+k}, v97, v{PK+k} offset:{128*bb}")
            if bb == 0:
                e("s_waitcnt lgkmcnt(0)")
        mk_tag(EP)
        for k in range(8):
            wp = 64 + 8 * (k & 1)
            e(f"s_waitcnt vmcnt({14-2*k})" + (" lgkmcnt(0)" if k == 0 else ""))
            wperm(wp, 128 + 8 * k, 132 + 8 * k)
            dots(wp, XS + k, XS + 8 + k, k == 0)
        reduce_publish("L_join")
        if kind == "q":
            e("v_cvt_pk_bf16_f32 v64, v64, v65")
            e("v_cvt_pk_bf16_f32 v66, v66, v67")
            e(f"v_mov_b32 v65, s{TAG}")
            e(f"v_mov_b32 v67, s{TAG}")
            e("v_lshl_add_u32 v68, v125, 11, v126")
            e("s_lshr_b32 s4, s96, 3")
            e("s_lshl_b32 s4, s4, 12")
            e("s_and_b32 s5, s96, 7")
            e("s_lshl_b32 s5, s5, 8")
            e("s_add_u32 s4, s4, s5")
            e(f"s_add_u32 s4, s4, {QG}")
            e(f"buffer_store_dwordx4 v[64:67], v68, {srd(WS)}, s4 offen sc1")
        else:
            e("v_cvt_pk_bf16_f32 v68, v64, v65")
            e("v_cvt_pk_bf16_f32 v69, v66, v67")
            unpack(64, 68); unpack(66, 69)
            unpack(68, 102); unpack(70, 103)
            e("v_pk_add_f32 v[64:65], v[64:65], v[68:69]")
            e("v_pk_add_f32 v[66:67], v[66:67], v[70:71]")
            e("v_cvt_pk_bf16_f32 v68, v64, v65")
            e("v_cvt_pk_bf16_f32 v69, v66, v67")
            unpack(64, 68); unpack(66, 69)
            k1 = -2.0 * math.sqrt(2.0 / math.pi) * math.log2(math.e)
            e(f"s_mov_b32 s4, {hx(f2u(k1*0.044715))}")
            e(f"v_mov_b32 v72, {hx(f2u(k1))}")
            for k in range(4):
                e(f"v_mul_f32 v{68+k}, v{64+k}, v{64+k}")
            for k in range(4):
                e(f"v_fma_f32 v{68+k}, v{68+k}, s4, v72")
            for k in range(4):
                e(f"v_mul_f32 v{68+k}, v{68+k}, v{64+k}")
            for k in range(4):
                e(f"v_exp_f32 v{68+k}, v{68+k}")
            for k in range(4):
                e(f"v_add_f32 v{68+k}, 1.0, v{68+k}")
            for k in range(4):
                e(f"v_rcp_f32 v{68+k}, v{68+k}")
            for k in range(4):
                e(f"v_mul_f32 v{64+k}, v{64+k}, v{68+k}")
            e("v_cvt_pk_bf16_f32 v64, v64, v65")
            e("v_cvt_pk_bf16_f32 v66, v66, v67")
            e(f"v_mov_b32 v65, s{TAG}")
            e(f"v_mov_b32 v67, s{TAG}")
            e("s_movk_i32 s4, 7168")
            e("v_mad_u32_u24 v68, v125, s4, v126")
            e("s_lshl_b32 s4, s96, 8")
            e(f"s_add_u32 s4, s4, {HG}")
            e(f"buffer_store_dwordx4 v[64:67], v68, {srd(WS)}, s4 offen sc1")
        e("s_branch L_join")

    e("L_role_g:")
    set_srd(WR, 88, 1792 * 512 * 2)
    e("s_and_b32 s96, s2, 7")
    e("s_bfe_u32 s97, s2, 0x20003")
    e("s_lshl_b32 s6, s97, 2")
    e(f"s_add_u32 s6, s6, s{HW}")
    e("s_mul_i32 s6, s6, 112")
    e("s_lshl_b32 s4, s6, 10")
    e("s_lshl_b32 s5, s96, 7")
    e("s_add_u32 s4, s4, s5")
    e(f"v_mul_u32_u24 v98, {14*1024}, v1")
    e("v_lshl_add_u32 v98, v14, 4, v98")
    for i in range(14):
        e(f"buffer_load_dwordx4 v[{128+4*i}:{131+4*i}], v98, {srd(WR)}, s4 offen offset:{1024*(i&3)} {wpol}")
        if (i & 3) == 3:
            e("s_add_u32 s4, s4, 4096")
    e("s_waitcnt lgkmcnt(0)")
    e(f"s_load_dword s{EP}, s[{WS}:{WS+1}], 4")
    e("s_barrier")
    stamp(0)
    red_addr()
    e("v_min_u32 v99, 6, v14")
    e("v_mad_u32_u24 v99, v1, 7, v99")
    e("v_lshlrev_b32 v99, 3, v99")
    e("s_lshl_b32 s6, s6, 2")
    e(f"s_add_u32 s93, s6, {HG}")
    e("s_add_u32 s94, s93, 7168")
    e("v_lshlrev_b32 v97, 5, v1")
    e("s_waitcnt lgkmcnt(0)")
    mk_tag(EP)
    poll([(f"buffer_load_dwordx2 v[10:11], v99, {srd(WS)}, s93 offen sc1", (11,)),
          (f"buffer_load_dwordx2 v[12:13], v99, {srd(WS)}, s94 offen sc1", (13,))], "L_hpoll", 8)
    for bb in range(2):
        for k in range(7):
            e(f"ds_bpermute_b32 v{XS+8*bb+k}, v97, v{10+2*bb} offset:{4*k}")
    e("s_waitcnt lgkmcnt(0)")
    for k in range(7):
        wp = 64 + 8 * (k & 1)
        wperm(wp, 128 + 8 * k, 132 + 8 * k)
        dots(wp, XS + k, XS + 8 + k, k == 0)
    reduce_publish("L_join")
    e("v_mov_b32 v68, v66")
    e("v_mov_b32 v70, v67")
    e("v_mov_b32 v66, v65")
    e(f"v_mov_b32 v65, s{TAG}")
    e(f"v_mov_b32 v67, s{TAG}")
    e(f"v_mov_b32 v69, s{TAG}")
    e(f"v_mov_b32 v71, s{TAG}")
    e("v_bfe_u32 v72, v0, 2, 2")
    e("v_lshlrev_b32 v72, 10, v72")
    e("v_lshrrev_b32 v73, 4, v0")
    e("v_lshl_add_u32 v72, v73, 7, v72")
    e("v_and_b32 v73, 3, v0")
    e("v_lshl_add_u32 v72, v73, 5, v72")
    e("s_lshl_b32 s4, s96, 12")
    e("s_lshl_b32 s5, s97, 8")
    e("s_add_u32 s4, s4, s5")
    e(f"s_add_u32 s4, s4, {MG}")
    e(f"buffer_store_dwordx4 v[64:67], v72, {srd(WS)}, s4 offen sc1")
    e(f"buffer_store_dwordx4 v[68:71], v72, {srd(WS)}, s4 offen offset:16 sc1")
    e("s_branch L_join")

    e("L_role_f:")
    set_srd(BR, 90, 1024)
    e("s_and_b32 s96, s2, 31")
    e("s_lshl_b32 s4, s96, 5")
    e("v_lshlrev_b32 v98, 2, v14")
    e("v_bfe_u32 v99, v0, 3, 1")
    e("v_lshl_add_u32 v97, v99, 10, v98")
    e(f"buffer_load_dword v10, v98, {srd(BR)}, s4 offen")
    e(f"buffer_load_dword v11, v97, {srd(X)}, s4 offen")
    e("s_waitcnt lgkmcnt(0)")
    e(f"s_load_dword s{EP}, s[{WS}:{WS+1}], 4")
    e("s_barrier")
    stamp(0)
    e("v_lshlrev_b32 v122, 4, v0")
    e("s_lshl_b32 s93, s96, 10")
    e(f"s_add_u32 s93, s93, {MG}")
    e("v_lshlrev_b32 v98, 1, v98")
    e("v_lshl_add_u32 v98, v99, 6, v98")
    e("v_lshrrev_b32 v99, 5, v0")
    e("v_lshl_add_u32 v98, v99, 2, v98")
    e("v_lshlrev_b32 v99, 4, v99")
    e("v_sub_u32 v99, 16, v99")
    e("s_waitcnt lgkmcnt(0)")
    mk_tag(EP)
    poll([(f"buffer_load_dwordx4 v[16:19], v122, {srd(WS)}, s93 offen sc1", (17, 19))], "L_gpoll", gsleep)
    e("v_permlane32_swap_b32 v16, v18")
    e("v_add_f32 v16, v16, v18")
    e("v_mov_b32 v18, v16")
    e("v_permlane16_swap_b32 v16, v18")
    e("v_add_f32 v16, v16, v18")
    e("v_lshlrev_b32 v10, v99, v10")
    e("v_lshlrev_b32 v11, v99, v11")
    e("v_and_b32 v10, 0xffff0000, v10")
    e("v_and_b32 v11, 0xffff0000, v11")
    bfr(16)
    e("v_add_f32 v16, v16, v10")
    bfr(16)
    e(f"v_mul_f32 v18, {hx(f2u(-math.log2(math.e)))}, v16")
    e("v_exp_f32 v18, v18")
    e("v_add_f32 v18, 1.0, v18")
    e("v_rcp_f32 v18, v18")
    e("v_mul_f32 v16, v16, v18")
    bfr(16)
    e(f"ds_write_b32 v98, v16 offset:{L_G}")
    e(f"ds_write_b32 v98, v11 offset:{L_X}")
    e("s_branch L_join")

    e("L_tail:")
    e("s_setprio 3")
    e("v_and_b32 v12, 3, v0")
    e("v_lshlrev_b32 v12, 9, v12")
    e("v_lshrrev_b32 v9, 4, v0")
    e("v_lshl_add_u32 v12, v9, 4, v12")
    e("v_bfe_u32 v3, v0, 2, 2")
    e("v_lshl_add_u32 v12, v3, 2, v12")
    e(f"s_lshl_b32 s4, s{HW}, 6")
    e("v_add_u32 v12, s4, v12")
    e(f"s_lshl_b32 s4, s{HW}, 5")
    e("v_mov_b32 v3, s4")
    e("v_lshlrev_b32 v122, 4, v0")
    e("v_mov_b32 v101, 0")
    e("v_lshrrev_b32 v13, 5, v0")
    e("v_and_b32 v7, 31, v0")
    e("v_lshlrev_b32 v4, 4, v7")
    e("v_lshl_add_u32 v4, v13, 12, v4")
    e("v_and_b32 v8, 15, v0")
    e("v_add3_u32 v14, v8, v13, s38")
    e("v_and_b32 v14, 15, v14")
    e("v_lshlrev_b32 v14, 4, v14")
    e("v_lshl_add_u32 v15, v7, 1, v13")
    e("v_lshlrev_b32 v15, 2, v15")
    e(f"s_lshl_b32 s4, s{HW}, 8")
    e("v_add_u32 v15, s4, v15")
    e("v_and_b32 v7, 1, v0")
    e("v_lshlrev_b32 v7, 9, v7")
    e("v_lshl_add_u32 v7, v9, 5, v7")
    e("v_lshlrev_b32 v10, 15, v9")
    e("v_lshl_add_u32 v10, v8, 4, v10")
    e("v_lshl_add_u32 v11, v13, 4, v8")
    e("v_lshlrev_b32 v11, 2, v11")
    e(f"s_lshl_b32 s4, s{HW}, 7")
    e("v_add_u32 v11, s4, v11")
    e("s_waitcnt lgkmcnt(0)")
    mk_tag(EP)
    e(f"v_mov_b32 v65, s{TAG}")
    e(f"v_mov_b32 v67, s{TAG}")
    e(f"v_mov_b32 v69, s{TAG}")
    e(f"v_mov_b32 v71, s{TAG}")
    e("s_barrier")
    e(f"ds_read_b128 v[16:19], v3 offset:{L_MC}")
    e(f"ds_read_b128 v[20:23], v3 offset:{L_MC+16}")
    e(f"ds_read_b128 v[24:27], v3 offset:{L_L}")
    e(f"ds_read_b128 v[28:31], v3 offset:{L_L+16}")
    for sw in range(8):
        e(f"ds_read2st64_b32 v[{32+2*sw}:{33+2*sw}], v12 offset0:{8*sw} offset1:{8*sw+1}")
    e("s_waitcnt lgkmcnt(10)")
    e("v_max3_f32 v68, v16, v17, v18")
    e("v_max3_f32 v70, v19, v20, v21")
    e("v_max3_f32 v68, v68, v22, v23")
    e("v_max_f32 v68, v68, v70")
    for k in range(8):
        e(f"v_sub_f32 v{16+k}, v{16+k}, v68")
    for k in range(8):
        e(f"v_exp_f32 v{16+k}, v{16+k}")
    e("s_waitcnt lgkmcnt(0)")
    e("v_mul_f32 v64, v16, v32")
    e("v_mul_f32 v66, v16, v33")
    e("v_mul_f32 v70, v16, v24")
    for k in range(1, 8):
        e(f"v_fmac_f32 v64, v{16+k}, v{32+2*k}")
        e(f"v_fmac_f32 v66, v{16+k}, v{33+2*k}")
        e(f"v_fmac_f32 v70, v{16+k}, v{24+k}")
    e(f"buffer_store_dwordx4 v[64:67], v122, {srd(WS)}, s72 offen sc1")
    e("s_mov_b64 exec, 1")
    e(f"buffer_store_dwordx4 v[68:71], v101, {srd(WS)}, s73 offen sc1")
    e("s_mov_b64 exec, -1")
    e(f"s_cmp_lg_u32 s{HW}, 3")
    e("s_cbranch_scc1 L_wo_skip")
    for i in range(16):
        r = 192 + 4 * i
        e(f"ds_read_b128 v[{r}:{r+3}], v122 offset:{L_WO+1024*i}")
        if i == 7:
            e("s_waitcnt lgkmcnt(4)")
    e("L_wo_skip:")
    stamp(5)
    poll([(f"buffer_load_dwordx4 v[16:19], v14, {srd(WS)}, s74 offen sc1", (17, 19))] +
         [(f"buffer_load_dwordx4 v[{20+4*i}:{23+4*i}], v4, {srd(WS)}, s{98+i} offen sc1", (21 + 4 * i, 23 + 4 * i)) for i in range(4)],
         "L_ppoll", tsleep)
    e("v_mov_b32 v17, v16")
    for s in (8, 4, 2, 1):
        e(f"v_max_f32_dpp v17, v17, v17 row_ror:{s} {DPPM}")
    e("v_sub_f32 v16, v16, v17")
    e("v_exp_f32 v16, v16")
    e("v_mul_f32 v18, v16, v18")
    for s in (8, 4, 2, 1):
        e(f"v_add_f32_dpp v18, v18, v18 row_ror:{s} {DPPM}")
    e("v_rcp_f32 v18, v18")
    e("v_mul_f32 v16, v16, v18")
    e(f"v_mul_f32_dpp v36, v16, v20 row_newbcast:0 {DPPM}")
    e(f"v_mul_f32_dpp v37, v16, v22 row_newbcast:0 {DPPM}")
    for i in range(1, 4):
        e(f"v_fmac_f32_dpp v36, v16, v{20+4*i} row_newbcast:{2*i} {DPPM}")
        e(f"v_fmac_f32_dpp v37, v16, v{22+4*i} row_newbcast:{2*i} {DPPM}")
    e("v_permlane32_swap_b32 v36, v37")
    e("v_add_f32 v36, v36, v37")
    e(f"ds_write_b32 v15, v36 offset:{L_OP}")
    e("s_waitcnt lgkmcnt(0)")
    stamp(6)
    e("s_barrier")
    e(f"s_cmp_lg_u32 s{HW}, 3")
    e("s_cbranch_scc1 L_h6_skip")
    for s in range(2):
        for w in range(2):
            for c in range(2):
                r = 32 + 16 * s + 8 * w + 4 * c
                e(f"ds_read_b128 v[{r}:{r+3}], v7 offset:{L_OP+128*s+256*w+16*c}")
    e("s_mov_b32 s78, 0xcccccccc")
    e("s_mov_b32 s79, 0xcccccccc")
    e("s_mov_b32 s80, 0xf0f0f0f0")
    e("s_mov_b32 s81, 0xf0f0f0f0")
    e("s_mov_b32 s82, 0xff00ff00")
    e("s_mov_b32 s83, 0xff00ff00")
    e("s_waitcnt lgkmcnt(0)")
    for s in range(2):
        for k in range(4):
            r = 32 + 16 * s + 2 * k
            e(f"v_pk_add_f32 v[{r}:{r+1}], v[{r}:{r+1}], v[{r+8}:{r+9}]")
    for s in range(2):
        for k in range(4):
            r = 32 + 16 * s + 2 * k
            e(f"v_cvt_pk_bf16_f32 v{16+4*s+k}, v{r}, v{r+1}")
    for s in range(2):
        for jj in range(8):
            d = 128 + 4 * jj
            c = "0" if s == 0 else f"v[{d}:{d+3}]"
            w = 192 + 4 * (8 * s + jj)
            e(f"v_mfma_f32_16x16x32_bf16 v[{d}:{d+3}], v[{w}:{w+3}], v[{16+4*s}:{19+4*s}], {c}")
    for k in range(4):
        for r in range(4):
            e(f"v_cndmask_b32_e64 v{160+4*k+r}, v{128+8*k+r}, v{132+8*k+r}, s[78:79]")
    for k in range(2):
        for r in range(4):
            e(f"v_cndmask_b32_e64 v{176+4*k+r}, v{160+8*k+r}, v{164+8*k+r}, s[80:81]")
    for r in range(4):
        e(f"v_cndmask_b32_e64 v{64+2*r}, v{176+r}, v{180+r}, s[82:83]")
    e(f"buffer_store_dwordx4 v[64:67], v10, {srd(WS)}, s75 offen sc1")
    e(f"buffer_store_dwordx4 v[68:71], v10, {srd(WS)}, s76 offen sc1")
    e("L_h6_skip:")
    e("s_lshr_b32 s4, s2, 5")
    e("s_cmp_lg_u32 s4, 4")
    e("s_cbranch_scc1 L_h_exit")
    e("v_bfe_u32 v16, v0, 1, 3")
    e("v_bfe_u32 v17, v0, 4, 1")
    e("v_lshl_add_u32 v16, v17, 3, v16")
    e("v_and_b32 v17, 1, v0")
    e("v_lshlrev_b32 v118, 2, v16")
    e("v_lshl_add_u32 v118, v17, 6, v118")
    e("v_lshlrev_b32 v119, 1, v16")
    e("v_lshl_add_u32 v119, v17, 10, v119")
    e(f"ds_read_b32 v116, v118 offset:{L_G}")
    e(f"ds_read_b32 v117, v118 offset:{L_X}")
    poll([(f"buffer_load_dwordx4 v[{20+4*i}:{23+4*i}], v122, {srd(WS)}, s77 offen offset:{1024*i} sc1", (21 + 4 * i, 23 + 4 * i)) for i in range(4)],
         "L_spoll", tsleep)
    e("v_add_f32 v20, v20, v24")
    e("v_add_f32 v22, v22, v26")
    e("v_add_f32 v28, v28, v32")
    e("v_add_f32 v30, v30, v34")
    e("v_add_f32 v20, v20, v28")
    e("v_add_f32 v22, v22, v30")
    e("v_permlane32_swap_b32 v20, v22")
    e("v_add_f32 v20, v20, v22")
    e("v_mov_b32 v22, v20")
    e("v_permlane16_swap_b32 v20, v22")
    e("v_add_f32 v20, v20, v22")
    e(f"ds_write_b32 v11, v20 offset:{L_SP}")
    e("s_waitcnt lgkmcnt(0)")
    e("s_barrier")
    e(f"s_cmp_lg_u32 s{HW}, 0")
    e("s_cbranch_scc1 L_h_exit")
    e("s_mov_b32 exec_hi, 0")
    e("v_lshlrev_b32 v16, 2, v0")
    e(f"v_add_u32 v16, {L_SP}, v16")
    e("ds_read2_b32 v[20:21], v16 offset0:0 offset1:32")
    e("ds_read2_b32 v[22:23], v16 offset0:64 offset1:96")
    e("s_waitcnt lgkmcnt(0)")
    e("v_pk_add_f32 v[20:21], v[20:21], v[22:23]")
    e("v_add_f32 v20, v20, v21")
    bfr(20)
    e("v_mul_f32 v20, v20, v116")
    bfr(20)
    e("v_add_f32 v20, v20, v117")
    e("v_cvt_pk_bf16_f32 v20, v20, v20")
    e(f"buffer_store_short v20, v119, {srd(OUT)}, s95 offen")
    e("s_cmp_lg_u32 s2, 128")
    e("s_cbranch_scc1 L_h_exit")
    e("s_mov_b64 exec, 1")
    e(f"buffer_store_dword v65, v101, {srd(WS)}, 0 offen offset:4")
    e("L_h_exit:")
    stamp(7)
    prof_out()
    e("L_end:")
    e("s_endpgm")

    n = a.fix_hazards()
    head = open("recurrent_scan__gqa_block_cached__mixer_channel_mlp__decode.s.ref").read().split("\n")
    lead = []
    for ln in head:
        if not ln.startswith(";"):
            break
        if "@launch" in ln and ln.startswith("; @launch"):
            lead.append(f"; @launch grid=(256,1,1) block=(512,1,1) lds={LDS_SIZE}")
        else:
            lead.append(ln)
    out = "\n".join(lead) + "\n"
    out += '.amdgcn_target "amdgcn-amd-amdhsa--gfx950"\n.text\n'
    out += f".globl {NAME}\n.p2align 8\n.type {NAME},@function\n"
    out += a.text()
    out += '.section .rodata,"a"\n.p2align 6\n'
    out += f".amdhsa_kernel {NAME}\n"
    out += "  .amdhsa_next_free_vgpr 256\n  .amdhsa_next_free_sgpr 102\n  .amdhsa_accum_offset 256\n"
    out += "  .amdhsa_group_segment_fixed_size 0\n  .amdhsa_kernarg_size 104\n  .amdhsa_user_sgpr_count 2\n"
    out += "  .amdhsa_user_sgpr_kernarg_segment_ptr 1\n  .amdhsa_system_sgpr_workgroup_id_x 1\n.end_amdhsa_kernel\n"
    return out, n

if __name__ == "__main__":
    kw = eval("dict(" + (sys.argv[2] if len(sys.argv) > 2 else "") + ")")
    txt, n = gen(**kw)
    path = sys.argv[1] if len(sys.argv) > 1 else "k2.s"
    open(path, "w").write(txt)
    print("wrote", path, "nops inserted:", n, "bytes:", len(txt))
```

```python
import sys, struct, math
sys.path.insert(0, "dev")
from asmlib import Asm

NAME = "recurrent_scan__gqa_block_cached__mixer_channel_mlp__decode_kernel"

def f2u(x):
    return struct.unpack("<I", struct.pack("<f", x))[0]
def hx(x):
    return f"0x{x & 0xffffffff:08x}"

QG, HG, MG, PG, MLG, SG, PROFB = 0x1000, 0x10000, 0x18000, 0x20000, 0x120000, 0x130000, 0x200000
CG = 0x1C0000
WS_SIZE = 0x300000
L_ACC, L_WO, L_MC, L_L, L_CNT, L_Q = 0x0000, 0x4000, 0x8000, 0x8080, 0x8100, 0x8200
L_P, L_G, L_X, L_OP, L_SP = 0x8600, 0x8E00, 0x8E80, 0x8F00, 0x9300
LDS_SIZE = 0x9500
NWAVE = 8

C_SC = (128 ** -0.5) * math.log2(math.e)
DPPM = "row_mask:0xf bank_mask:0xf"

def gen(prof=False, spin=1 << 16, W=8, G=4, NH=62, qsleep=2, tsleep=1, gsleep=16, kpol='nt', vpol='nt', trace=False,
        wpol='', opol='', PW=None, E=8, hprio=0, pad=0, fl=True, eb=False, gl=None, cstr=4096, ilv=False, P=0, par=0):
    pool = P > 0
    assert not (pool and (gl or ilv))
    NL = (1024 - P) // 8 - NH
    MODE, WB = 96, 6
    PW = PW or W
    a = Asm()
    e = a.e

    OFF = [24, 25, 26]; REM, VP, LIM, CL, LIME = 27, 28, 29, 30, 97
    SC, NSC, PL, PH, TAG, HW, EP = 32, 33, 34, 35, 36, 37, 39
    K, V, WS, X, WR, BR, WO, OUT = 40, 44, 48, 52, 56, 60, 64, 68
    def srd(r):
        return f"s[{r}:{r+3}]"

    def stamp(k):
        if prof:
            e(f"s_memrealtime s[{8+2*k}:{9+2*k}]")
            e("s_waitcnt lgkmcnt(0)")

    def prof_out():
        if not prof:
            return
        e("s_mov_b64 exec, -1")
        e("s_lshl_b32 s4, s2, 3")
        e("s_add_u32 s4, s4, s3")
        e("s_lshl_b32 s4, s4, 5")
        e(f"s_add_u32 s4, s4, {PROFB}")
        for k in range(8):
            e(f"v_mov_b32 v{8+k}, s{8+2*k}")
        e("v_mov_b32 v7, 0")
        e("s_mov_b64 exec, 1")
        e(f"buffer_store_dwordx4 v[8:11], v7, {srd(WS)}, s4 offen")
        e(f"buffer_store_dwordx4 v[12:15], v7, {srd(WS)}, s4 offen offset:16")
        e("s_waitcnt vmcnt(0)")

    def bar0():
        if not eb:
            e("s_barrier")

    def mk_tag(src):
        e(f"s_mul_i32 s{TAG}, s{src}, 0x9E3779B1")
        e(f"s_add_u32 s{TAG}, s{TAG}, 0x7F4A7C15")

    def set_srd(r, ptr, size):
        e(f"s_mov_b32 s{r}, s{ptr}")
        e(f"s_mov_b32 s{r+1}, s{ptr+1}")
        e(f"s_mov_b32 s{r+2}, {size}")
        e(f"s_mov_b32 s{r+3}, 0x00020000")

    def unpack(dst, src):
        e(f"v_lshlrev_b32 v{dst}, 16, v{src}")
        e(f"v_and_b32 v{dst+1}, 0xffff0000, v{src}")

    def half_sum(r, t):
        for s in (8, 4, 2, 1):
            e(f"v_add_f32_dpp v{r}, v{r}, v{r} row_ror:{s} {DPPM}")
        e(f"v_mov_b32 v{t}, v{r}")
        e(f"v_permlane16_swap_b32 v{r}, v{t}")
        e(f"v_add_f32 v{r}, v{r}, v{t}")

    def tree16(dst, src, tmp):
        for k in range(4):
            e(f"v_pk_add_f32 v[{tmp+2*k}:{tmp+2*k+1}], v[{src+4*k}:{src+4*k+1}], v[{src+4*k+2}:{src+4*k+3}]")
        e(f"v_pk_add_f32 v[{tmp}:{tmp+1}], v[{tmp}:{tmp+1}], v[{tmp+2}:{tmp+3}]")
        e(f"v_pk_add_f32 v[{tmp+4}:{tmp+5}], v[{tmp+4}:{tmp+5}], v[{tmp+6}:{tmp+7}]")
        e(f"v_pk_add_f32 v[{tmp}:{tmp+1}], v[{tmp}:{tmp+1}], v[{tmp+4}:{tmp+5}]")
        e(f"v_add_f32 v{dst}, v{tmp}, v{tmp+1}")

    def bfr(r):
        e(f"v_cvt_pk_bf16_f32 v{r}, v{r}, v{r}")
        e(f"v_and_b32 v{r}, 0xffff0000, v{r}")

    def ln_stats(XF, MEAN, RS, TMP):
        tree16(MEAN, XF, TMP)
        half_sum(MEAN, TMP)
        e(f"v_mul_f32 v{MEAN}, {hx(f2u(1/512))}, v{MEAN}")
        D = TMP + 8
        e(f"v_mov_b32 v{TMP+1}, v{MEAN}")
        e(f"v_mov_b32 v{TMP}, v{MEAN}")
        for k in range(8):
            e(f"v_pk_add_f32 v[{D+2*k}:{D+2*k+1}], v[{XF+2*k}:{XF+2*k+1}], v[{TMP}:{TMP+1}] neg_lo:[0,1] neg_hi:[0,1]")
        for k in range(8):
            e(f"v_pk_mul_f32 v[{D+2*k}:{D+2*k+1}], v[{D+2*k}:{D+2*k+1}], v[{D+2*k}:{D+2*k+1}]")
        tree16(RS, D, TMP)
        half_sum(RS, TMP)
        e(f"v_mul_f32 v{RS}, {hx(f2u(1/512))}, v{RS}")
        bfr(MEAN)
        bfr(RS)
        e(f"v_add_f32 v{RS}, {hx(f2u(1e-5))}, v{RS}")
        bfr(RS)
        e(f"v_sqrt_f32 v{RS}, v{RS}")
        bfr(RS)
        e(f"v_rcp_f32 v{RS}, v{RS}")

    def norm_all(XF, m, rs, PK):
        for k in range(16):
            e(f"v_sub_f32 v{XF+k}, v{XF+k}, v{m}")
        for k in range(8):
            e(f"v_cvt_pk_bf16_f32 v{PK+k}, v{XF+2*k}, v{XF+2*k+1}")
        for k in range(8):
            unpack(XF + 2 * k, PK + k)
        for k in range(16):
            e(f"v_mul_f32 v{XF+k}, v{rs}, v{XF+k}")
        for k in range(8):
            e(f"v_cvt_pk_bf16_f32 v{PK+k}, v{XF+2*k}, v{XF+2*k+1}")

    def wperm(dst, r0, r1):
        for c in range(8):
            sel = f"s{PL}" if (c & 1) == 0 else f"s{PH}"
            e(f"v_perm_b32 v{dst+c}, v{r1+(c>>1)}, v{r0+(c>>1)}, {sel}")

    ACC = 80
    def dots(wp, x0, x1, first):
        for bb, xr in ((0, x0), (1, x1)):
            for c in range(8):
                d = ACC + 8 * bb + c
                if first:
                    e(f"v_dot2_f32_bf16 v{d}, v{wp+c}, v{xr}, 0")
                else:
                    e(f"v_dot2c_f32_bf16 v{d}, v{wp+c}, v{xr}")

    def red_addr():
        e("v_lshrrev_b32 v120, 5, v0")
        e("v_lshlrev_b32 v120, 8, v120")
        e("v_bfe_u32 v123, v0, 4, 1")
        e("v_lshl_add_u32 v120, v123, 4, v120")
        e("v_and_b32 v123, 7, v0")
        e("v_lshl_add_u32 v120, v123, 5, v120")
        e(f"s_lshl_b32 s5, s{HW}, 9")
        e("v_add_u32 v120, s5, v120")
        e("v_lshlrev_b32 v122, 4, v0")
        e("v_mov_b32 v121, 1")
        e("v_mov_b32 v101, 0")

    def reduce_publish(lab):
        for k in range(8):
            e(f"v_permlane32_swap_b32 v{ACC+k}, v{ACC+8+k}")
        for k in range(4):
            e(f"v_pk_add_f32 v[{ACC+2*k}:{ACC+2*k+1}], v[{ACC+2*k}:{ACC+2*k+1}], v[{ACC+8+2*k}:{ACC+9+2*k}]")
        for k in range(4):
            e(f"v_permlane16_swap_b32 v{ACC+k}, v{ACC+4+k}")
        for k in range(2):
            e(f"v_pk_add_f32 v[{ACC+2*k}:{ACC+2*k+1}], v[{ACC+2*k}:{ACC+2*k+1}], v[{ACC+4+2*k}:{ACC+5+2*k}]")
        for k in range(4):
            e(f"v_add_f32_dpp v{ACC+k}, v{ACC+k}, v{ACC+k} row_ror:8 {DPPM}")
        e("s_mov_b32 exec_lo, 0x00ff00ff")
        e("s_mov_b32 exec_hi, 0x00ff00ff")
        e(f"ds_write_b128 v120, v[{ACC}:{ACC+3}] offset:{L_P}")
        e("s_mov_b64 exec, 1")
        e(f"ds_add_rtn_u32 v64, v101, v121 offset:{L_CNT+4}")
        e("s_waitcnt lgkmcnt(0)")
        e("v_readfirstlane_b32 s4, v64")
        e("s_mov_b64 exec, -1")
        e("s_cmp_lg_u32 s4, 3")
        e(f"s_cbranch_scc1 {lab}")
        e("s_mov_b32 exec_hi, 0")
        for w in range(4):
            e(f"ds_read_b128 v[{64+4*w}:{67+4*w}], v122 offset:{L_P+512*w}")
        e("s_waitcnt lgkmcnt(0)")
        for k in range(2):
            e(f"v_pk_add_f32 v[{64+2*k}:{65+2*k}], v[{64+2*k}:{65+2*k}], v[{68+2*k}:{69+2*k}]")
            e(f"v_pk_add_f32 v[{72+2*k}:{73+2*k}], v[{72+2*k}:{73+2*k}], v[{76+2*k}:{77+2*k}]")
        for k in range(2):
            e(f"v_pk_add_f32 v[{64+2*k}:{65+2*k}], v[{64+2*k}:{65+2*k}], v[{72+2*k}:{73+2*k}]")

    def poll(loads, lab, sleep):
        n = len(loads)
        P = [78 + 2 * i for i in range(n)]
        assert n <= 7
        for p in P:
            e(f"s_mov_b64 s[{p}:{p+1}], -1")
        e(f"s_mov_b32 s92, {spin}")
        e(f"{lab}_top:")
        for i, (txt, tags) in enumerate(loads):
            e(f"s_mov_b64 exec, s[{P[i]}:{P[i]+1}]")
            e(f"s_cbranch_execz {lab}_s{i}")
            e(txt)
            e(f"{lab}_s{i}:")
        e("s_waitcnt vmcnt(0)")
        for i, (txt, tags) in enumerate(loads):
            e(f"s_mov_b64 exec, s[{P[i]}:{P[i]+1}]")
            e(f"v_cmp_ne_u32_e64 s[{P[i]}:{P[i]+1}], v{tags[0]}, s{TAG}")
            for tg in tags[1:]:
                e(f"v_cmp_ne_u32_e64 vcc, v{tg}, s{TAG}")
                e(f"s_or_b64 s[{P[i]}:{P[i]+1}], s[{P[i]}:{P[i]+1}], vcc")
        e("s_mov_b64 exec, -1")
        e(f"s_mov_b64 s[4:5], s[{P[0]}:{P[0]+1}]")
        for p in P[1:]:
            e(f"s_or_b64 s[4:5], s[4:5], s[{p}:{p+1}]")
        e("s_cmp_eq_u64 s[4:5], 0")
        e(f"s_cbranch_scc1 {lab}_done")
        if sleep:
            e(f"s_sleep {sleep}")
        e("s_sub_u32 s92, s92, 1")
        e("s_cmp_lg_u32 s92, 0")
        e(f"s_cbranch_scc1 {lab}_top")
        e(f"{lab}_done:")

    e(f"{NAME}:")
    e("s_cmp_ge_u32 s2, 256")
    e("s_cbranch_scc1 L_end")
    if pad:
        e("s_memrealtime s[8:9]")
    e("s_load_dwordx16 s[72:87], s[0:1], 0")
    e("s_load_dwordx8 s[88:95], s[0:1], 64")
    e(f"s_load_dwordx2 s[{WS}:{WS+1}], s[0:1], 96")
    e("v_lshrrev_b32 v1, 6, v0")
    e("v_and_b32 v0, 63, v0")
    e("s_bfe_u32 s4, s2, 0x40003")
    e("v_readfirstlane_b32 s3, v1")
    e("s_lshl_b32 s4, s4, 23")
    if gl or pool:
        e(f"s_mov_b32 s{LIM}, {1<<23}")
    elif ilv:
        e("s_and_b32 s5, s2, 7")
        e("s_lshl_b32 s5, s5, 14")
        e("s_add_u32 s4, s4, s5")
        e("s_lshr_b32 s5, s2, 7")
        e("s_lshl_b32 s5, s5, 13")
        e("s_add_u32 s4, s4, s5")
        e(f"s_mov_b32 s{LIM}, {(1<<23)-15*8192}")
    else:
        e("s_and_b32 s5, s2, 7")
        e("s_lshl_b32 s5, s5, 20")
        e("s_add_u32 s4, s4, s5")
        e("s_cmp_ge_u32 s2, 128")
        e(f"s_cselect_b32 s5, {NH*8192}, 0")
        e(f"s_mov_b32 s{LIM}, {NH*8192}")
        e(f"s_cselect_b32 s{LIM}, {NL*8192}, s{LIM}")
        e("s_add_u32 s4, s4, s5")
    e(f"s_mov_b32 s{K+2}, s{LIM}")
    e(f"s_mov_b32 s{K+3}, 0x00020000")
    e(f"s_mov_b32 s{V+2}, s{LIM}")
    e(f"s_mov_b32 s{V+3}, 0x00020000")
    e(f"s_mov_b32 s{WS+2}, {WS_SIZE}")
    e(f"s_mov_b32 s{WS+3}, 0x00020000")
    e(f"s_mov_b32 s{SC}, {hx(f2u(C_SC))}")
    e(f"s_mov_b32 s{NSC}, {hx(f2u(-C_SC))}")
    e(f"s_mov_b32 s{PL}, 0x05040100")
    e(f"s_mov_b32 s{PH}, 0x07060302")
    e(f"s_mov_b32 s{OUT+2}, 2048")
    e(f"s_mov_b32 s{OUT+3}, 0x00020000")
    if prof:
        for k in range(8):
            e(f"s_mov_b32 s{8+2*k}, 0")
    if eb:
        e("v_and_b32 v100, 3, v0")
        e("v_lshlrev_b32 v100, 2, v100")
        e("v_mov_b32 v101, 0")
        e(f"ds_write_b32 v100, v101 offset:{L_CNT}")
    e("s_waitcnt lgkmcnt(0)")
    if eb:
        e("s_barrier")
    e(f"s_add_u32 s{K}, s74, s4")
    e(f"s_addc_u32 s{K+1}, s75, 0")
    e(f"s_add_u32 s{V}, s76, s4")
    e(f"s_addc_u32 s{V+1}, s77, 0")
    e(f"s_mov_b64 s[{OUT}:{OUT+1}], s[92:93]")
    e("s_cmp_ge_u32 s3, 4")
    e("s_cbranch_scc1 L_helper")
    e("s_cmp_eq_u32 s3, 0")
    e("s_cbranch_scc1 L_w0")
    bar0()
    stamp(0)

    e("L_stream:")
    stamp(1)
    e("v_and_b32 v5, 15, v0")
    e("v_lshrrev_b32 v6, 4, v0")
    e("v_lshlrev_b32 v3, 10, v6")
    e("v_lshl_add_u32 v3, v5, 4, v3")
    e("v_add_u32 v4, 4096, v3")
    if gl:
        e("s_and_b32 s4, s2, 7")
        e("s_lshl_b32 s4, s4, 4")
        e("s_lshr_b32 s5, s2, 7")
        e("s_lshl_b32 s5, s5, 3")
        e("s_add_u32 s4, s4, s5")
        e("s_add_u32 s4, s4, s3")
        e(f"s_mul_i32 s{OFF[0]}, s4, 24576")
        e(f"s_add_u32 s{OFF[1]}, s{OFF[0]}, 8192")
        e(f"s_add_u32 s{OFF[2]}, s{OFF[0]}, 16384")
        e("s_bfe_u32 s4, s2, 0x40003")
        if gl == 'dbg':
            e(f"s_load_dwordx2 s[{WO}:{WO+1}], s[0:1], 88")
            e(f"s_mov_b32 s{WO+2}, 256")
            e(f"s_mov_b32 s{WO+3}, 0x00020000")
            e(f"s_lshl_b32 s{LIME}, s4, 4")
        else:
            e(f"s_mul_i32 s{LIME}, s4, {cstr}")
            e(f"s_add_u32 s{LIME}, s{LIME}, {CG}")
    else:
        e("s_mov_b64 exec, 1")
        for i in range(3):
            e(f"ds_add_rtn_u32 v{8+i}, v3, v4 offset:{L_CNT}")
        e("s_mov_b64 exec, -1")
    if pool:
        e("s_and_b32 s4, s2, 7")
        e(f"s_mul_i32 s{WB}, s4, {(NH+NL)*8192}")
        e("s_and_b32 s4, s2, 1")
        e(f"s_mul_i32 s4, s4, {2*par*8192}")
        e(f"s_add_u32 s{WB}, s{WB}, s4")
        e(f"s_sub_u32 s4, {par*8192}, s4")
        e(f"s_add_u32 s5, s4, {NH*8192}")
        e(f"s_add_u32 s4, s4, {NL*8192}")
        e("s_cmp_ge_u32 s2, 128")
        e(f"s_cselect_b32 s{LIM}, s4, s5")
        e("s_cselect_b32 s5, s5, 0")
        e(f"s_add_u32 s{WB}, s{WB}, s5")
        e(f"s_add_u32 s{LIM}, s{LIM}, s{WB}")
        e("s_bfe_u32 s4, s2, 0x40003")
        e(f"s_mul_i32 s{LIME}, s4, {cstr}")
        e(f"s_add_u32 s{LIME}, s{LIME}, {CG}")
        e(f"s_mov_b32 s{MODE}, 0")
    if hprio:
        e("s_setprio 0")
        e("s_cmp_lt_u32 s3, 4")
        e("s_cbranch_scc1 L_st_prio")
        e(f"s_setprio {hprio}")
        e("L_st_prio:")
    else:
        e("s_setprio 0")
    if fl:
        e("v_lshrrev_b32 v2, 3, v5")
        e("v_lshlrev_b32 v2, 6, v2")
        e("v_lshl_add_u32 v2, v6, 4, v2")
        e("v_and_b32 v1, 7, v5")
        e("v_lshl_add_u32 v1, v1, 8, v2")
        e("v_and_b32 v7, 3, v5")
        e("v_lshl_add_u32 v7, v7, 8, v2")
        e("v_add_u32 v2, 4096, v1")
    else:
        e("v_lshlrev_b32 v1, 8, v5")
        e("v_lshl_add_u32 v1, v6, 4, v1")
        e("v_add_u32 v2, 4096, v1")
        e("v_and_b32 v7, 3, v5")
        e("v_lshlrev_b32 v7, 8, v7")
        e("v_lshl_add_u32 v7, v6, 4, v7")
    e("v_mov_b32 v5, 0xff800000")
    e("v_mov_b32 v6, 0")
    e(f"s_mov_b32 s{REM}, 0")
    e(f"s_mov_b32 s{VP}, 0")
    if not gl and not pool:
        e(f"s_sub_u32 s{LIME}, s{LIM}, {E*8192*(16 if ilv else 1)}")
    if trace:
        e("s_mov_b32 s31, 0")
    if not gl:
        e("s_waitcnt lgkmcnt(0)")
        for i in range(3):
            e(f"v_readfirstlane_b32 s{OFF[i]}, v{8+i}")
    e(f"s_load_dword s{EP}, s[{WS}:{WS+1}], 4")
    if not gl:
        for i in range(3):
            if pool:
                e(f"s_lshl1_add_u32 s{OFF[i]}, s{OFF[i]}, s{WB}")
            else:
                e(f"s_lshl_b32 s{OFF[i]}, s{OFF[i]}, {5 if ilv else 1}")

    def gclaim():
        e("v_mov_b32 v7, 0x2000")
        e("s_mov_b64 exec, 1")
        e(f"buffer_atomic_add v7, off, {srd(WO if gl == 'dbg' else WS)}, s{LIME} sc0")
        e("s_mov_b64 exec, -1")

    def kload(slot, idx):
        kb = 64 + 64 * slot
        T, t = idx >> 2, idx & 3
        r = kb + 16 * T + 4 * t
        o = (2048 * (t >> 1) + 128 * (t & 1)) if fl else 64 * t
        e(f"buffer_load_dwordx4 v[{r}:{r+3}], v{1+T}, {srd(K)}, s{OFF[slot]} offen offset:{o} {kpol}")
    def vload(slot, i):
        r = 96 + 64 * slot + 4 * i
        e(f"buffer_load_dwordx4 v[{r}:{r+3}], v{3+(i>>2)}, {srd(V)}, s{OFF[slot]} offen offset:{256*(i&3)} {vpol}")
    def groups(fn, slot, lo, hi, w, first=False):
        for i in range(lo, hi):
            if (i % G) == 0 and not (first and i == lo):
                e(f"s_waitcnt vmcnt({w-G})")
            fn(slot, i)

    for i in range(3):
        if not gl:
            e(f"s_cmp_ge_u32 s{OFF[i]}, s{LIM}")
            e(f"s_cbranch_scc1 {'L_st_nowork' if i == 0 else 'L_st_pro_done'}")
        groups(kload, i, 0, 8, PW, first=(i == 0))
        if i == 0:
            for r in range(32, 64):
                e(f"v_mov_b32 v{r}, 0")
        groups(vload, i, 0, 8, PW)
        e(f"s_mov_b32 s{REM}, {i+1}")
    e("L_st_pro_done:")
    stamp(2)
    e(f"s_mov_b32 s{CL}, {spin}")
    e("s_mov_b64 exec, 1")
    e("L_qflag:")
    e(f"ds_read_b32 v8, v3 offset:{L_CNT+8}")
    e("s_waitcnt lgkmcnt(0)")
    e("v_readfirstlane_b32 s4, v8")
    e("s_cmp_lg_u32 s4, 0")
    e("s_cbranch_scc1 L_qflag_done")
    e("s_sleep 1")
    e(f"s_sub_u32 s{CL}, s{CL}, 1")
    e(f"s_cmp_lg_u32 s{CL}, 0")
    e("s_cbranch_scc1 L_qflag")
    e("L_qflag_done:")
    e("s_mov_b64 exec, -1")
    if fl:
        for t in range(2):
            e(f"ds_read_b128 v[{24+4*t}:{27+4*t}], v7 offset:{L_Q+128*t}")
    else:
        for t in range(4):
            e(f"ds_read_b128 v[{16+4*t}:{19+4*t}], v7 offset:{L_Q+64*t}")
    e("s_waitcnt lgkmcnt(0)")
    if gl:
        gclaim()
    stamp(3)

    e("L_st_loop:")
    for slot in range(3):
        kb = 64 + 64 * slot
        vb = kb + 32
        vs = (slot + 2) % 3
        H1 = 8 if G == 8 else 4
        e(f"s_cmp_eq_u32 s{VP}, 0")
        e(f"s_cbranch_scc1 L_st_nova{slot}")
        groups(vload, vs, 0, H1, W)
        e(f"L_st_go{slot}:")
        if fl:
            for H in range(2):
                for Gq in range(4):
                    d = 8 + 4 * Gq
                    c = "0" if H == 0 else f"v[{d}:{d+3}]"
                    r = kb + 8 * Gq + 4 * H
                    e(f"v_mfma_f32_16x16x32_bf16 v[{d}:{d+3}], v[{r}:{r+3}], v[{24+4*H}:{27+4*H}], {c}")
            for r in range(4):
                e(f"v_permlane32_swap_b32 v{8+r}, v{12+r}")
            for r in range(4):
                e(f"v_permlane32_swap_b32 v{16+r}, v{20+r}")
            for r in range(4):
                e(f"v_add_f32_dpp v{8+r}, v{12+r}, v{8+r} row_ror:8 {DPPM}")
            for r in range(4):
                e(f"v_add_f32_dpp v{12+r}, v{20+r}, v{16+r} row_ror:8 {DPPM}")
        else:
            for t in range(4):
                for T in range(2):
                    d = 8 + 4 * T
                    c = "0" if t == 0 else f"v[{d}:{d+3}]"
                    r = kb + 16 * T + 4 * t
                    e(f"v_mfma_f32_16x16x32_bf16 v[{d}:{d+3}], v[{r}:{r+3}], v[{16+4*t}:{19+4*t}], {c}")
        t0, t1, al, nm = kb + 28, kb + 29, kb + 30, kb + 31
        e(f"v_max3_f32 v{t0}, v8, v9, v10")
        e(f"v_max3_f32 v{t1}, v12, v13, v14")
        e(f"v_max3_f32 v{t0}, v{t0}, v11, v5")
        e(f"v_max3_f32 v{t0}, v{t0}, v{t1}, v15")
        e(f"v_mov_b32 v{t1}, v{t0}")
        e(f"v_permlane32_swap_b32 v{t0}, v{t1}")
        e(f"v_max_f32 v{t0}, v{t0}, v{t1}")
        e(f"v_mov_b32 v{t1}, v{t0}")
        e(f"v_permlane16_swap_b32 v{t0}, v{t1}")
        e(f"v_max_f32 v{t0}, v{t0}, v{t1}")
        e(f"v_sub_f32 v{t1}, v5, v{t0}")
        e(f"v_mul_f32 v{nm}, s{NSC}, v{t0}")
        e(f"v_mul_f32 v{t1}, s{SC}, v{t1}")
        e(f"v_mov_b32 v5, v{t0}")
        e(f"v_exp_f32 v{al}, v{t1}")
        for i in range(8):
            e(f"v_fma_f32 v{8+i}, v{8+i}, s{SC}, v{nm}")
        for i in range(8):
            e(f"v_exp_f32 v{8+i}, v{8+i}")
        for k in range(16):
            e(f"v_pk_mul_f32 v[{32+2*k}:{33+2*k}], v[{32+2*k}:{33+2*k}], v[{al}:{al+1}] op_sel_hi:[1,0]")
        e(f"v_mul_f32 v6, v6, v{al}")
        e(f"v_add_f32 v{t0}, v8, v9")
        e(f"v_add_f32 v{t1}, v10, v11")
        e(f"v_add_f32 v6, v6, v12")
        e(f"v_add_f32 v{t0}, v{t0}, v13")
        e(f"v_add_f32 v{t1}, v{t1}, v14")
        e(f"v_add_f32 v6, v6, v15")
        e(f"v_add_f32 v{t0}, v{t0}, v{t1}")
        e("v_cvt_pk_bf16_f32 v8, v8, v9")
        e("v_cvt_pk_bf16_f32 v9, v10, v11")
        e("v_cvt_pk_bf16_f32 v10, v12, v13")
        e("v_cvt_pk_bf16_f32 v11, v14, v15")
        e(f"v_add_f32 v6, v6, v{t0}")
        if H1 < 8:
            e(f"s_cmp_eq_u32 s{VP}, 0")
            e(f"s_cbranch_scc1 L_st_novb{slot}")
            if gl:
                assert G == 4
                e(f"s_waitcnt vmcnt({W-G})")
                gclaim()
                groups(vload, vs, H1, 8, W, first=True)
            elif pool:
                assert G == 4
                e(f"s_waitcnt vmcnt({W-G})")
                e(f"s_cmp_eq_u32 s{MODE}, 0")
                e(f"s_cbranch_scc1 L_st_nog{slot}")
                gclaim()
                e(f"L_st_nog{slot}:")
                groups(vload, vs, H1, 8, W, first=True)
            else:
                groups(vload, vs, H1, 8, W)
            e(f"L_st_novb{slot}:")
        e(f"s_cmp_lg_u32 s{REM}, 1")
        e(f"s_cbranch_scc1 L_st_notlast{slot}")
        e("s_waitcnt vmcnt(0)")
        e(f"L_st_notlast{slot}:")
        def perms(jj):
            sel = f"s{PL}" if (jj & 1) == 0 else f"s{PH}"
            for q in range(4):
                e(f"v_perm_b32 v{kb+4*jj+q}, v{vb+4*(2*q+1)+(jj>>1)}, v{vb+4*(2*q)+(jj>>1)}, {sel}")
        def pv(jj):
            d = 32 + 4 * jj
            e(f"v_mfma_f32_16x16x32_bf16 v[{d}:{d+3}], v[{kb+4*jj}:{kb+4*jj+3}], v[8:11], v[{d}:{d+3}]")
        perms(0)
        for jj in range(8):
            if jj + 1 < 8:
                perms(jj + 1)
            pv(jj)
        e(f"s_sub_u32 s{REM}, s{REM}, 1")
        e(f"s_cmp_eq_u32 s{REM}, 0")
        e("s_cbranch_scc1 L_st_done")
        if gl:
            e(f"s_cmp_lg_u32 s{REM}, 2")
            e(f"s_cbranch_scc1 L_st_nok{slot}")
            e(f"s_waitcnt vmcnt({min(W-G, 4)})")
            if slot == 0:
                e(f"s_cmp_lg_u32 s{VP}, 0")
                e("s_cbranch_scc1 L_st_claim0")
                e("s_waitcnt vmcnt(0)")
                e("L_st_claim0:")
            e(f"v_readfirstlane_b32 s{OFF[slot]}, v7")
            e(f"s_mov_b32 s{VP}, 0")
            if gl == 'dbg':
                e(f"s_add_u32 s{OFF[slot]}, s{OFF[slot]}, {384*8192}")
            e(f"s_cmp_ge_u32 s{OFF[slot]}, s{LIM}")
            e(f"s_cbranch_scc1 L_st_nok{slot}")
        elif pool:
            e(f"s_mov_b32 s{VP}, 0")
            e(f"s_cmp_lg_u32 s{REM}, 2")
            e(f"s_cbranch_scc1 L_st_nok{slot}")
            e(f"s_waitcnt vmcnt({min(W-G, 4)})")
            e(f"s_cmp_lg_u32 s{MODE}, 0")
            e(f"s_cbranch_scc1 L_st_g{slot}")
            e("s_mov_b64 exec, 1")
            e(f"ds_add_rtn_u32 v7, v3, v4 offset:{L_CNT}")
            e("s_mov_b64 exec, -1")
            e("s_waitcnt lgkmcnt(0)")
            e(f"v_readfirstlane_b32 s{CL}, v7")
            e(f"s_lshl1_add_u32 s{OFF[slot]}, s{CL}, s{WB}")
            e(f"s_cmp_ge_u32 s{OFF[slot]}, s{LIM}")
            e(f"s_cbranch_scc1 L_st_sw{slot}")
            e(f"L_st_k{slot}:")
        else:
            e(f"s_mov_b32 s{VP}, 0")
            e(f"s_cmp_lg_u32 s{REM}, 2")
            e(f"s_cbranch_scc1 L_st_nok{slot}")
            e(f"s_cmp_ge_u32 s{OFF[vs]}, s{LIME}")
            e(f"s_cbranch_scc1 L_st_claim{slot}")
            e(f"s_waitcnt vmcnt({W-G})")
            e(f"L_st_claim{slot}:")
            e("s_mov_b64 exec, 1")
            e(f"ds_add_rtn_u32 v7, v3, v4 offset:{L_CNT}")
            e("s_mov_b64 exec, -1")
            e("s_waitcnt lgkmcnt(0)")
            e(f"v_readfirstlane_b32 s{CL}, v7")
            e(f"s_lshl_b32 s{OFF[slot]}, s{CL}, {5 if ilv else 1}")
            e(f"s_cmp_ge_u32 s{OFF[slot]}, s{LIME}")
            e(f"s_cbranch_scc1 L_st_end{slot}")
        groups(kload, slot, 0, 8, W, first=True)
        e(f"s_mov_b32 s{VP}, 1")
        e(f"s_mov_b32 s{REM}, 3")
        e(f"L_st_nok{slot}:")
        if trace:
            e("s_memrealtime s[60:61]")
            e("s_mov_b32 m0, s31")
            e("s_add_u32 s31, s31, 1")
            e("s_waitcnt lgkmcnt(0)")
            e("v_writelane_b32 v0, s60, m0")
    e("s_branch L_st_loop")
    for slot in range(3):
        e(f"L_st_nova{slot}:")
        e("s_waitcnt vmcnt(32)")
        e(f"s_cmp_eq_u32 s{REM}, 3")
        e(f"s_cbranch_scc1 L_st_go{slot}")
        e("s_waitcnt vmcnt(16)")
        e(f"s_cmp_eq_u32 s{REM}, 2")
        e(f"s_cbranch_scc1 L_st_go{slot}")
        e("s_waitcnt vmcnt(8)")
        e(f"s_branch L_st_go{slot}")
        if gl:
            continue
        if pool:
            e(f"L_st_sw{slot}:")
            e(f"s_mov_b32 s{MODE}, 1")
            e(f"s_mov_b32 s{LIM}, {1<<23}")
            gclaim()
            e("s_waitcnt vmcnt(0)")
            e(f"L_st_g{slot}:")
            e(f"v_readfirstlane_b32 s{OFF[slot]}, v7")
            e(f"s_cmp_lt_u32 s{OFF[slot]}, s{LIM}")
            e(f"s_cbranch_scc1 L_st_k{slot}")
            e(f"s_branch L_st_nok{slot}")
            continue
        e(f"L_st_end{slot}:")
        e(f"s_cmp_ge_u32 s{OFF[slot]}, s{LIM}")
        e(f"s_cbranch_scc1 L_st_nok{slot}")
        for i in range(8):
            kload(slot, i)
        for i in range(8):
            vload(slot, i)
        e(f"s_mov_b32 s{REM}, 3")
        e(f"s_branch L_st_nok{slot}")

    if not gl:
        e("L_st_nowork:")
        for r in range(32, 64):
            e(f"v_mov_b32 v{r}, 0")
    e("L_st_done:")
    stamp(4)
    if trace:
        e("v_mov_b32 v8, v0")
        e("v_mbcnt_lo_u32_b32 v0, -1, 0")
        e("v_mbcnt_hi_u32_b32 v0, -1, v0")
        e("v_writelane_b32 v8, s31, 63")
        e("s_lshl_b32 s4, s2, 3")
        e("s_add_u32 s4, s4, s3")
        e("s_lshl_b32 s4, s4, 8")
        e(f"s_add_u32 s4, s4, {PROFB+0x20000}")
        e("v_lshlrev_b32 v9, 2, v0")
        e(f"buffer_store_dword v8, v9, {srd(WS)}, s4 offen")
    e("v_mov_b32 v7, v6")
    e("v_permlane32_swap_b32 v6, v7")
    e("v_add_f32 v6, v6, v7")
    e("v_mov_b32 v7, v6")
    e("v_permlane16_swap_b32 v6, v7")
    e("v_add_f32 v6, v6, v7")
    e(f"v_mul_f32 v5, s{SC}, v5")
    e("v_and_b32 v1, 15, v0")
    e("v_lshrrev_b32 v2, 4, v0")
    e("v_lshl_add_u32 v2, v1, 2, v2")
    e("v_lshlrev_b32 v2, 4, v2")
    e("s_lshl_b32 s4, s3, 11")
    e("v_add_u32 v2, s4, v2")
    e("s_lshl_b32 s4, s3, 2")
    e("v_lshl_add_u32 v1, v1, 5, s4")
    e("s_mov_b32 exec_lo, 0x000f000f")
    e("s_mov_b32 exec_hi, 0x000f000f")
    for jj in range(8):
        e(f"ds_write_b128 v2, v[{32+4*jj}:{35+4*jj}] offset:{L_ACC+256*jj}")
    e("s_mov_b64 exec, 15")
    e(f"ds_write_b32 v1, v5 offset:{L_MC}")
    e(f"ds_write_b32 v1, v6 offset:{L_L}")
    e("s_mov_b64 exec, -1")
    e("s_cmp_ge_u32 s3, 4")
    e("s_cbranch_scc1 L_tail")
    e("s_waitcnt lgkmcnt(0)")
    e("s_barrier")
    stamp(5)
    prof_out()
    e("s_endpgm")

    e("L_w0:")
    set_srd(WO, 80, 4096 * 512 * 2)
    e(f"s_load_dword s{EP}, s[{WS}:{WS+1}], 4")
    e("s_setprio 3")
    e("s_and_b32 s4, s2, 7")
    e("s_lshl_b32 s4, s4, 3")
    e("s_lshr_b32 s5, s2, 5")
    e("s_add_u32 s4, s4, s5")
    e("s_lshl_b32 s4, s4, 16")
    e("s_bfe_u32 s5, s2, 0x20003")
    e("s_lshl_b32 s5, s5, 8")
    e("s_add_u32 s4, s4, s5")
    e("v_lshrrev_b32 v64, 4, v0")
    e("v_lshlrev_b32 v64, 13, v64")
    e("v_and_b32 v65, 15, v0")
    e("v_lshl_add_u32 v64, v65, 4, v64")
    e("v_lshlrev_b32 v122, 4, v0")
    bar0()
    stamp(0)
    for s in range(2):
        for h in range(2):
            if s or h:
                e(f"s_add_u32 s5, s4, {s*32768+h*4096}")
            so = "s5" if (s or h) else "s4"
            for i4 in range(4):
                r = 128 + 4 * (8 * s + 4 * h + i4)
                e(f"buffer_load_dwordx4 v[{r}:{r+3}], v64, {srd(WO)}, {so} offen offset:{1024*i4} {opol}")
    e("s_bfe_u32 s93, s2, 0x30003")
    e("s_lshl_b32 s93, s93, 12")
    e("s_bfe_u32 s5, s2, 0x10006")
    e("s_lshl_b32 s5, s5, 11")
    e("s_add_u32 s93, s93, s5")
    e(f"s_add_u32 s93, s93, {QG}")
    e("v_lshlrev_b32 v72, 3, v0")
    e("v_mov_b32 v73, 1")
    e("s_waitcnt lgkmcnt(0)")
    mk_tag(EP)
    for s in range(2):
        e(f"s_waitcnt vmcnt({8-8*s})")
        for jj in range(8):
            sel = f"s{PL}" if (jj & 1) == 0 else f"s{PH}"
            for q in range(4):
                r0 = 128 + 4 * (8 * s + 2 * q) + (jj >> 1)
                e(f"v_perm_b32 v{192+4*(8*s+jj)+q}, v{r0+4}, v{r0}, {sel}")
        for jj in range(8):
            r = 192 + 4 * (8 * s + jj)
            e(f"ds_write_b128 v122, v[{r}:{r+3}] offset:{L_WO+1024*(8*s+jj)}")
    stamp(6)
    poll([(f"buffer_load_dwordx4 v[64:67], v122, {srd(WS)}, s93 offen sc1", (65, 67)),
          (f"buffer_load_dwordx4 v[68:71], v122, {srd(WS)}, s93 offen offset:1024 sc1", (69, 71))], "L_qpoll", qsleep)
    e(f"v_add_u32 v72, {L_Q}, v72")
    e("ds_write2_b32 v72, v64, v66 offset0:0 offset1:1")
    e("ds_write2_b32 v72, v68, v70 offset0:128 offset1:129")
    e("v_mov_b32 v72, 0")
    e("s_waitcnt lgkmcnt(0)")
    e(f"ds_write_b32 v72, v73 offset:{L_CNT+8}")
    e("s_branch L_stream")

    e("L_helper:")
    e(f"s_sub_u32 s{HW}, s3, 4")
    if not eb:
        e("v_and_b32 v100, 3, v0")
        e("v_lshlrev_b32 v100, 2, v100")
        e("v_mov_b32 v101, 0")
        e(f"ds_write_b32 v100, v101 offset:{L_CNT}")
    set_srd(X, 72, 2048)
    e("s_setprio 3")
    e("v_lshrrev_b32 v1, 3, v0")
    e("v_and_b32 v14, 7, v0")
    e("s_cmp_lt_u32 s2, 64")
    e("s_cbranch_scc1 L_role_q")
    e("s_cmp_lt_u32 s2, 92")
    e("s_cbranch_scc1 L_role_h")
    e("s_cmp_lt_u32 s2, 96")
    e("s_cbranch_scc1 L_role_none")
    e("s_cmp_lt_u32 s2, 128")
    e("s_cbranch_scc1 L_role_g")
    e("s_cmp_ge_u32 s2, 160")
    e("s_cbranch_scc1 L_role_none")
    e("s_cmp_eq_u32 s3, 7")
    e("s_cbranch_scc1 L_role_f")
    e("L_role_none:")
    e("s_waitcnt lgkmcnt(0)")
    bar0()
    stamp(0)

    e("L_join:")
    e("s_mov_b64 exec, -1")
    e("s_bfe_u32 s6, s2, 0x30003")
    e("s_bfe_u32 s7, s2, 0x10006")
    e("s_and_b32 s5, s2, 7")
    e("s_lshl_b32 s5, s5, 1")
    e("s_lshr_b32 s4, s2, 7")
    e("s_add_u32 s5, s5, s4")
    e("s_lshl_b32 s4, s6, 1")
    e("s_add_u32 s4, s4, s7")
    e("s_lshl_b32 s4, s4, 4")
    e("s_add_u32 s4, s4, s5")
    e("s_lshl_b32 s4, s4, 2")
    e(f"s_add_u32 s4, s4, s{HW}")
    e("s_lshl_b32 s4, s4, 10")
    e(f"s_add_u32 s72, s4, {PG}")
    e("s_lshl_b32 s4, s6, 2")
    e(f"s_add_u32 s4, s4, s{HW}")
    e("s_lshl_b32 s4, s4, 1")
    e("s_add_u32 s4, s4, s7")
    e("s_lshl_b32 s4, s4, 4")
    e("s_add_u32 s4, s4, s5")
    e("s_lshl_b32 s4, s4, 4")
    e(f"s_add_u32 s73, s4, {MLG}")
    e("s_and_b32 s93, s2, 7")
    e(f"s_lshr_b32 s5, s{HW}, 1")
    e(f"s_and_b32 s38, s{HW}, 1")
    e("s_lshl_b32 s38, s38, 3")
    e("s_lshr_b32 s94, s2, 5")
    e("s_lshl_b32 s4, s93, 1")
    e("s_add_u32 s4, s4, s5")
    e("s_lshl_b32 s4, s4, 4")
    e("s_add_u32 s4, s4, s38")
    e("s_lshl_b32 s4, s4, 3")
    e("s_add_u32 s4, s4, s94")
    e("s_lshl_b32 s4, s4, 9")
    e(f"s_add_u32 s98, s4, {PG}")
    e("s_add_u32 s99, s98, 0x2000")
    e("s_add_u32 s100, s98, 0x4000")
    e("s_add_u32 s101, s98, 0x6000")
    e("s_lshl_b32 s4, s93, 3")
    e("s_add_u32 s4, s4, s94")
    e("s_and_b32 s6, s4, 0xfffffffe")
    e("s_add_u32 s6, s6, s5")
    e("s_lshl_b32 s6, s6, 8")
    e(f"s_add_u32 s74, s6, {MLG}")
    e("s_lshl_b32 s4, s4, 8")
    e("s_bfe_u32 s5, s2, 0x20003")
    e("s_lshl_b32 s5, s5, 17")
    e("s_add_u32 s4, s4, s5")
    e(f"s_add_u32 s75, s4, {SG}")
    e("s_add_u32 s76, s75, 0x4000")
    e("s_and_b32 s4, s2, 31")
    e("s_lshl_b32 s95, s4, 5")
    e("s_lshl_b32 s4, s4, 14")
    e(f"s_lshl_b32 s5, s{HW}, 12")
    e("s_add_u32 s4, s4, s5")
    e(f"s_add_u32 s77, s4, {SG}")
    e("s_branch L_stream")

    XF, PK, XS = 32, 48, 16
    for kind in "qh":
        e(f"L_role_{kind}:")
        if kind == "q":
            stride = 8192
            set_srd(WR, 78, 512 * 4096 * 2)
            e("s_mov_b32 s96, s2")
            if gl == 'ws' or pool:
                e("s_lshr_b32 s5, s2, 3")
                e(f"s_mul_i32 s5, s5, {cstr}")
                e(f"s_add_u32 s5, s5, {CG}")
                e(f"v_mul_u32_u24 v98, {8*cstr}, v0")
                e(f"v_mov_b32 v99, {(1024-P)*8192 if pool else 384*8192}")
                e("s_mov_b64 exec, 3")
                e(f"buffer_store_dword v99, v98, {srd(WS)}, s5 offen sc1")
                e("s_mov_b64 exec, -1")
            e("v_lshlrev_b32 v98, 17, v1")
            e(f"s_lshl_b32 s4, s{HW}, 20")
        else:
            stride = 3584
            set_srd(WR, 84, 512 * 1792 * 2)
            set_srd(BR, 86, 1792 * 2)
            e("s_sub_u32 s96, s2, 64")
            e(f"v_mul_u32_u24 v98, {16*stride}, v1")
            e(f"s_mul_i32 s4, s{HW}, {128*stride}")
        e("v_lshl_add_u32 v98, v14, 4, v98")
        e("s_lshl_b32 s5, s96, 7")
        e("s_add_u32 s4, s4, s5")
        e("v_lshlrev_b32 v15, 5, v0")
        if kind == "h":
            e("v_and_b32 v99, 15, v0")
            e("v_lshlrev_b32 v99, 3, v99")
            e(f"buffer_load_dwordx2 v[102:103], v99, {srd(BR)}, s5 offen")
        e(f"buffer_load_dwordx4 v[2:5], v15, {srd(X)}, 0 offen")
        e(f"buffer_load_dwordx4 v[6:9], v15, {srd(X)}, 0 offen offset:16")
        for i in range(16):
            e(f"buffer_load_dwordx4 v[{128+4*i}:{131+4*i}], v98, {srd(WR)}, s4 offen {wpol}")
            if i < 15:
                e(f"s_add_u32 s4, s4, {stride}")
        e("s_waitcnt lgkmcnt(0)")
        e(f"s_load_dword s{EP}, s[{WS}:{WS+1}], 4")
        bar0()
        stamp(0)
        red_addr()
        e(f"s_lshl_b32 s4, s{HW}, 5")
        e("v_lshl_add_u32 v97, v1, 2, s4")
        e("v_lshrrev_b32 v125, 4, v0")
        e("v_and_b32 v126, 15, v0")
        e("v_lshlrev_b32 v126, 4, v126")
        e("s_waitcnt vmcnt(16)")
        for k in range(8):
            unpack(XF + 2 * k, 2 + k)
        ln_stats(XF, 60, 61, 64)
        norm_all(XF, 60, 61, PK)
        if kind == "h":
            for k in range(8):
                unpack(XF + 2 * k, PK + k)
            ln_stats(XF, 60, 61, 64)
            norm_all(XF, 60, 61, PK)
        for bb in range(2):
            for k in range(8):
                e(f"ds_bpermute_b32 v{XS+8*bb+k}, v97, v{PK+k} offset:{128*bb}")
            if bb == 0:
                e("s_waitcnt lgkmcnt(0)")
        mk_tag(EP)
        for k in range(8):
            wp = 64 + 8 * (k & 1)
            e(f"s_waitcnt vmcnt({14-2*k})" + (" lgkmcnt(0)" if k == 0 else ""))
            wperm(wp, 128 + 8 * k, 132 + 8 * k)
            dots(wp, XS + k, XS + 8 + k, k == 0)
        reduce_publish("L_join")
        if kind == "q":
            e("v_cvt_pk_bf16_f32 v64, v64, v65")
            e("v_cvt_pk_bf16_f32 v66, v66, v67")
            e(f"v_mov_b32 v65, s{TAG}")
            e(f"v_mov_b32 v67, s{TAG}")
            e("v_lshl_add_u32 v68, v125, 11, v126")
            e("s_lshr_b32 s4, s96, 3")
            e("s_lshl_b32 s4, s4, 12")
            e("s_and_b32 s5, s96, 7")
            e("s_lshl_b32 s5, s5, 8")
            e("s_add_u32 s4, s4, s5")
            e(f"s_add_u32 s4, s4, {QG}")
            e(f"buffer_store_dwordx4 v[64:67], v68, {srd(WS)}, s4 offen sc1")
        else:
            e("v_cvt_pk_bf16_f32 v68, v64, v65")
            e("v_cvt_pk_bf16_f32 v69, v66, v67")
            unpack(64, 68); unpack(66, 69)
            unpack(68, 102); unpack(70, 103)
            e("v_pk_add_f32 v[64:65], v[64:65], v[68:69]")
            e("v_pk_add_f32 v[66:67], v[66:67], v[70:71]")
            e("v_cvt_pk_bf16_f32 v68, v64, v65")
            e("v_cvt_pk_bf16_f32 v69, v66, v67")
            unpack(64, 68); unpack(66, 69)
            k1 = -2.0 * math.sqrt(2.0 / math.pi) * math.log2(math.e)
            e(f"s_mov_b32 s4, {hx(f2u(k1*0.044715))}")
            e(f"v_mov_b32 v72, {hx(f2u(k1))}")
            for k in range(4):
                e(f"v_mul_f32 v{68+k}, v{64+k}, v{64+k}")
            for k in range(4):
                e(f"v_fma_f32 v{68+k}, v{68+k}, s4, v72")
            for k in range(4):
                e(f"v_mul_f32 v{68+k}, v{68+k}, v{64+k}")
            for k in range(4):
                e(f"v_exp_f32 v{68+k}, v{68+k}")
            for k in range(4):
                e(f"v_add_f32 v{68+k}, 1.0, v{68+k}")
            for k in range(4):
                e(f"v_rcp_f32 v{68+k}, v{68+k}")
            for k in range(4):
                e(f"v_mul_f32 v{64+k}, v{64+k}, v{68+k}")
            e("v_cvt_pk_bf16_f32 v64, v64, v65")
            e("v_cvt_pk_bf16_f32 v66, v66, v67")
            e(f"v_mov_b32 v65, s{TAG}")
            e(f"v_mov_b32 v67, s{TAG}")
            e("s_movk_i32 s4, 7168")
            e("v_mad_u32_u24 v68, v125, s4, v126")
            e("s_lshl_b32 s4, s96, 8")
            e(f"s_add_u32 s4, s4, {HG}")
            e(f"buffer_store_dwordx4 v[64:67], v68, {srd(WS)}, s4 offen sc1")
        e("s_branch L_join")

    e("L_role_g:")
    set_srd(WR, 88, 1792 * 512 * 2)
    e("s_and_b32 s96, s2, 7")
    e("s_bfe_u32 s97, s2, 0x20003")
    e("s_lshl_b32 s6, s97, 2")
    e(f"s_add_u32 s6, s6, s{HW}")
    e("s_mul_i32 s6, s6, 112")
    e("s_lshl_b32 s4, s6, 10")
    e("s_lshl_b32 s5, s96, 7")
    e("s_add_u32 s4, s4, s5")
    e(f"v_mul_u32_u24 v98, {14*1024}, v1")
    e("v_lshl_add_u32 v98, v14, 4, v98")
    for i in range(14):
        e(f"buffer_load_dwordx4 v[{128+4*i}:{131+4*i}], v98, {srd(WR)}, s4 offen offset:{1024*(i&3)} {wpol}")
        if (i & 3) == 3:
            e("s_add_u32 s4, s4, 4096")
    e("s_waitcnt lgkmcnt(0)")
    e(f"s_load_dword s{EP}, s[{WS}:{WS+1}], 4")
    bar0()
    stamp(0)
    red_addr()
    e("v_min_u32 v99, 6, v14")
    e("v_mad_u32_u24 v99, v1, 7, v99")
    e("v_lshlrev_b32 v99, 3, v99")
    e("s_lshl_b32 s6, s6, 2")
    e(f"s_add_u32 s93, s6, {HG}")
    e("s_add_u32 s94, s93, 7168")
    e("v_lshlrev_b32 v97, 5, v1")
    e("s_waitcnt lgkmcnt(0)")
    mk_tag(EP)
    poll([(f"buffer_load_dwordx2 v[10:11], v99, {srd(WS)}, s93 offen sc1", (11,)),
          (f"buffer_load_dwordx2 v[12:13], v99, {srd(WS)}, s94 offen sc1", (13,))], "L_hpoll", 8)
    for bb in range(2):
        for k in range(7):
            e(f"ds_bpermute_b32 v{XS+8*bb+k}, v97, v{10+2*bb} offset:{4*k}")
    e("s_waitcnt lgkmcnt(0)")
    for k in range(7):
        wp = 64 + 8 * (k & 1)
        wperm(wp, 128 + 8 * k, 132 + 8 * k)
        dots(wp, XS + k, XS + 8 + k, k == 0)
    reduce_publish("L_join")
    e("v_mov_b32 v68, v66")
    e("v_mov_b32 v70, v67")
    e("v_mov_b32 v66, v65")
    e(f"v_mov_b32 v65, s{TAG}")
    e(f"v_mov_b32 v67, s{TAG}")
    e(f"v_mov_b32 v69, s{TAG}")
    e(f"v_mov_b32 v71, s{TAG}")
    e("v_bfe_u32 v72, v0, 2, 2")
    e("v_lshlrev_b32 v72, 10, v72")
    e("v_lshrrev_b32 v73, 4, v0")
    e("v_lshl_add_u32 v72, v73, 7, v72")
    e("v_and_b32 v73, 3, v0")
    e("v_lshl_add_u32 v72, v73, 5, v72")
    e("s_lshl_b32 s4, s96, 12")
    e("s_lshl_b32 s5, s97, 8")
    e("s_add_u32 s4, s4, s5")
    e(f"s_add_u32 s4, s4, {MG}")
    e(f"buffer_store_dwordx4 v[64:67], v72, {srd(WS)}, s4 offen sc1")
    e(f"buffer_store_dwordx4 v[68:71], v72, {srd(WS)}, s4 offen offset:16 sc1")
    e("s_branch L_join")

    e("L_role_f:")
    set_srd(BR, 90, 1024)
    e("s_and_b32 s96, s2, 31")
    e("s_lshl_b32 s4, s96, 5")
    e("v_lshlrev_b32 v98, 2, v14")
    e("v_bfe_u32 v99, v0, 3, 1")
    e("v_lshl_add_u32 v97, v99, 10, v98")
    e(f"buffer_load_dword v10, v98, {srd(BR)}, s4 offen")
    e(f"buffer_load_dword v11, v97, {srd(X)}, s4 offen")
    e("s_waitcnt lgkmcnt(0)")
    e(f"s_load_dword s{EP}, s[{WS}:{WS+1}], 4")
    bar0()
    stamp(0)
    e("v_lshlrev_b32 v122, 4, v0")
    e("s_lshl_b32 s93, s96, 10")
    e(f"s_add_u32 s93, s93, {MG}")
    e("v_lshlrev_b32 v98, 1, v98")
    e("v_lshl_add_u32 v98, v99, 6, v98")
    e("v_lshrrev_b32 v99, 5, v0")
    e("v_lshl_add_u32 v98, v99, 2, v98")
    e("v_lshlrev_b32 v99, 4, v99")
    e("v_sub_u32 v99, 16, v99")
    e("s_waitcnt lgkmcnt(0)")
    mk_tag(EP)
    poll([(f"buffer_load_dwordx4 v[16:19], v122, {srd(WS)}, s93 offen sc1", (17, 19))], "L_gpoll", gsleep)
    e("v_permlane32_swap_b32 v16, v18")
    e("v_add_f32 v16, v16, v18")
    e("v_mov_b32 v18, v16")
    e("v_permlane16_swap_b32 v16, v18")
    e("v_add_f32 v16, v16, v18")
    e("v_lshlrev_b32 v10, v99, v10")
    e("v_lshlrev_b32 v11, v99, v11")
    e("v_and_b32 v10, 0xffff0000, v10")
    e("v_and_b32 v11, 0xffff0000, v11")
    bfr(16)
    e("v_add_f32 v16, v16, v10")
    bfr(16)
    e(f"v_mul_f32 v18, {hx(f2u(-math.log2(math.e)))}, v16")
    e("v_exp_f32 v18, v18")
    e("v_add_f32 v18, 1.0, v18")
    e("v_rcp_f32 v18, v18")
    e("v_mul_f32 v16, v16, v18")
    bfr(16)
    e(f"ds_write_b32 v98, v16 offset:{L_G}")
    e(f"ds_write_b32 v98, v11 offset:{L_X}")
    e("s_branch L_join")

    e("L_tail:")
    e("s_setprio 3")
    e("v_and_b32 v12, 3, v0")
    e("v_lshlrev_b32 v12, 9, v12")
    e("v_lshrrev_b32 v9, 4, v0")
    e("v_lshl_add_u32 v12, v9, 4, v12")
    e("v_bfe_u32 v3, v0, 2, 2")
    e("v_lshl_add_u32 v12, v3, 2, v12")
    e(f"s_lshl_b32 s4, s{HW}, 6")
    e("v_add_u32 v12, s4, v12")
    e(f"s_lshl_b32 s4, s{HW}, 5")
    e("v_mov_b32 v3, s4")
    e("v_lshlrev_b32 v122, 4, v0")
    e("v_mov_b32 v101, 0")
    e("v_lshrrev_b32 v13, 5, v0")
    e("v_and_b32 v7, 31, v0")
    e("v_lshlrev_b32 v4, 4, v7")
    e("v_lshl_add_u32 v4, v13, 12, v4")
    e("v_and_b32 v8, 15, v0")
    e("v_add3_u32 v14, v8, v13, s38")
    e("v_and_b32 v14, 15, v14")
    e("v_lshlrev_b32 v14, 4, v14")
    e("v_lshl_add_u32 v15, v7, 1, v13")
    e("v_lshlrev_b32 v15, 2, v15")
    e(f"s_lshl_b32 s4, s{HW}, 8")
    e("v_add_u32 v15, s4, v15")
    e("v_and_b32 v7, 1, v0")
    e("v_lshlrev_b32 v7, 9, v7")
    e("v_lshl_add_u32 v7, v9, 5, v7")
    e("v_lshlrev_b32 v10, 15, v9")
    e("v_lshl_add_u32 v10, v8, 4, v10")
    e("v_lshl_add_u32 v11, v13, 4, v8")
    e("v_lshlrev_b32 v11, 2, v11")
    e(f"s_lshl_b32 s4, s{HW}, 7")
    e("v_add_u32 v11, s4, v11")
    e("s_waitcnt lgkmcnt(0)")
    mk_tag(EP)
    e(f"v_mov_b32 v65, s{TAG}")
    e(f"v_mov_b32 v67, s{TAG}")
    e(f"v_mov_b32 v69, s{TAG}")
    e(f"v_mov_b32 v71, s{TAG}")
    e("s_barrier")
    e(f"ds_read_b128 v[16:19], v3 offset:{L_MC}")
    e(f"ds_read_b128 v[20:23], v3 offset:{L_MC+16}")
    e(f"ds_read_b128 v[24:27], v3 offset:{L_L}")
    e(f"ds_read_b128 v[28:31], v3 offset:{L_L+16}")
    for sw in range(8):
        e(f"ds_read2st64_b32 v[{32+2*sw}:{33+2*sw}], v12 offset0:{8*sw} offset1:{8*sw+1}")
    e("s_waitcnt lgkmcnt(10)")
    e("v_max3_f32 v68, v16, v17, v18")
    e("v_max3_f32 v70, v19, v20, v21")
    e("v_max3_f32 v68, v68, v22, v23")
    e("v_max_f32 v68, v68, v70")
    for k in range(8):
        e(f"v_sub_f32 v{16+k}, v{16+k}, v68")
    for k in range(8):
        e(f"v_exp_f32 v{16+k}, v{16+k}")
    e("s_waitcnt lgkmcnt(0)")
    e("v_mul_f32 v64, v16, v32")
    e("v_mul_f32 v66, v16, v33")
    e("v_mul_f32 v70, v16, v24")
    for k in range(1, 8):
        e(f"v_fmac_f32 v64, v{16+k}, v{32+2*k}")
        e(f"v_fmac_f32 v66, v{16+k}, v{33+2*k}")
        e(f"v_fmac_f32 v70, v{16+k}, v{24+k}")
    e(f"buffer_store_dwordx4 v[64:67], v122, {srd(WS)}, s72 offen sc1")
    e("s_mov_b64 exec, 1")
    e(f"buffer_store_dwordx4 v[68:71], v101, {srd(WS)}, s73 offen sc1")
    e("s_mov_b64 exec, -1")
    e(f"s_cmp_lg_u32 s{HW}, 3")
    e("s_cbranch_scc1 L_wo_skip")
    for i in range(16):
        r = 192 + 4 * i
        e(f"ds_read_b128 v[{r}:{r+3}], v122 offset:{L_WO+1024*i}")
        if i == 7:
            e("s_waitcnt lgkmcnt(4)")
    e("L_wo_skip:")
    stamp(5)
    poll([(f"buffer_load_dwordx4 v[16:19], v14, {srd(WS)}, s74 offen sc1", (17, 19))] +
         [(f"buffer_load_dwordx4 v[{20+4*i}:{23+4*i}], v4, {srd(WS)}, s{98+i} offen sc1", (21 + 4 * i, 23 + 4 * i)) for i in range(4)],
         "L_ppoll", tsleep)
    e("v_mov_b32 v17, v16")
    for s in (8, 4, 2, 1):
        e(f"v_max_f32_dpp v17, v17, v17 row_ror:{s} {DPPM}")
    e("v_sub_f32 v16, v16, v17")
    e("v_exp_f32 v16, v16")
    e("v_mul_f32 v18, v16, v18")
    for s in (8, 4, 2, 1):
        e(f"v_add_f32_dpp v18, v18, v18 row_ror:{s} {DPPM}")
    e("v_rcp_f32 v18, v18")
    e("v_mul_f32 v16, v16, v18")
    e(f"v_mul_f32_dpp v36, v16, v20 row_newbcast:0 {DPPM}")
    e(f"v_mul_f32_dpp v37, v16, v22 row_newbcast:0 {DPPM}")
    for i in range(1, 4):
        e(f"v_fmac_f32_dpp v36, v16, v{20+4*i} row_newbcast:{2*i} {DPPM}")
        e(f"v_fmac_f32_dpp v37, v16, v{22+4*i} row_newbcast:{2*i} {DPPM}")
    e("v_permlane32_swap_b32 v36, v37")
    e("v_add_f32 v36, v36, v37")
    e(f"ds_write_b32 v15, v36 offset:{L_OP}")
    e("s_waitcnt lgkmcnt(0)")
    stamp(6)
    e("s_barrier")
    e(f"s_cmp_lg_u32 s{HW}, 3")
    e("s_cbranch_scc1 L_h6_skip")
    for s in range(2):
        for w in range(2):
            for c in range(2):
                r = 32 + 16 * s + 8 * w + 4 * c
                e(f"ds_read_b128 v[{r}:{r+3}], v7 offset:{L_OP+128*s+256*w+16*c}")
    e("s_mov_b32 s78, 0xcccccccc")
    e("s_mov_b32 s79, 0xcccccccc")
    e("s_mov_b32 s80, 0xf0f0f0f0")
    e("s_mov_b32 s81, 0xf0f0f0f0")
    e("s_mov_b32 s82, 0xff00ff00")
    e("s_mov_b32 s83, 0xff00ff00")
    e("s_waitcnt lgkmcnt(0)")
    for s in range(2):
        for k in range(4):
            r = 32 + 16 * s + 2 * k
            e(f"v_pk_add_f32 v[{r}:{r+1}], v[{r}:{r+1}], v[{r+8}:{r+9}]")
    for s in range(2):
        for k in range(4):
            r = 32 + 16 * s + 2 * k
            e(f"v_cvt_pk_bf16_f32 v{16+4*s+k}, v{r}, v{r+1}")
    for s in range(2):
        for jj in range(8):
            d = 128 + 4 * jj
            c = "0" if s == 0 else f"v[{d}:{d+3}]"
            w = 192 + 4 * (8 * s + jj)
            e(f"v_mfma_f32_16x16x32_bf16 v[{d}:{d+3}], v[{w}:{w+3}], v[{16+4*s}:{19+4*s}], {c}")
    for k in range(4):
        for r in range(4):
            e(f"v_cndmask_b32_e64 v{160+4*k+r}, v{128+8*k+r}, v{132+8*k+r}, s[78:79]")
    for k in range(2):
        for r in range(4):
            e(f"v_cndmask_b32_e64 v{176+4*k+r}, v{160+8*k+r}, v{164+8*k+r}, s[80:81]")
    for r in range(4):
        e(f"v_cndmask_b32_e64 v{64+2*r}, v{176+r}, v{180+r}, s[82:83]")
    e(f"buffer_store_dwordx4 v[64:67], v10, {srd(WS)}, s75 offen sc1")
    e(f"buffer_store_dwordx4 v[68:71], v10, {srd(WS)}, s76 offen sc1")
    e("L_h6_skip:")
    e("s_lshr_b32 s4, s2, 5")
    e("s_cmp_lg_u32 s4, 4")
    e("s_cbranch_scc1 L_h_exit")
    e("v_bfe_u32 v16, v0, 1, 3")
    e("v_bfe_u32 v17, v0, 4, 1")
    e("v_lshl_add_u32 v16, v17, 3, v16")
    e("v_and_b32 v17, 1, v0")
    e("v_lshlrev_b32 v118, 2, v16")
    e("v_lshl_add_u32 v118, v17, 6, v118")
    e("v_lshlrev_b32 v119, 1, v16")
    e("v_lshl_add_u32 v119, v17, 10, v119")
    e(f"ds_read_b32 v116, v118 offset:{L_G}")
    e(f"ds_read_b32 v117, v118 offset:{L_X}")
    poll([(f"buffer_load_dwordx4 v[{20+4*i}:{23+4*i}], v122, {srd(WS)}, s77 offen offset:{1024*i} sc1", (21 + 4 * i, 23 + 4 * i)) for i in range(4)],
         "L_spoll", tsleep)
    e("v_add_f32 v20, v20, v24")
    e("v_add_f32 v22, v22, v26")
    e("v_add_f32 v28, v28, v32")
    e("v_add_f32 v30, v30, v34")
    e("v_add_f32 v20, v20, v28")
    e("v_add_f32 v22, v22, v30")
    e("v_permlane32_swap_b32 v20, v22")
    e("v_add_f32 v20, v20, v22")
    e("v_mov_b32 v22, v20")
    e("v_permlane16_swap_b32 v20, v22")
    e("v_add_f32 v20, v20, v22")
    e(f"ds_write_b32 v11, v20 offset:{L_SP}")
    e("s_waitcnt lgkmcnt(0)")
    e("s_barrier")
    e(f"s_cmp_lg_u32 s{HW}, 0")
    e("s_cbranch_scc1 L_h_exit")
    e("s_mov_b32 exec_hi, 0")
    e("v_lshlrev_b32 v16, 2, v0")
    e(f"v_add_u32 v16, {L_SP}, v16")
    e("ds_read2_b32 v[20:21], v16 offset0:0 offset1:32")
    e("ds_read2_b32 v[22:23], v16 offset0:64 offset1:96")
    e("s_waitcnt lgkmcnt(0)")
    e("v_pk_add_f32 v[20:21], v[20:21], v[22:23]")
    e("v_add_f32 v20, v20, v21")
    bfr(20)
    e("v_mul_f32 v20, v20, v116")
    bfr(20)
    e("v_add_f32 v20, v20, v117")
    e("v_cvt_pk_bf16_f32 v20, v20, v20")
    e(f"buffer_store_short v20, v119, {srd(OUT)}, s95 offen")
    e("s_cmp_lg_u32 s2, 128")
    e("s_cbranch_scc1 L_h_exit")
    e("s_mov_b64 exec, 1")
    e(f"buffer_store_dword v65, v101, {srd(WS)}, 0 offen offset:4")
    if pad:
        e("L_padloop:")
        e("s_memrealtime s[10:11]")
        e("s_waitcnt lgkmcnt(0)")
        e("s_sub_u32 s10, s10, s8")
        e(f"s_cmp_lt_u32 s10, {pad}")
        e("s_cbranch_scc1 L_padloop")
    e("L_h_exit:")
    stamp(7)
    prof_out()
    e("L_end:")
    e("s_endpgm")

    n = a.fix_hazards()
    head = open("recurrent_scan__gqa_block_cached__mixer_channel_mlp__decode.s.ref").read().split("\n")
    lead = []
    for ln in head:
        if not ln.startswith(";"):
            break
        if "@launch" in ln and ln.startswith("; @launch"):
            lead.append(f"; @launch grid=(256,1,1) block=(512,1,1) lds={LDS_SIZE}")
        else:
            lead.append(ln)
    out = "\n".join(lead) + "\n"
    out += '.amdgcn_target "amdgcn-amd-amdhsa--gfx950"\n.text\n'
    out += f".globl {NAME}\n.p2align 8\n.type {NAME},@function\n"
    out += a.text()
    out += '.section .rodata,"a"\n.p2align 6\n'
    out += f".amdhsa_kernel {NAME}\n"
    out += "  .amdhsa_next_free_vgpr 256\n  .amdhsa_next_free_sgpr 102\n  .amdhsa_accum_offset 256\n"
    out += "  .amdhsa_group_segment_fixed_size 0\n  .amdhsa_kernarg_size 104\n  .amdhsa_user_sgpr_count 2\n"
    out += "  .amdhsa_user_sgpr_kernarg_segment_ptr 1\n  .amdhsa_system_sgpr_workgroup_id_x 1\n.end_amdhsa_kernel\n"
    return out, n

if __name__ == "__main__":
    kw = eval("dict(" + (sys.argv[2] if len(sys.argv) > 2 else "") + ")")
    txt, n = gen(**kw)
    path = sys.argv[1] if len(sys.argv) > 1 else "k2.s"
    open(path, "w").write(txt)
    print("wrote", path, "nops inserted:", n, "bytes:", len(txt))
```

```python
import sys, struct, math
sys.path.insert(0, "dev")
from asmlib import Asm

NAME = "recurrent_scan__gqa_block_cached__mixer_channel_mlp__decode_kernel"

def f2u(x):
    return struct.unpack("<I", struct.pack("<f", x))[0]
def hx(x):
    return f"0x{x & 0xffffffff:08x}"

QG, HG, MG, PG, MLG, SG, PROFB = 0x1000, 0x10000, 0x18000, 0x20000, 0x120000, 0x130000, 0x200000
CG = 0x1C0000
WS_SIZE = 0x300000
L_ACC, L_WO, L_MC, L_L, L_CNT, L_Q = 0x0000, 0x4000, 0x8000, 0x8080, 0x8100, 0x8200
L_P, L_G, L_X, L_OP, L_SP = 0x8600, 0x8E00, 0x8E80, 0x8F00, 0x9300
LDS_SIZE = 0x9500
NWAVE = 8

C_SC = (128 ** -0.5) * math.log2(math.e)
DPPM = "row_mask:0xf bank_mask:0xf"

def gen(prof=False, spin=1 << 16, W=8, G=4, NH=62, qsleep=2, tsleep=1, gsleep=16, kpol='nt', vpol='nt', trace=False,
        wpol='', opol='', PW=None, E=8, hprio=0, pad=0, fl=True, eb=False, gl=None, cstr=4096, ilv=False, P=0, par=0, dbg='', order='kv', icp=0, HP=3, HQ=0):
    pool = P > 0
    assert not (pool and (gl or ilv))
    NL = (1024 - P) // 8 - NH
    MODE, WB = 96, 6
    PW = PW or W
    a = Asm()
    e = a.e

    OFF = [24, 25, 26]; REM, VP, LIM, CL, LIME = 27, 28, 29, 30, 97
    SC, NSC, PL, PH, TAG, HW, EP = 32, 33, 34, 35, 36, 37, 39
    K, V, WS, X, WR, BR, WO, OUT = 40, 44, 48, 52, 56, 60, 64, 68
    def srd(r):
        return f"s[{r}:{r+3}]"

    def stamp(k):
        if prof:
            e(f"s_memrealtime s[{8+2*k}:{9+2*k}]")
            e("s_waitcnt lgkmcnt(0)")

    def prof_out():
        if not prof:
            return
        e("s_mov_b64 exec, -1")
        e("s_lshl_b32 s4, s2, 3")
        e("s_add_u32 s4, s4, s3")
        e("s_lshl_b32 s4, s4, 5")
        e(f"s_add_u32 s4, s4, {PROFB}")
        for k in range(8):
            e(f"v_mov_b32 v{8+k}, s{8+2*k}")
        e("v_mov_b32 v7, 0")
        e("s_mov_b64 exec, 1")
        e(f"buffer_store_dwordx4 v[8:11], v7, {srd(WS)}, s4 offen")
        e(f"buffer_store_dwordx4 v[12:15], v7, {srd(WS)}, s4 offen offset:16")
        e("s_waitcnt vmcnt(0)")

    def bar0():
        if not eb:
            e("s_barrier")

    def mk_tag(src):
        e(f"s_mul_i32 s{TAG}, s{src}, 0x9E3779B1")
        e(f"s_add_u32 s{TAG}, s{TAG}, 0x7F4A7C15")

    def set_srd(r, ptr, size):
        e(f"s_mov_b32 s{r}, s{ptr}")
        e(f"s_mov_b32 s{r+1}, s{ptr+1}")
        e(f"s_mov_b32 s{r+2}, {size}")
        e(f"s_mov_b32 s{r+3}, 0x00020000")

    def unpack(dst, src):
        e(f"v_lshlrev_b32 v{dst}, 16, v{src}")
        e(f"v_and_b32 v{dst+1}, 0xffff0000, v{src}")

    def half_sum(r, t):
        for s in (8, 4, 2, 1):
            e(f"v_add_f32_dpp v{r}, v{r}, v{r} row_ror:{s} {DPPM}")
        e(f"v_mov_b32 v{t}, v{r}")
        e(f"v_permlane16_swap_b32 v{r}, v{t}")
        e(f"v_add_f32 v{r}, v{r}, v{t}")

    def tree16(dst, src, tmp):
        for k in range(4):
            e(f"v_pk_add_f32 v[{tmp+2*k}:{tmp+2*k+1}], v[{src+4*k}:{src+4*k+1}], v[{src+4*k+2}:{src+4*k+3}]")
        e(f"v_pk_add_f32 v[{tmp}:{tmp+1}], v[{tmp}:{tmp+1}], v[{tmp+2}:{tmp+3}]")
        e(f"v_pk_add_f32 v[{tmp+4}:{tmp+5}], v[{tmp+4}:{tmp+5}], v[{tmp+6}:{tmp+7}]")
        e(f"v_pk_add_f32 v[{tmp}:{tmp+1}], v[{tmp}:{tmp+1}], v[{tmp+4}:{tmp+5}]")
        e(f"v_add_f32 v{dst}, v{tmp}, v{tmp+1}")

    def bfr(r):
        e(f"v_cvt_pk_bf16_f32 v{r}, v{r}, v{r}")
        e(f"v_and_b32 v{r}, 0xffff0000, v{r}")

    def ln_stats(XF, MEAN, RS, TMP):
        tree16(MEAN, XF, TMP)
        half_sum(MEAN, TMP)
        e(f"v_mul_f32 v{MEAN}, {hx(f2u(1/512))}, v{MEAN}")
        D = TMP + 8
        e(f"v_mov_b32 v{TMP+1}, v{MEAN}")
        e(f"v_mov_b32 v{TMP}, v{MEAN}")
        for k in range(8):
            e(f"v_pk_add_f32 v[{D+2*k}:{D+2*k+1}], v[{XF+2*k}:{XF+2*k+1}], v[{TMP}:{TMP+1}] neg_lo:[0,1] neg_hi:[0,1]")
        for k in range(8):
            e(f"v_pk_mul_f32 v[{D+2*k}:{D+2*k+1}], v[{D+2*k}:{D+2*k+1}], v[{D+2*k}:{D+2*k+1}]")
        tree16(RS, D, TMP)
        half_sum(RS, TMP)
        e(f"v_mul_f32 v{RS}, {hx(f2u(1/512))}, v{RS}")
        bfr(MEAN)
        bfr(RS)
        e(f"v_add_f32 v{RS}, {hx(f2u(1e-5))}, v{RS}")
        bfr(RS)
        e(f"v_sqrt_f32 v{RS}, v{RS}")
        bfr(RS)
        e(f"v_rcp_f32 v{RS}, v{RS}")

    def norm_all(XF, m, rs, PK):
        for k in range(16):
            e(f"v_sub_f32 v{XF+k}, v{XF+k}, v{m}")
        for k in range(8):
            e(f"v_cvt_pk_bf16_f32 v{PK+k}, v{XF+2*k}, v{XF+2*k+1}")
        for k in range(8):
            unpack(XF + 2 * k, PK + k)
        for k in range(16):
            e(f"v_mul_f32 v{XF+k}, v{rs}, v{XF+k}")
        for k in range(8):
            e(f"v_cvt_pk_bf16_f32 v{PK+k}, v{XF+2*k}, v{XF+2*k+1}")

    def wperm(dst, r0, r1):
        for c in range(8):
            sel = f"s{PL}" if (c & 1) == 0 else f"s{PH}"
            e(f"v_perm_b32 v{dst+c}, v{r1+(c>>1)}, v{r0+(c>>1)}, {sel}")

    ACC = 80
    def dots(wp, x0, x1, first):
        for bb, xr in ((0, x0), (1, x1)):
            for c in range(8):
                d = ACC + 8 * bb + c
                if first:
                    e(f"v_dot2_f32_bf16 v{d}, v{wp+c}, v{xr}, 0")
                else:
                    e(f"v_dot2c_f32_bf16 v{d}, v{wp+c}, v{xr}")

    def red_addr():
        e("v_lshrrev_b32 v120, 5, v0")
        e("v_lshlrev_b32 v120, 8, v120")
        e("v_bfe_u32 v123, v0, 4, 1")
        e("v_lshl_add_u32 v120, v123, 4, v120")
        e("v_and_b32 v123, 7, v0")
        e("v_lshl_add_u32 v120, v123, 5, v120")
        e(f"s_lshl_b32 s5, s{HW}, 9")
        e("v_add_u32 v120, s5, v120")
        e("v_lshlrev_b32 v122, 4, v0")
        e("v_mov_b32 v121, 1")
        e("v_mov_b32 v101, 0")

    def reduce_publish(lab):
        for k in range(8):
            e(f"v_permlane32_swap_b32 v{ACC+k}, v{ACC+8+k}")
        for k in range(4):
            e(f"v_pk_add_f32 v[{ACC+2*k}:{ACC+2*k+1}], v[{ACC+2*k}:{ACC+2*k+1}], v[{ACC+8+2*k}:{ACC+9+2*k}]")
        for k in range(4):
            e(f"v_permlane16_swap_b32 v{ACC+k}, v{ACC+4+k}")
        for k in range(2):
            e(f"v_pk_add_f32 v[{ACC+2*k}:{ACC+2*k+1}], v[{ACC+2*k}:{ACC+2*k+1}], v[{ACC+4+2*k}:{ACC+5+2*k}]")
        for k in range(4):
            e(f"v_add_f32_dpp v{ACC+k}, v{ACC+k}, v{ACC+k} row_ror:8 {DPPM}")
        e("s_mov_b32 exec_lo, 0x00ff00ff")
        e("s_mov_b32 exec_hi, 0x00ff00ff")
        e(f"ds_write_b128 v120, v[{ACC}:{ACC+3}] offset:{L_P}")
        e("s_mov_b64 exec, 1")
        e(f"ds_add_rtn_u32 v64, v101, v121 offset:{L_CNT+4}")
        e("s_waitcnt lgkmcnt(0)")
        e("v_readfirstlane_b32 s4, v64")
        e("s_mov_b64 exec, -1")
        e("s_cmp_lg_u32 s4, 3")
        e(f"s_cbranch_scc1 {lab}")
        e("s_mov_b32 exec_hi, 0")
        for w in range(4):
            e(f"ds_read_b128 v[{64+4*w}:{67+4*w}], v122 offset:{L_P+512*w}")
        e("s_waitcnt lgkmcnt(0)")
        for k in range(2):
            e(f"v_pk_add_f32 v[{64+2*k}:{65+2*k}], v[{64+2*k}:{65+2*k}], v[{68+2*k}:{69+2*k}]")
            e(f"v_pk_add_f32 v[{72+2*k}:{73+2*k}], v[{72+2*k}:{73+2*k}], v[{76+2*k}:{77+2*k}]")
        for k in range(2):
            e(f"v_pk_add_f32 v[{64+2*k}:{65+2*k}], v[{64+2*k}:{65+2*k}], v[{72+2*k}:{73+2*k}]")

    def poll(loads, lab, sleep):
        n = len(loads)
        P = [78 + 2 * i for i in range(n)]
        assert n <= 7
        for p in P:
            e(f"s_mov_b64 s[{p}:{p+1}], -1")
        e(f"s_mov_b32 s92, {spin}")
        e(f"{lab}_top:")
        for i, (txt, tags) in enumerate(loads):
            e(f"s_mov_b64 exec, s[{P[i]}:{P[i]+1}]")
            e(f"s_cbranch_execz {lab}_s{i}")
            e(txt)
            e(f"{lab}_s{i}:")
        e("s_waitcnt vmcnt(0)")
        for i, (txt, tags) in enumerate(loads):
            e(f"s_mov_b64 exec, s[{P[i]}:{P[i]+1}]")
            e(f"v_cmp_ne_u32_e64 s[{P[i]}:{P[i]+1}], v{tags[0]}, s{TAG}")
            for tg in tags[1:]:
                e(f"v_cmp_ne_u32_e64 vcc, v{tg}, s{TAG}")
                e(f"s_or_b64 s[{P[i]}:{P[i]+1}], s[{P[i]}:{P[i]+1}], vcc")
        e("s_mov_b64 exec, -1")
        e(f"s_mov_b64 s[4:5], s[{P[0]}:{P[0]+1}]")
        for p in P[1:]:
            e(f"s_or_b64 s[4:5], s[4:5], s[{p}:{p+1}]")
        e("s_cmp_eq_u64 s[4:5], 0")
        e(f"s_cbranch_scc1 {lab}_done")
        if sleep:
            e(f"s_sleep {sleep}")
        e("s_sub_u32 s92, s92, 1")
        e("s_cmp_lg_u32 s92, 0")
        e(f"s_cbranch_scc1 {lab}_top")
        e(f"{lab}_done:")

    e(f"{NAME}:")
    e("s_cmp_ge_u32 s2, 256")
    e("s_cbranch_scc1 L_end")
    if pad:
        e("s_memrealtime s[8:9]")
    e("s_load_dwordx16 s[72:87], s[0:1], 0")
    e("s_load_dwordx8 s[88:95], s[0:1], 64")
    e(f"s_load_dwordx2 s[{WS}:{WS+1}], s[0:1], 96")
    e("v_lshrrev_b32 v1, 6, v0")
    e("v_and_b32 v0, 63, v0")
    e("s_bfe_u32 s4, s2, 0x40003")
    e("v_readfirstlane_b32 s3, v1")
    e("s_lshl_b32 s4, s4, 23")
    if gl or pool:
        e(f"s_mov_b32 s{LIM}, {1<<23}")
    elif ilv:
        e("s_and_b32 s5, s2, 7")
        e("s_lshl_b32 s5, s5, 14")
        e("s_add_u32 s4, s4, s5")
        e("s_lshr_b32 s5, s2, 7")
        e("s_lshl_b32 s5, s5, 13")
        e("s_add_u32 s4, s4, s5")
        e(f"s_mov_b32 s{LIM}, {(1<<23)-15*8192}")
    else:
        e("s_and_b32 s5, s2, 7")
        e("s_lshl_b32 s5, s5, 20")
        e("s_add_u32 s4, s4, s5")
        e("s_cmp_ge_u32 s2, 128")
        e(f"s_cselect_b32 s5, {NH*8192}, 0")
        e(f"s_mov_b32 s{LIM}, {NH*8192}")
        e(f"s_cselect_b32 s{LIM}, {NL*8192}, s{LIM}")
        e("s_add_u32 s4, s4, s5")
    e(f"s_mov_b32 s{K+2}, s{LIM}")
    e(f"s_mov_b32 s{K+3}, 0x00020000")
    e(f"s_mov_b32 s{V+2}, s{LIM}")
    e(f"s_mov_b32 s{V+3}, 0x00020000")
    e(f"s_mov_b32 s{WS+2}, {WS_SIZE}")
    e(f"s_mov_b32 s{WS+3}, 0x00020000")
    e(f"s_mov_b32 s{SC}, {hx(f2u(C_SC))}")
    e(f"s_mov_b32 s{NSC}, {hx(f2u(-C_SC))}")
    e(f"s_mov_b32 s{PL}, 0x05040100")
    e(f"s_mov_b32 s{PH}, 0x07060302")
    e(f"s_mov_b32 s{OUT+2}, 2048")
    e(f"s_mov_b32 s{OUT+3}, 0x00020000")
    if prof:
        for k in range(8):
            e(f"s_mov_b32 s{8+2*k}, 0")
        e("s_memrealtime s[20:21]")
    if eb:
        e("v_and_b32 v100, 3, v0")
        e("v_lshlrev_b32 v100, 2, v100")
        e("v_mov_b32 v101, 0")
        e(f"ds_write_b32 v100, v101 offset:{L_CNT}")
    e("s_waitcnt lgkmcnt(0)")
    if eb:
        e("s_barrier")
    e(f"s_add_u32 s{K}, s74, s4")
    e(f"s_addc_u32 s{K+1}, s75, 0")
    e(f"s_add_u32 s{V}, s76, s4")
    e(f"s_addc_u32 s{V+1}, s77, 0")
    e(f"s_mov_b64 s[{OUT}:{OUT+1}], s[92:93]")
    e("s_cmp_ge_u32 s3, 4")
    e("s_cbranch_scc1 L_helper")
    e("s_cmp_eq_u32 s3, 0")
    e("s_cbranch_scc1 L_w0")
    bar0()
    stamp(0)

    e("L_stream:")
    stamp(1)
    e("v_and_b32 v5, 15, v0")
    e("v_lshrrev_b32 v6, 4, v0")
    e("v_lshlrev_b32 v3, 10, v6")
    e("v_lshl_add_u32 v3, v5, 4, v3")
    e("v_add_u32 v4, 4096, v3")
    if gl:
        e("s_and_b32 s4, s2, 7")
        e("s_lshl_b32 s4, s4, 4")
        e("s_lshr_b32 s5, s2, 7")
        e("s_lshl_b32 s5, s5, 3")
        e("s_add_u32 s4, s4, s5")
        e("s_add_u32 s4, s4, s3")
        e(f"s_mul_i32 s{OFF[0]}, s4, 24576")
        e(f"s_add_u32 s{OFF[1]}, s{OFF[0]}, 8192")
        e(f"s_add_u32 s{OFF[2]}, s{OFF[0]}, 16384")
        e("s_bfe_u32 s4, s2, 0x40003")
        if gl == 'dbg':
            e(f"s_load_dwordx2 s[{WO}:{WO+1}], s[0:1], 88")
            e(f"s_mov_b32 s{WO+2}, 256")
            e(f"s_mov_b32 s{WO+3}, 0x00020000")
            e(f"s_lshl_b32 s{LIME}, s4, 4")
        else:
            e(f"s_mul_i32 s{LIME}, s4, {cstr}")
            e(f"s_add_u32 s{LIME}, s{LIME}, {CG}")
    else:
        e("s_mov_b64 exec, 1")
        for i in range(3):
            if i == HP:
                for j in range(HP, 3):
                    e(f"v_mov_b32 v{8+j}, 0x400000")
                e("s_cmp_ge_u32 s3, 4")
                e("s_cbranch_scc1 L_st_hp")
            e(f"ds_add_rtn_u32 v{8+i}, v3, v4 offset:{L_CNT}")
        if HP < 3:
            e("L_st_hp:")
        e("s_mov_b64 exec, -1")
    if pool:
        e("s_and_b32 s4, s2, 7")
        e(f"s_mul_i32 s{WB}, s4, {(NH+NL)*8192}")
        e("s_and_b32 s4, s2, 1")
        e(f"s_mul_i32 s4, s4, {2*par*8192}")
        e(f"s_add_u32 s{WB}, s{WB}, s4")
        e(f"s_sub_u32 s4, {par*8192}, s4")
        e(f"s_add_u32 s5, s4, {NH*8192}")
        e(f"s_add_u32 s4, s4, {NL*8192}")
        e("s_cmp_ge_u32 s2, 128")
        e(f"s_cselect_b32 s{LIM}, s4, s5")
        e("s_cselect_b32 s5, s5, 0")
        e(f"s_add_u32 s{WB}, s{WB}, s5")
        e(f"s_add_u32 s{LIM}, s{LIM}, s{WB}")
        e("s_bfe_u32 s4, s2, 0x40003")
        e(f"s_mul_i32 s{LIME}, s4, {cstr}")
        e(f"s_add_u32 s{LIME}, s{LIME}, {CG}")
        e(f"s_mov_b32 s{MODE}, 0")
    if hprio:
        e("s_setprio 0")
        e("s_cmp_lt_u32 s3, 4")
        e("s_cbranch_scc1 L_st_prio")
        e(f"s_setprio {hprio}")
        e("L_st_prio:")
    else:
        e("s_setprio 0")
    if fl:
        e("v_lshrrev_b32 v2, 3, v5")
        e("v_lshlrev_b32 v2, 6, v2")
        e("v_lshl_add_u32 v2, v6, 4, v2")
        e("v_and_b32 v1, 7, v5")
        e("v_lshl_add_u32 v1, v1, 8, v2")
        e("v_and_b32 v7, 3, v5")
        e("v_lshl_add_u32 v7, v7, 8, v2")
        e("v_add_u32 v2, 4096, v1")
    else:
        e("v_lshlrev_b32 v1, 8, v5")
        e("v_lshl_add_u32 v1, v6, 4, v1")
        e("v_add_u32 v2, 4096, v1")
        e("v_and_b32 v7, 3, v5")
        e("v_lshlrev_b32 v7, 8, v7")
        e("v_lshl_add_u32 v7, v6, 4, v7")
    e("v_mov_b32 v5, 0xff800000")
    e("v_mov_b32 v6, 0")
    e(f"s_mov_b32 s{REM}, 0")
    e(f"s_mov_b32 s{VP}, 0")
    if not gl and not pool:
        e(f"s_sub_u32 s{LIME}, s{LIM}, {E*8192*(16 if ilv else 1)}")
    if trace:
        e("s_mov_b32 s31, 0")
    if not gl:
        e("s_waitcnt lgkmcnt(0)")
        for i in range(3):
            e(f"v_readfirstlane_b32 s{OFF[i]}, v{8+i}")
    e(f"s_load_dword s{EP}, s[{WS}:{WS+1}], 4")
    if not gl:
        for i in range(3):
            if pool:
                e(f"s_lshl1_add_u32 s{OFF[i]}, s{OFF[i]}, s{WB}")
            else:
                e(f"s_lshl_b32 s{OFF[i]}, s{OFF[i]}, {5 if ilv else 1}")

    def gclaim():
        e("v_mov_b32 v7, 0x2000")
        e("s_mov_b64 exec, 1")
        e(f"buffer_atomic_add v7, off, {srd(WO if gl == 'dbg' else WS)}, s{LIME} sc0")
        e("s_mov_b64 exec, -1")

    def kload(slot, idx):
        kb = 64 + 64 * slot
        T, t = idx >> 2, idx & 3
        r = kb + 16 * T + 4 * t
        o = (2048 * (t >> 1) + 128 * (t & 1)) if fl else 64 * t
        e(f"buffer_load_dwordx4 v[{r}:{r+3}], v{1+T}, {srd(K)}, s{OFF[slot]} offen offset:{o} {kpol}")
    def vload(slot, i):
        r = 96 + 64 * slot + 4 * i
        e(f"buffer_load_dwordx4 v[{r}:{r+3}], v{3+(i>>2)}, {srd(V)}, s{OFF[slot]} offen offset:{256*(i&3)} {vpol}")
    def groups(fn, slot, lo, hi, w, first=False):
        for i in range(lo, hi):
            if (i % G) == 0 and not (first and i == lo):
                e(f"s_waitcnt vmcnt({w-G})")
            fn(slot, i)

    for i in range(3):
        if not gl:
            e(f"s_cmp_ge_u32 s{OFF[i]}, s{LIM}")
            e(f"s_cbranch_scc1 {'L_st_nowork' if i == 0 else 'L_st_pro_done'}")
        groups(kload, i, 0, 8, PW, first=(i == 0))
        if i == 0:
            for r in range(32, 64):
                e(f"v_mov_b32 v{r}, 0")
        groups(vload, i, 0, 8, PW)
        e(f"s_mov_b32 s{REM}, {i+1}")
    e("L_st_pro_done:")
    stamp(2)
    e(f"s_mov_b32 s{CL}, {spin}")
    e("s_mov_b64 exec, 1")
    e("L_qflag:")
    e(f"ds_read_b32 v8, v3 offset:{L_CNT+8}")
    e("s_waitcnt lgkmcnt(0)")
    e("v_readfirstlane_b32 s4, v8")
    e("s_cmp_lg_u32 s4, 0")
    e("s_cbranch_scc1 L_qflag_done")
    e("s_sleep 1")
    e(f"s_sub_u32 s{CL}, s{CL}, 1")
    e(f"s_cmp_lg_u32 s{CL}, 0")
    e("s_cbranch_scc1 L_qflag")
    e("L_qflag_done:")
    e("s_mov_b64 exec, -1")
    if fl:
        for t in range(2):
            e(f"ds_read_b128 v[{24+4*t}:{27+4*t}], v7 offset:{L_Q+128*t}")
    else:
        for t in range(4):
            e(f"ds_read_b128 v[{16+4*t}:{19+4*t}], v7 offset:{L_Q+64*t}")
    e("s_waitcnt lgkmcnt(0)")
    if gl:
        gclaim()
    stamp(3)

    e("L_st_loop:")
    for slot in range(3):
        kb = 64 + 64 * slot
        vb = kb + 32
        vs = (slot + 2) % 3
        H1 = 8 if G == 8 else 4
        e(f"s_cmp_eq_u32 s{VP}, 0")
        e(f"s_cbranch_scc1 L_st_nova{slot}")
        groups(vload, vs, 0, H1, W)
        e(f"L_st_go{slot}:")
        if fl:
            for H in range(2):
                for Gq in range(4):
                    d = 8 + 4 * Gq
                    c = "0" if H == 0 else f"v[{d}:{d+3}]"
                    r = kb + 8 * Gq + 4 * H
                    e(f"v_mfma_f32_16x16x32_bf16 v[{d}:{d+3}], v[{r}:{r+3}], v[{24+4*H}:{27+4*H}], {c}")
            for r in range(4):
                e(f"v_permlane32_swap_b32 v{8+r}, v{12+r}")
            for r in range(4):
                e(f"v_permlane32_swap_b32 v{16+r}, v{20+r}")
            for r in range(4):
                e(f"v_add_f32_dpp v{8+r}, v{12+r}, v{8+r} row_ror:8 {DPPM}")
            for r in range(4):
                e(f"v_add_f32_dpp v{12+r}, v{20+r}, v{16+r} row_ror:8 {DPPM}")
        else:
            for t in range(4):
                for T in range(2):
                    d = 8 + 4 * T
                    c = "0" if t == 0 else f"v[{d}:{d+3}]"
                    r = kb + 16 * T + 4 * t
                    e(f"v_mfma_f32_16x16x32_bf16 v[{d}:{d+3}], v[{r}:{r+3}], v[{16+4*t}:{19+4*t}], {c}")
        t0, t1, al, nm = kb + 28, kb + 29, kb + 30, kb + 31
        e(f"v_max3_f32 v{t0}, v8, v9, v10")
        e(f"v_max3_f32 v{t1}, v12, v13, v14")
        e(f"v_max3_f32 v{t0}, v{t0}, v11, v5")
        e(f"v_max3_f32 v{t0}, v{t0}, v{t1}, v15")
        e(f"v_mov_b32 v{t1}, v{t0}")
        e(f"v_permlane32_swap_b32 v{t0}, v{t1}")
        e(f"v_max_f32 v{t0}, v{t0}, v{t1}")
        e(f"v_mov_b32 v{t1}, v{t0}")
        e(f"v_permlane16_swap_b32 v{t0}, v{t1}")
        e(f"v_max_f32 v{t0}, v{t0}, v{t1}")
        e(f"v_sub_f32 v{t1}, v5, v{t0}")
        e(f"v_mul_f32 v{nm}, s{NSC}, v{t0}")
        e(f"v_mul_f32 v{t1}, s{SC}, v{t1}")
        e(f"v_mov_b32 v5, v{t0}")
        e(f"v_exp_f32 v{al}, v{t1}")
        for i in range(8):
            e(f"v_fma_f32 v{8+i}, v{8+i}, s{SC}, v{nm}")
        for i in range(8):
            e(f"v_exp_f32 v{8+i}, v{8+i}")
        for k in range(16):
            e(f"v_pk_mul_f32 v[{32+2*k}:{33+2*k}], v[{32+2*k}:{33+2*k}], v[{al}:{al+1}] op_sel_hi:[1,0]")
        e(f"v_mul_f32 v6, v6, v{al}")
        e(f"v_add_f32 v{t0}, v8, v9")
        e(f"v_add_f32 v{t1}, v10, v11")
        e(f"v_add_f32 v6, v6, v12")
        e(f"v_add_f32 v{t0}, v{t0}, v13")
        e(f"v_add_f32 v{t1}, v{t1}, v14")
        e(f"v_add_f32 v6, v6, v15")
        e(f"v_add_f32 v{t0}, v{t0}, v{t1}")
        e("v_cvt_pk_bf16_f32 v8, v8, v9")
        e("v_cvt_pk_bf16_f32 v9, v10, v11")
        e("v_cvt_pk_bf16_f32 v10, v12, v13")
        e("v_cvt_pk_bf16_f32 v11, v14, v15")
        e(f"v_add_f32 v6, v6, v{t0}")
        if H1 < 8:
            e(f"s_cmp_eq_u32 s{VP}, 0")
            e(f"s_cbranch_scc1 L_st_novb{slot}")
            if gl:
                assert G == 4
                e(f"s_waitcnt vmcnt({W-G})")
                gclaim()
                groups(vload, vs, H1, 8, W, first=True)
            elif pool:
                assert G == 4
                e(f"s_waitcnt vmcnt({W-G})")
                e(f"s_cmp_eq_u32 s{MODE}, 0")
                e(f"s_cbranch_scc1 L_st_nog{slot}")
                gclaim()
                e(f"L_st_nog{slot}:")
                groups(vload, vs, H1, 8, W, first=True)
            else:
                groups(vload, vs, H1, 8, W)
            e(f"L_st_novb{slot}:")
        e(f"s_cmp_lg_u32 s{REM}, 1")
        e(f"s_cbranch_scc1 L_st_notlast{slot}")
        e("s_waitcnt vmcnt(0)")
        e(f"L_st_notlast{slot}:")
        def perms(jj):
            sel = f"s{PL}" if (jj & 1) == 0 else f"s{PH}"
            for q in range(4):
                e(f"v_perm_b32 v{kb+4*jj+q}, v{vb+4*(2*q+1)+(jj>>1)}, v{vb+4*(2*q)+(jj>>1)}, {sel}")
        def pv(jj):
            d = 32 + 4 * jj
            e(f"v_mfma_f32_16x16x32_bf16 v[{d}:{d+3}], v[{kb+4*jj}:{kb+4*jj+3}], v[8:11], v[{d}:{d+3}]")
        perms(0)
        for jj in range(8):
            if jj + 1 < 8:
                perms(jj + 1)
            pv(jj)
        e(f"s_sub_u32 s{REM}, s{REM}, 1")
        e(f"s_cmp_eq_u32 s{REM}, 0")
        e("s_cbranch_scc1 L_st_done")
        if gl:
            e(f"s_cmp_lg_u32 s{REM}, 2")
            e(f"s_cbranch_scc1 L_st_nok{slot}")
            e(f"s_waitcnt vmcnt({min(W-G, 4)})")
            if slot == 0:
                e(f"s_cmp_lg_u32 s{VP}, 0")
                e("s_cbranch_scc1 L_st_claim0")
                e("s_waitcnt vmcnt(0)")
                e("L_st_claim0:")
            e(f"v_readfirstlane_b32 s{OFF[slot]}, v7")
            e(f"s_mov_b32 s{VP}, 0")
            if gl == 'dbg':
                e(f"s_add_u32 s{OFF[slot]}, s{OFF[slot]}, {384*8192}")
            e(f"s_cmp_ge_u32 s{OFF[slot]}, s{LIM}")
            e(f"s_cbranch_scc1 L_st_nok{slot}")
        elif pool:
            e(f"s_mov_b32 s{VP}, 0")
            e(f"s_cmp_lg_u32 s{REM}, 2")
            e(f"s_cbranch_scc1 L_st_nok{slot}")
            e(f"s_waitcnt vmcnt({min(W-G, 4)})")
            e(f"s_cmp_lg_u32 s{MODE}, 0")
            e(f"s_cbranch_scc1 L_st_g{slot}")
            e("s_mov_b64 exec, 1")
            e(f"ds_add_rtn_u32 v7, v3, v4 offset:{L_CNT}")
            e("s_mov_b64 exec, -1")
            e("s_waitcnt lgkmcnt(0)")
            e(f"v_readfirstlane_b32 s{CL}, v7")
            e(f"s_lshl1_add_u32 s{OFF[slot]}, s{CL}, s{WB}")
            e(f"s_cmp_ge_u32 s{OFF[slot]}, s{LIM}")
            e(f"s_cbranch_scc1 L_st_sw{slot}")
            e(f"L_st_k{slot}:")
        else:
            e(f"s_mov_b32 s{VP}, 0")
            e(f"s_cmp_lg_u32 s{REM}, 2")
            e(f"s_cbranch_scc1 L_st_nok{slot}")
            if HQ:
                e("s_cmp_ge_u32 s3, 4")
                e(f"s_cbranch_scc1 L_st_peek{slot}")
                e(f"L_st_unpeek{slot}:")
            e(f"s_cmp_ge_u32 s{OFF[vs]}, s{LIME}")
            e(f"s_cbranch_scc1 L_st_claim{slot}")
            e(f"s_waitcnt vmcnt({W-G})")
            e(f"L_st_claim{slot}:")
            e("s_mov_b64 exec, 1")
            e(f"ds_add_rtn_u32 v7, v3, v4 offset:{L_CNT}")
            e("s_mov_b64 exec, -1")
            e("s_waitcnt lgkmcnt(0)")
            e(f"v_readfirstlane_b32 s{CL}, v7")
            e(f"s_lshl_b32 s{OFF[slot]}, s{CL}, {5 if ilv else 1}")
            e(f"s_cmp_ge_u32 s{OFF[slot]}, s{LIME}")
            e(f"s_cbranch_scc1 L_st_end{slot}")
        groups(kload, slot, 0, 8, W, first=True)
        e(f"s_mov_b32 s{VP}, 1")
        e(f"s_mov_b32 s{REM}, 3")
        e(f"L_st_nok{slot}:")
        if trace:
            e("s_memrealtime s[60:61]")
            e("s_mov_b32 m0, s31")
            e("s_add_u32 s31, s31, 1")
            e("s_waitcnt lgkmcnt(0)")
            e("v_writelane_b32 v0, s60, m0")
    e("s_branch L_st_loop")
    for slot in range(3):
        e(f"L_st_nova{slot}:")
        e("s_waitcnt vmcnt(32)")
        e(f"s_cmp_eq_u32 s{REM}, 3")
        e(f"s_cbranch_scc1 L_st_go{slot}")
        e("s_waitcnt vmcnt(16)")
        e(f"s_cmp_eq_u32 s{REM}, 2")
        e(f"s_cbranch_scc1 L_st_go{slot}")
        e("s_waitcnt vmcnt(8)")
        e(f"s_branch L_st_go{slot}")
        if gl:
            continue
        if pool:
            e(f"L_st_sw{slot}:")
            e(f"s_mov_b32 s{MODE}, 1")
            e(f"s_mov_b32 s{LIM}, {1<<23}")
            gclaim()
            e("s_waitcnt vmcnt(0)")
            e(f"L_st_g{slot}:")
            e(f"v_readfirstlane_b32 s{OFF[slot]}, v7")
            e(f"s_cmp_lt_u32 s{OFF[slot]}, s{LIM}")
            e(f"s_cbranch_scc1 L_st_k{slot}")
            e(f"s_branch L_st_nok{slot}")
            continue
        if HQ:
            e(f"L_st_peek{slot}:")
            if HQ >= 64:
                e(f"s_branch L_st_nok{slot}")
            else:
                e("s_mov_b64 exec, 1")
                e(f"ds_read_b32 v7, v3 offset:{L_CNT}")
                e("s_mov_b64 exec, -1")
                e("s_waitcnt lgkmcnt(0)")
                e(f"v_readfirstlane_b32 s{CL}, v7")
                e(f"s_lshl1_add_u32 s{CL}, s{CL}, {HQ*8192}")
                e(f"s_cmp_ge_u32 s{CL}, s{LIM}")
                e(f"s_cbranch_scc1 L_st_nok{slot}")
                e(f"s_branch L_st_unpeek{slot}")
        e(f"L_st_end{slot}:")
        e(f"s_cmp_ge_u32 s{OFF[slot]}, s{LIM}")
        e(f"s_cbranch_scc1 L_st_nok{slot}")
        for i in range(8):
            kload(slot, i)
        for i in range(8):
            vload(slot, i)
        e(f"s_mov_b32 s{REM}, 3")
        e(f"s_branch L_st_nok{slot}")

    if not gl:
        e("L_st_nowork:")
        for r in range(32, 64):
            e(f"v_mov_b32 v{r}, 0")
    e("L_st_done:")
    stamp(4)
    if trace:
        e("v_mov_b32 v8, v0")
        e("v_mbcnt_lo_u32_b32 v0, -1, 0")
        e("v_mbcnt_hi_u32_b32 v0, -1, v0")
        e("v_writelane_b32 v8, s31, 63")
        e("s_lshl_b32 s4, s2, 3")
        e("s_add_u32 s4, s4, s3")
        e("s_lshl_b32 s4, s4, 8")
        e(f"s_add_u32 s4, s4, {PROFB+0x20000}")
        e("v_lshlrev_b32 v9, 2, v0")
        e(f"buffer_store_dword v8, v9, {srd(WS)}, s4 offen")
    e("v_mov_b32 v7, v6")
    e("v_permlane32_swap_b32 v6, v7")
    e("v_add_f32 v6, v6, v7")
    e("v_mov_b32 v7, v6")
    e("v_permlane16_swap_b32 v6, v7")
    e("v_add_f32 v6, v6, v7")
    e(f"v_mul_f32 v5, s{SC}, v5")
    e("v_and_b32 v1, 15, v0")
    e("v_lshrrev_b32 v2, 4, v0")
    e("v_lshl_add_u32 v2, v1, 2, v2")
    e("v_lshlrev_b32 v2, 4, v2")
    e("s_lshl_b32 s4, s3, 11")
    e("v_add_u32 v2, s4, v2")
    e("s_lshl_b32 s4, s3, 2")
    e("v_lshl_add_u32 v1, v1, 5, s4")
    e("s_mov_b32 exec_lo, 0x000f000f")
    e("s_mov_b32 exec_hi, 0x000f000f")
    for jj in range(8):
        e(f"ds_write_b128 v2, v[{32+4*jj}:{35+4*jj}] offset:{L_ACC+256*jj}")
    e("s_mov_b64 exec, 15")
    e(f"ds_write_b32 v1, v5 offset:{L_MC}")
    e(f"ds_write_b32 v1, v6 offset:{L_L}")
    e("s_mov_b64 exec, -1")
    e("s_cmp_ge_u32 s3, 4")
    e("s_cbranch_scc1 L_tail")
    e("s_waitcnt lgkmcnt(0)")
    e("s_barrier")
    stamp(5)
    prof_out()
    e("s_endpgm")

    e("L_w0:")
    set_srd(WO, 80, 4096 * 512 * 2)
    e(f"s_load_dword s{EP}, s[{WS}:{WS+1}], 4")
    e("s_setprio 3")
    e("s_and_b32 s4, s2, 7")
    e("s_lshl_b32 s4, s4, 3")
    e("s_lshr_b32 s5, s2, 5")
    e("s_add_u32 s4, s4, s5")
    e("s_lshl_b32 s4, s4, 16")
    e("s_bfe_u32 s5, s2, 0x20003")
    e("s_lshl_b32 s5, s5, 8")
    e("s_add_u32 s4, s4, s5")
    e("v_lshrrev_b32 v64, 4, v0")
    e("v_lshlrev_b32 v64, 13, v64")
    e("v_and_b32 v65, 15, v0")
    e("v_lshl_add_u32 v64, v65, 4, v64")
    e("v_lshlrev_b32 v122, 4, v0")
    bar0()
    stamp(0)
    for s in range(2):
        for h in range(2):
            if s or h:
                e(f"s_add_u32 s5, s4, {s*32768+h*4096}")
            so = "s5" if (s or h) else "s4"
            for i4 in range(4):
                r = 128 + 4 * (8 * s + 4 * h + i4)
                e(f"buffer_load_dwordx4 v[{r}:{r+3}], v64, {srd(WO)}, {so} offen offset:{1024*i4} {opol}")
    e("s_bfe_u32 s93, s2, 0x30003")
    e("s_lshl_b32 s93, s93, 12")
    e("s_bfe_u32 s5, s2, 0x10006")
    e("s_lshl_b32 s5, s5, 11")
    e("s_add_u32 s93, s93, s5")
    e(f"s_add_u32 s93, s93, {QG}")
    e("v_lshlrev_b32 v72, 3, v0")
    e("v_mov_b32 v73, 1")
    e("s_waitcnt lgkmcnt(0)")
    mk_tag(EP)
    for s in range(2):
        e(f"s_waitcnt vmcnt({8-8*s})")
        for jj in range(8):
            sel = f"s{PL}" if (jj & 1) == 0 else f"s{PH}"
            for q in range(4):
                r0 = 128 + 4 * (8 * s + 2 * q) + (jj >> 1)
                e(f"v_perm_b32 v{192+4*(8*s+jj)+q}, v{r0+4}, v{r0}, {sel}")
        for jj in range(8):
            r = 192 + 4 * (8 * s + jj)
            e(f"ds_write_b128 v122, v[{r}:{r+3}] offset:{L_WO+1024*(8*s+jj)}")
    stamp(6)
    if 'q' in dbg:
        for r in (64, 66, 68, 70):
            e(f"v_mov_b32 v{r}, 0")
    else:
        poll([(f"buffer_load_dwordx4 v[64:67], v122, {srd(WS)}, s93 offen sc1", (65, 67)),
          (f"buffer_load_dwordx4 v[68:71], v122, {srd(WS)}, s93 offen offset:1024 sc1", (69, 71))], "L_qpoll", qsleep)
    e(f"v_add_u32 v72, {L_Q}, v72")
    e("ds_write2_b32 v72, v64, v66 offset0:0 offset1:1")
    e("ds_write2_b32 v72, v68, v70 offset0:128 offset1:129")
    e("v_mov_b32 v72, 0")
    e("s_waitcnt lgkmcnt(0)")
    e(f"ds_write_b32 v72, v73 offset:{L_CNT+8}")
    e("s_branch L_stream")

    e("L_helper:")
    e(f"s_sub_u32 s{HW}, s3, 4")
    if not eb:
        e("v_and_b32 v100, 3, v0")
        e("v_lshlrev_b32 v100, 2, v100")
        e("v_mov_b32 v101, 0")
        e(f"ds_write_b32 v100, v101 offset:{L_CNT}")
    set_srd(X, 72, 2048)
    e("s_setprio 3")
    e("v_lshrrev_b32 v1, 3, v0")
    e("v_and_b32 v14, 7, v0")
    if 'r' in dbg:
        e("s_branch L_role_none")
    e("s_cmp_lt_u32 s2, 64")
    e("s_cbranch_scc1 L_role_q")
    e("s_cmp_lt_u32 s2, 92")
    e("s_cbranch_scc1 L_role_h")
    e("s_cmp_lt_u32 s2, 96")
    e("s_cbranch_scc1 L_role_none")
    e("s_cmp_lt_u32 s2, 128")
    e("s_cbranch_scc1 L_role_g")
    e("s_cmp_ge_u32 s2, 160")
    e("s_cbranch_scc1 L_role_none")
    e("s_cmp_eq_u32 s3, 7")
    e("s_cbranch_scc1 L_role_f")
    e("L_role_none:")
    e("s_waitcnt lgkmcnt(0)")
    bar0()
    stamp(0)

    e("L_join:")
    e("s_mov_b64 exec, -1")
    e("s_bfe_u32 s6, s2, 0x30003")
    e("s_bfe_u32 s7, s2, 0x10006")
    e("s_and_b32 s5, s2, 7")
    e("s_lshl_b32 s5, s5, 1")
    e("s_lshr_b32 s4, s2, 7")
    e("s_add_u32 s5, s5, s4")
    e("s_lshl_b32 s4, s6, 1")
    e("s_add_u32 s4, s4, s7")
    e("s_lshl_b32 s4, s4, 4")
    e("s_add_u32 s4, s4, s5")
    e("s_lshl_b32 s4, s4, 2")
    e(f"s_add_u32 s4, s4, s{HW}")
    e("s_lshl_b32 s4, s4, 10")
    e(f"s_add_u32 s72, s4, {PG}")
    e("s_lshl_b32 s4, s6, 2")
    e(f"s_add_u32 s4, s4, s{HW}")
    e("s_lshl_b32 s4, s4, 1")
    e("s_add_u32 s4, s4, s7")
    e("s_lshl_b32 s4, s4, 4")
    e("s_add_u32 s4, s4, s5")
    e("s_lshl_b32 s4, s4, 4")
    e(f"s_add_u32 s73, s4, {MLG}")
    e("s_and_b32 s93, s2, 7")
    e(f"s_lshr_b32 s5, s{HW}, 1")
    e(f"s_and_b32 s38, s{HW}, 1")
    e("s_lshl_b32 s38, s38, 3")
    e("s_lshr_b32 s94, s2, 5")
    e("s_lshl_b32 s4, s93, 1")
    e("s_add_u32 s4, s4, s5")
    e("s_lshl_b32 s4, s4, 4")
    e("s_add_u32 s4, s4, s38")
    e("s_lshl_b32 s4, s4, 3")
    e("s_add_u32 s4, s4, s94")
    e("s_lshl_b32 s4, s4, 9")
    e(f"s_add_u32 s98, s4, {PG}")
    e("s_add_u32 s99, s98, 0x2000")
    e("s_add_u32 s100, s98, 0x4000")
    e("s_add_u32 s101, s98, 0x6000")
    e("s_lshl_b32 s4, s93, 3")
    e("s_add_u32 s4, s4, s94")
    e("s_and_b32 s6, s4, 0xfffffffe")
    e("s_add_u32 s6, s6, s5")
    e("s_lshl_b32 s6, s6, 8")
    e(f"s_add_u32 s74, s6, {MLG}")
    e("s_lshl_b32 s4, s4, 8")
    e("s_bfe_u32 s5, s2, 0x20003")
    e("s_lshl_b32 s5, s5, 17")
    e("s_add_u32 s4, s4, s5")
    e(f"s_add_u32 s75, s4, {SG}")
    e("s_add_u32 s76, s75, 0x4000")
    e("s_and_b32 s4, s2, 31")
    e("s_lshl_b32 s95, s4, 5")
    e("s_lshl_b32 s4, s4, 14")
    e(f"s_lshl_b32 s5, s{HW}, 12")
    e("s_add_u32 s4, s4, s5")
    e(f"s_add_u32 s77, s4, {SG}")
    e("s_branch L_stream")

    XF, PK, XS = 32, 48, 16
    for kind in "qh":
        e(f"L_role_{kind}:")
        if kind == "q":
            stride = 8192
            set_srd(WR, 78, 512 * 4096 * 2)
            e("s_mov_b32 s96, s2")
            if gl == 'ws' or pool:
                e("s_lshr_b32 s5, s2, 3")
                e(f"s_mul_i32 s5, s5, {cstr}")
                e(f"s_add_u32 s5, s5, {CG}")
                e(f"v_mul_u32_u24 v98, {8*cstr}, v0")
                e(f"v_mov_b32 v99, {(1024-P)*8192 if pool else 384*8192}")
                e("s_mov_b64 exec, 3")
                e(f"buffer_store_dword v99, v98, {srd(WS)}, s5 offen sc1")
                e("s_mov_b64 exec, -1")
            e("v_lshlrev_b32 v98, 17, v1")
            e(f"s_lshl_b32 s4, s{HW}, 20")
        else:
            stride = 3584
            set_srd(WR, 84, 512 * 1792 * 2)
            set_srd(BR, 86, 1792 * 2)
            e("s_sub_u32 s96, s2, 64")
            e(f"v_mul_u32_u24 v98, {16*stride}, v1")
            e(f"s_mul_i32 s4, s{HW}, {128*stride}")
        e("v_lshl_add_u32 v98, v14, 4, v98")
        e("s_lshl_b32 s5, s96, 7")
        e("s_add_u32 s4, s4, s5")
        e("v_lshlrev_b32 v15, 5, v0")
        if kind == "h":
            e("v_and_b32 v99, 15, v0")
            e("v_lshlrev_b32 v99, 3, v99")
            e(f"buffer_load_dwordx2 v[102:103], v99, {srd(BR)}, s5 offen")
        e(f"buffer_load_dwordx4 v[2:5], v15, {srd(X)}, 0 offen")
        e(f"buffer_load_dwordx4 v[6:9], v15, {srd(X)}, 0 offen offset:16")
        for i in range(16):
            e(f"buffer_load_dwordx4 v[{128+4*i}:{131+4*i}], v98, {srd(WR)}, s4 offen {wpol}")
            if i < 15:
                e(f"s_add_u32 s4, s4, {stride}")
        e("s_waitcnt lgkmcnt(0)")
        e(f"s_load_dword s{EP}, s[{WS}:{WS+1}], 4")
        bar0()
        stamp(0)
        red_addr()
        e(f"s_lshl_b32 s4, s{HW}, 5")
        e("v_lshl_add_u32 v97, v1, 2, s4")
        e("v_lshrrev_b32 v125, 4, v0")
        e("v_and_b32 v126, 15, v0")
        e("v_lshlrev_b32 v126, 4, v126")
        e("s_waitcnt vmcnt(16)")
        for k in range(8):
            unpack(XF + 2 * k, 2 + k)
        ln_stats(XF, 60, 61, 64)
        norm_all(XF, 60, 61, PK)
        if kind == "h":
            for k in range(8):
                unpack(XF + 2 * k, PK + k)
            ln_stats(XF, 60, 61, 64)
            norm_all(XF, 60, 61, PK)
        for bb in range(2):
            for k in range(8):
                e(f"ds_bpermute_b32 v{XS+8*bb+k}, v97, v{PK+k} offset:{128*bb}")
            if bb == 0:
                e("s_waitcnt lgkmcnt(0)")
        mk_tag(EP)
        for k in range(8):
            wp = 64 + 8 * (k & 1)
            e(f"s_waitcnt vmcnt({14-2*k})" + (" lgkmcnt(0)" if k == 0 else ""))
            wperm(wp, 128 + 8 * k, 132 + 8 * k)
            dots(wp, XS + k, XS + 8 + k, k == 0)
        reduce_publish("L_join")
        if kind == "q":
            e("v_cvt_pk_bf16_f32 v64, v64, v65")
            e("v_cvt_pk_bf16_f32 v66, v66, v67")
            e(f"v_mov_b32 v65, s{TAG}")
            e(f"v_mov_b32 v67, s{TAG}")
            e("v_lshl_add_u32 v68, v125, 11, v126")
            e("s_lshr_b32 s4, s96, 3")
            e("s_lshl_b32 s4, s4, 12")
            e("s_and_b32 s5, s96, 7")
            e("s_lshl_b32 s5, s5, 8")
            e("s_add_u32 s4, s4, s5")
            e(f"s_add_u32 s4, s4, {QG}")
            e(f"buffer_store_dwordx4 v[64:67], v68, {srd(WS)}, s4 offen sc1")
        else:
            e("v_cvt_pk_bf16_f32 v68, v64, v65")
            e("v_cvt_pk_bf16_f32 v69, v66, v67")
            unpack(64, 68); unpack(66, 69)
            unpack(68, 102); unpack(70, 103)
            e("v_pk_add_f32 v[64:65], v[64:65], v[68:69]")
            e("v_pk_add_f32 v[66:67], v[66:67], v[70:71]")
            e("v_cvt_pk_bf16_f32 v68, v64, v65")
            e("v_cvt_pk_bf16_f32 v69, v66, v67")
            unpack(64, 68); unpack(66, 69)
            k1 = -2.0 * math.sqrt(2.0 / math.pi) * math.log2(math.e)
            e(f"s_mov_b32 s4, {hx(f2u(k1*0.044715))}")
            e(f"v_mov_b32 v72, {hx(f2u(k1))}")
            for k in range(4):
                e(f"v_mul_f32 v{68+k}, v{64+k}, v{64+k}")
            for k in range(4):
                e(f"v_fma_f32 v{68+k}, v{68+k}, s4, v72")
            for k in range(4):
                e(f"v_mul_f32 v{68+k}, v{68+k}, v{64+k}")
            for k in range(4):
                e(f"v_exp_f32 v{68+k}, v{68+k}")
            for k in range(4):
                e(f"v_add_f32 v{68+k}, 1.0, v{68+k}")
            for k in range(4):
                e(f"v_rcp_f32 v{68+k}, v{68+k}")
            for k in range(4):
                e(f"v_mul_f32 v{64+k}, v{64+k}, v{68+k}")
            e("v_cvt_pk_bf16_f32 v64, v64, v65")
            e("v_cvt_pk_bf16_f32 v66, v66, v67")
            e(f"v_mov_b32 v65, s{TAG}")
            e(f"v_mov_b32 v67, s{TAG}")
            e("s_movk_i32 s4, 7168")
            e("v_mad_u32_u24 v68, v125, s4, v126")
            e("s_lshl_b32 s4, s96, 8")
            e(f"s_add_u32 s4, s4, {HG}")
            e(f"buffer_store_dwordx4 v[64:67], v68, {srd(WS)}, s4 offen sc1")
        e("s_branch L_join")

    e("L_role_g:")
    set_srd(WR, 88, 1792 * 512 * 2)
    e("s_and_b32 s96, s2, 7")
    e("s_bfe_u32 s97, s2, 0x20003")
    e("s_lshl_b32 s6, s97, 2")
    e(f"s_add_u32 s6, s6, s{HW}")
    e("s_mul_i32 s6, s6, 112")
    e("s_lshl_b32 s4, s6, 10")
    e("s_lshl_b32 s5, s96, 7")
    e("s_add_u32 s4, s4, s5")
    e(f"v_mul_u32_u24 v98, {14*1024}, v1")
    e("v_lshl_add_u32 v98, v14, 4, v98")
    for i in range(14):
        e(f"buffer_load_dwordx4 v[{128+4*i}:{131+4*i}], v98, {srd(WR)}, s4 offen offset:{1024*(i&3)} {wpol}")
        if (i & 3) == 3:
            e("s_add_u32 s4, s4, 4096")
    e("s_waitcnt lgkmcnt(0)")
    e(f"s_load_dword s{EP}, s[{WS}:{WS+1}], 4")
    bar0()
    stamp(0)
    red_addr()
    e("v_min_u32 v99, 6, v14")
    e("v_mad_u32_u24 v99, v1, 7, v99")
    e("v_lshlrev_b32 v99, 3, v99")
    e("s_lshl_b32 s6, s6, 2")
    e(f"s_add_u32 s93, s6, {HG}")
    e("s_add_u32 s94, s93, 7168")
    e("v_lshlrev_b32 v97, 5, v1")
    e("s_waitcnt lgkmcnt(0)")
    mk_tag(EP)
    poll([(f"buffer_load_dwordx2 v[10:11], v99, {srd(WS)}, s93 offen sc1", (11,)),
          (f"buffer_load_dwordx2 v[12:13], v99, {srd(WS)}, s94 offen sc1", (13,))], "L_hpoll", 8)
    for bb in range(2):
        for k in range(7):
            e(f"ds_bpermute_b32 v{XS+8*bb+k}, v97, v{10+2*bb} offset:{4*k}")
    e("s_waitcnt lgkmcnt(0)")
    for k in range(7):
        wp = 64 + 8 * (k & 1)
        wperm(wp, 128 + 8 * k, 132 + 8 * k)
        dots(wp, XS + k, XS + 8 + k, k == 0)
    reduce_publish("L_join")
    e("v_mov_b32 v68, v66")
    e("v_mov_b32 v70, v67")
    e("v_mov_b32 v66, v65")
    e(f"v_mov_b32 v65, s{TAG}")
    e(f"v_mov_b32 v67, s{TAG}")
    e(f"v_mov_b32 v69, s{TAG}")
    e(f"v_mov_b32 v71, s{TAG}")
    e("v_bfe_u32 v72, v0, 2, 2")
    e("v_lshlrev_b32 v72, 10, v72")
    e("v_lshrrev_b32 v73, 4, v0")
    e("v_lshl_add_u32 v72, v73, 7, v72")
    e("v_and_b32 v73, 3, v0")
    e("v_lshl_add_u32 v72, v73, 5, v72")
    e("s_lshl_b32 s4, s96, 12")
    e("s_lshl_b32 s5, s97, 8")
    e("s_add_u32 s4, s4, s5")
    e(f"s_add_u32 s4, s4, {MG}")
    e(f"buffer_store_dwordx4 v[64:67], v72, {srd(WS)}, s4 offen sc1")
    e(f"buffer_store_dwordx4 v[68:71], v72, {srd(WS)}, s4 offen offset:16 sc1")
    e("s_branch L_join")

    e("L_role_f:")
    set_srd(BR, 90, 1024)
    e("s_and_b32 s96, s2, 31")
    e("s_lshl_b32 s4, s96, 5")
    e("v_lshlrev_b32 v98, 2, v14")
    e("v_bfe_u32 v99, v0, 3, 1")
    e("v_lshl_add_u32 v97, v99, 10, v98")
    e(f"buffer_load_dword v10, v98, {srd(BR)}, s4 offen")
    e(f"buffer_load_dword v11, v97, {srd(X)}, s4 offen")
    e("s_waitcnt lgkmcnt(0)")
    e(f"s_load_dword s{EP}, s[{WS}:{WS+1}], 4")
    bar0()
    stamp(0)
    e("v_lshlrev_b32 v122, 4, v0")
    e("s_lshl_b32 s93, s96, 10")
    e(f"s_add_u32 s93, s93, {MG}")
    e("v_lshlrev_b32 v98, 1, v98")
    e("v_lshl_add_u32 v98, v99, 6, v98")
    e("v_lshrrev_b32 v99, 5, v0")
    e("v_lshl_add_u32 v98, v99, 2, v98")
    e("v_lshlrev_b32 v99, 4, v99")
    e("v_sub_u32 v99, 16, v99")
    e("s_waitcnt lgkmcnt(0)")
    mk_tag(EP)
    poll([(f"buffer_load_dwordx4 v[16:19], v122, {srd(WS)}, s93 offen sc1", (17, 19))], "L_gpoll", gsleep)
    e("v_permlane32_swap_b32 v16, v18")
    e("v_add_f32 v16, v16, v18")
    e("v_mov_b32 v18, v16")
    e("v_permlane16_swap_b32 v16, v18")
    e("v_add_f32 v16, v16, v18")
    e("v_lshlrev_b32 v10, v99, v10")
    e("v_lshlrev_b32 v11, v99, v11")
    e("v_and_b32 v10, 0xffff0000, v10")
    e("v_and_b32 v11, 0xffff0000, v11")
    bfr(16)
    e("v_add_f32 v16, v16, v10")
    bfr(16)
    e(f"v_mul_f32 v18, {hx(f2u(-math.log2(math.e)))}, v16")
    e("v_exp_f32 v18, v18")
    e("v_add_f32 v18, 1.0, v18")
    e("v_rcp_f32 v18, v18")
    e("v_mul_f32 v16, v16, v18")
    bfr(16)
    e(f"ds_write_b32 v98, v16 offset:{L_G}")
    e(f"ds_write_b32 v98, v11 offset:{L_X}")
    e("s_branch L_join")

    e("L_tail:")
    e("s_setprio 3")
    e("v_and_b32 v12, 3, v0")
    e("v_lshlrev_b32 v12, 9, v12")
    e("v_lshrrev_b32 v9, 4, v0")
    e("v_lshl_add_u32 v12, v9, 4, v12")
    e("v_bfe_u32 v3, v0, 2, 2")
    e("v_lshl_add_u32 v12, v3, 2, v12")
    e(f"s_lshl_b32 s4, s{HW}, 6")
    e("v_add_u32 v12, s4, v12")
    e(f"s_lshl_b32 s4, s{HW}, 5")
    e("v_mov_b32 v3, s4")
    e("v_lshlrev_b32 v122, 4, v0")
    e("v_mov_b32 v101, 0")
    e("v_lshrrev_b32 v13, 5, v0")
    e("v_and_b32 v7, 31, v0")
    e("v_lshlrev_b32 v4, 4, v7")
    e("v_lshl_add_u32 v4, v13, 12, v4")
    e("v_and_b32 v8, 15, v0")
    e("v_add3_u32 v14, v8, v13, s38")
    e("v_and_b32 v14, 15, v14")
    e("v_lshlrev_b32 v14, 4, v14")
    e("v_lshl_add_u32 v15, v7, 1, v13")
    e("v_lshlrev_b32 v15, 2, v15")
    e(f"s_lshl_b32 s4, s{HW}, 8")
    e("v_add_u32 v15, s4, v15")
    e("v_and_b32 v7, 1, v0")
    e("v_lshlrev_b32 v7, 9, v7")
    e("v_lshl_add_u32 v7, v9, 5, v7")
    e("v_lshlrev_b32 v10, 15, v9")
    e("v_lshl_add_u32 v10, v8, 4, v10")
    e("v_lshl_add_u32 v11, v13, 4, v8")
    e("v_lshlrev_b32 v11, 2, v11")
    e(f"s_lshl_b32 s4, s{HW}, 7")
    e("v_add_u32 v11, s4, v11")
    e("s_waitcnt lgkmcnt(0)")
    mk_tag(EP)
    e(f"v_mov_b32 v65, s{TAG}")
    e(f"v_mov_b32 v67, s{TAG}")
    e(f"v_mov_b32 v69, s{TAG}")
    e(f"v_mov_b32 v71, s{TAG}")
    e("s_barrier")
    e(f"ds_read_b128 v[16:19], v3 offset:{L_MC}")
    e(f"ds_read_b128 v[20:23], v3 offset:{L_MC+16}")
    e(f"ds_read_b128 v[24:27], v3 offset:{L_L}")
    e(f"ds_read_b128 v[28:31], v3 offset:{L_L+16}")
    for sw in range(8):
        e(f"ds_read2st64_b32 v[{32+2*sw}:{33+2*sw}], v12 offset0:{8*sw} offset1:{8*sw+1}")
    e("s_waitcnt lgkmcnt(10)")
    e("v_max3_f32 v68, v16, v17, v18")
    e("v_max3_f32 v70, v19, v20, v21")
    e("v_max3_f32 v68, v68, v22, v23")
    e("v_max_f32 v68, v68, v70")
    for k in range(8):
        e(f"v_sub_f32 v{16+k}, v{16+k}, v68")
    for k in range(8):
        e(f"v_exp_f32 v{16+k}, v{16+k}")
    e("s_waitcnt lgkmcnt(0)")
    e("v_mul_f32 v64, v16, v32")
    e("v_mul_f32 v66, v16, v33")
    e("v_mul_f32 v70, v16, v24")
    for k in range(1, 8):
        e(f"v_fmac_f32 v64, v{16+k}, v{32+2*k}")
        e(f"v_fmac_f32 v66, v{16+k}, v{33+2*k}")
        e(f"v_fmac_f32 v70, v{16+k}, v{24+k}")
    e(f"buffer_store_dwordx4 v[64:67], v122, {srd(WS)}, s72 offen sc1")
    e("s_mov_b64 exec, 1")
    e(f"buffer_store_dwordx4 v[68:71], v101, {srd(WS)}, s73 offen sc1")
    e("s_mov_b64 exec, -1")
    e(f"s_cmp_lg_u32 s{HW}, 3")
    e("s_cbranch_scc1 L_wo_skip")
    for i in range(16):
        r = 192 + 4 * i
        e(f"ds_read_b128 v[{r}:{r+3}], v122 offset:{L_WO+1024*i}")
        if i == 7:
            e("s_waitcnt lgkmcnt(4)")
    e("L_wo_skip:")
    stamp(5)
    poll([(f"buffer_load_dwordx4 v[16:19], v14, {srd(WS)}, s74 offen sc1", (17, 19))] +
         [(f"buffer_load_dwordx4 v[{20+4*i}:{23+4*i}], v4, {srd(WS)}, s{98+i} offen sc1", (21 + 4 * i, 23 + 4 * i)) for i in range(4)],
         "L_ppoll", tsleep)
    e("v_mov_b32 v17, v16")
    for s in (8, 4, 2, 1):
        e(f"v_max_f32_dpp v17, v17, v17 row_ror:{s} {DPPM}")
    e("v_sub_f32 v16, v16, v17")
    e("v_exp_f32 v16, v16")
    e("v_mul_f32 v18, v16, v18")
    for s in (8, 4, 2, 1):
        e(f"v_add_f32_dpp v18, v18, v18 row_ror:{s} {DPPM}")
    e("v_rcp_f32 v18, v18")
    e("v_mul_f32 v16, v16, v18")
    e(f"v_mul_f32_dpp v36, v16, v20 row_newbcast:0 {DPPM}")
    e(f"v_mul_f32_dpp v37, v16, v22 row_newbcast:0 {DPPM}")
    for i in range(1, 4):
        e(f"v_fmac_f32_dpp v36, v16, v{20+4*i} row_newbcast:{2*i} {DPPM}")
        e(f"v_fmac_f32_dpp v37, v16, v{22+4*i} row_newbcast:{2*i} {DPPM}")
    e("v_permlane32_swap_b32 v36, v37")
    e("v_add_f32 v36, v36, v37")
    e(f"ds_write_b32 v15, v36 offset:{L_OP}")
    e("s_waitcnt lgkmcnt(0)")
    stamp(6)
    e("s_barrier")
    e(f"s_cmp_lg_u32 s{HW}, 3")
    e("s_cbranch_scc1 L_h6_skip")
    for s in range(2):
        for w in range(2):
            for c in range(2):
                r = 32 + 16 * s + 8 * w + 4 * c
                e(f"ds_read_b128 v[{r}:{r+3}], v7 offset:{L_OP+128*s+256*w+16*c}")
    e("s_mov_b32 s78, 0xcccccccc")
    e("s_mov_b32 s79, 0xcccccccc")
    e("s_mov_b32 s80, 0xf0f0f0f0")
    e("s_mov_b32 s81, 0xf0f0f0f0")
    e("s_mov_b32 s82, 0xff00ff00")
    e("s_mov_b32 s83, 0xff00ff00")
    e("s_waitcnt lgkmcnt(0)")
    for s in range(2):
        for k in range(4):
            r = 32 + 16 * s + 2 * k
            e(f"v_pk_add_f32 v[{r}:{r+1}], v[{r}:{r+1}], v[{r+8}:{r+9}]")
    for s in range(2):
        for k in range(4):
            r = 32 + 16 * s + 2 * k
            e(f"v_cvt_pk_bf16_f32 v{16+4*s+k}, v{r}, v{r+1}")
    for s in range(2):
        for jj in range(8):
            d = 128 + 4 * jj
            c = "0" if s == 0 else f"v[{d}:{d+3}]"
            w = 192 + 4 * (8 * s + jj)
            e(f"v_mfma_f32_16x16x32_bf16 v[{d}:{d+3}], v[{w}:{w+3}], v[{16+4*s}:{19+4*s}], {c}")
    for k in range(4):
        for r in range(4):
            e(f"v_cndmask_b32_e64 v{160+4*k+r}, v{128+8*k+r}, v{132+8*k+r}, s[78:79]")
    for k in range(2):
        for r in range(4):
            e(f"v_cndmask_b32_e64 v{176+4*k+r}, v{160+8*k+r}, v{164+8*k+r}, s[80:81]")
    for r in range(4):
        e(f"v_cndmask_b32_e64 v{64+2*r}, v{176+r}, v{180+r}, s[82:83]")
    e(f"buffer_store_dwordx4 v[64:67], v10, {srd(WS)}, s75 offen sc1")
    e(f"buffer_store_dwordx4 v[68:71], v10, {srd(WS)}, s76 offen sc1")
    e("L_h6_skip:")
    e("s_lshr_b32 s4, s2, 5")
    e("s_cmp_lg_u32 s4, 4")
    e("s_cbranch_scc1 L_h_exit")
    e("v_bfe_u32 v16, v0, 1, 3")
    e("v_bfe_u32 v17, v0, 4, 1")
    e("v_lshl_add_u32 v16, v17, 3, v16")
    e("v_and_b32 v17, 1, v0")
    e("v_lshlrev_b32 v118, 2, v16")
    e("v_lshl_add_u32 v118, v17, 6, v118")
    e("v_lshlrev_b32 v119, 1, v16")
    e("v_lshl_add_u32 v119, v17, 10, v119")
    e(f"ds_read_b32 v116, v118 offset:{L_G}")
    e(f"ds_read_b32 v117, v118 offset:{L_X}")
    poll([(f"buffer_load_dwordx4 v[{20+4*i}:{23+4*i}], v122, {srd(WS)}, s77 offen offset:{1024*i} sc1", (21 + 4 * i, 23 + 4 * i)) for i in range(4)],
         "L_spoll", tsleep)
    e("v_add_f32 v20, v20, v24")
    e("v_add_f32 v22, v22, v26")
    e("v_add_f32 v28, v28, v32")
    e("v_add_f32 v30, v30, v34")
    e("v_add_f32 v20, v20, v28")
    e("v_add_f32 v22, v22, v30")
    e("v_permlane32_swap_b32 v20, v22")
    e("v_add_f32 v20, v20, v22")
    e("v_mov_b32 v22, v20")
    e("v_permlane16_swap_b32 v20, v22")
    e("v_add_f32 v20, v20, v22")
    e(f"ds_write_b32 v11, v20 offset:{L_SP}")
    e("s_waitcnt lgkmcnt(0)")
    e("s_barrier")
    e(f"s_cmp_lg_u32 s{HW}, 0")
    e("s_cbranch_scc1 L_h_exit")
    e("s_mov_b32 exec_hi, 0")
    e("v_lshlrev_b32 v16, 2, v0")
    e(f"v_add_u32 v16, {L_SP}, v16")
    e("ds_read2_b32 v[20:21], v16 offset0:0 offset1:32")
    e("ds_read2_b32 v[22:23], v16 offset0:64 offset1:96")
    e("s_waitcnt lgkmcnt(0)")
    e("v_pk_add_f32 v[20:21], v[20:21], v[22:23]")
    e("v_add_f32 v20, v20, v21")
    bfr(20)
    e("v_mul_f32 v20, v20, v116")
    bfr(20)
    e("v_add_f32 v20, v20, v117")
    e("v_cvt_pk_bf16_f32 v20, v20, v20")
    e(f"buffer_store_short v20, v119, {srd(OUT)}, s95 offen")
    e("s_cmp_lg_u32 s2, 128")
    e("s_cbranch_scc1 L_h_exit")
    e("s_mov_b64 exec, 1")
    e(f"buffer_store_dword v65, v101, {srd(WS)}, 0 offen offset:4")
    for i in range(icp):
        e(f"v_fma_f32 v{8+(i%8)}, v1, v2, v{8+(i%8)}")
    if pad:
        e("L_padloop:")
        e("s_memrealtime s[10:11]")
        e("s_waitcnt lgkmcnt(0)")
        e("s_sub_u32 s10, s10, s8")
        e(f"s_cmp_lt_u32 s10, {pad}")
        e("s_cbranch_scc1 L_padloop")
    e("L_h_exit:")
    stamp(7)
    prof_out()
    e("L_end:")
    e("s_endpgm")

    n = a.fix_hazards()
    head = open("recurrent_scan__gqa_block_cached__mixer_channel_mlp__decode.s.ref").read().split("\n")
    lead = []
    for ln in head:
        if not ln.startswith(";"):
            break
        if "@launch" in ln and ln.startswith("; @launch"):
            lead.append(f"; @launch grid=(256,1,1) block=(512,1,1) lds={LDS_SIZE}")
        else:
            lead.append(ln)
    out = "\n".join(lead) + "\n"
    out += '.amdgcn_target "amdgcn-amd-amdhsa--gfx950"\n.text\n'
    out += f".globl {NAME}\n.p2align 8\n.type {NAME},@function\n"
    out += a.text()
    out += '.section .rodata,"a"\n.p2align 6\n'
    out += f".amdhsa_kernel {NAME}\n"
    out += "  .amdhsa_next_free_vgpr 256\n  .amdhsa_next_free_sgpr 102\n  .amdhsa_accum_offset 256\n"
    out += "  .amdhsa_group_segment_fixed_size 0\n  .amdhsa_kernarg_size 104\n  .amdhsa_user_sgpr_count 2\n"
    out += "  .amdhsa_user_sgpr_kernarg_segment_ptr 1\n  .amdhsa_system_sgpr_workgroup_id_x 1\n.end_amdhsa_kernel\n"
    return out, n

if __name__ == "__main__":
    kw = eval("dict(" + (sys.argv[2] if len(sys.argv) > 2 else "") + ")")
    txt, n = gen(**kw)
    path = sys.argv[1] if len(sys.argv) > 1 else "k2.s"
    open(path, "w").write(txt)
    print("wrote", path, "nops inserted:", n, "bytes:", len(txt))
```

```python
import sys, struct, math
sys.path.insert(0, "dev")
from asmlib import Asm

NAME = "recurrent_scan__gqa_block_cached__mixer_channel_mlp__decode_kernel"

def f2u(x):
    return struct.unpack("<I", struct.pack("<f", x))[0]
def hx(x):
    return f"0x{x & 0xffffffff:08x}"

QG, HG, MG, PG, MLG, SG, PROFB = 0x1000, 0x10000, 0x18000, 0x20000, 0x120000, 0x130000, 0x200000
CG = 0x1C0000
WS_SIZE = 0x300000
L_ACC, L_WO, L_MC, L_L, L_CNT, L_Q = 0x0000, 0x4000, 0x8000, 0x8080, 0x8100, 0x8200
L_P, L_G, L_X, L_OP, L_SP = 0x8600, 0x8E00, 0x8E80, 0x8F00, 0x9300
LDS_SIZE = 0x9500
NWAVE = 8

C_SC = (128 ** -0.5) * math.log2(math.e)
DPPM = "row_mask:0xf bank_mask:0xf"

def gen(prof=False, spin=1 << 16, W=8, G=4, NH=62, qsleep=2, tsleep=1, gsleep=16, kpol='nt', vpol='nt', trace=False,
        wpol='', opol='', PW=None, E=8, hprio=0, pad=0, fl=True, eb=False, gl=None, cstr=4096, ilv=False, P=0, par=0, dbg='', order='kv', icp=0, HP=3, HQ=0, v3=False, sb=8, swap=False, qb=False, pm=False, rot=True, SWN=4, st=False, stq=64):
    pool = P > 0
    if v3:
        assert not (pool or gl or ilv or fl or eb or hprio)
        HP, HQ = 3, 0
    assert not (pool and (gl or ilv))
    NL = (1024 - P) // 8 - NH
    Pw = P // 16
    if pm:
        assert pool and Pw in (2, 4, 8, 16) and W == 12 and HQ >= 64
        NL = 128 - NH
    MODE, WB = 96, 6
    PW = PW or W
    a = Asm()
    e = a.e

    OFF = [24, 25, 26]; REM, VP, LIM, CL, LIME = 27, 28, 29, 30, 97
    SC, NSC, PL, PH, TAG, HW, EP = 32, 33, 34, 35, 36, 37, 39
    K, V, WS, X, WR, BR, WO, OUT = 40, 44, 48, 52, 56, 60, 64, 68
    def srd(r):
        return f"s[{r}:{r+3}]"

    def stamp(k):
        if prof:
            e(f"s_memrealtime s[{8+2*k}:{9+2*k}]")
            e("s_waitcnt lgkmcnt(0)")

    def prof_out():
        if not prof:
            return
        e("s_mov_b64 exec, -1")
        e("s_lshl_b32 s4, s2, 3")
        e("s_add_u32 s4, s4, s3")
        e("s_lshl_b32 s4, s4, 5")
        e(f"s_add_u32 s4, s4, {PROFB}")
        for k in range(8):
            e(f"v_mov_b32 v{8+k}, s{8+2*k}")
        e("v_mov_b32 v7, 0")
        e("s_mov_b64 exec, 1")
        e(f"buffer_store_dwordx4 v[8:11], v7, {srd(WS)}, s4 offen")
        e(f"buffer_store_dwordx4 v[12:15], v7, {srd(WS)}, s4 offen offset:16")
        e("s_waitcnt vmcnt(0)")

    if st:
        assert not (v3 or eb or gl or ilv or trace) and (pm or not pool)
    def bar0():
        if not eb and not v3 and not st:
            e("s_barrier")

    def mk_tag(src):
        e(f"s_mul_i32 s{TAG}, s{src}, 0x9E3779B1")
        e(f"s_add_u32 s{TAG}, s{TAG}, 0x7F4A7C15")

    def set_srd(r, ptr, size):
        e(f"s_mov_b32 s{r}, s{ptr}")
        e(f"s_mov_b32 s{r+1}, s{ptr+1}")
        e(f"s_mov_b32 s{r+2}, {size}")
        e(f"s_mov_b32 s{r+3}, 0x00020000")

    def unpack(dst, src):
        e(f"v_lshlrev_b32 v{dst}, 16, v{src}")
        e(f"v_and_b32 v{dst+1}, 0xffff0000, v{src}")

    def half_sum(r, t):
        for s in (8, 4, 2, 1):
            e(f"v_add_f32_dpp v{r}, v{r}, v{r} row_ror:{s} {DPPM}")
        e(f"v_mov_b32 v{t}, v{r}")
        e(f"v_permlane16_swap_b32 v{r}, v{t}")
        e(f"v_add_f32 v{r}, v{r}, v{t}")

    def tree16(dst, src, tmp):
        for k in range(4):
            e(f"v_pk_add_f32 v[{tmp+2*k}:{tmp+2*k+1}], v[{src+4*k}:{src+4*k+1}], v[{src+4*k+2}:{src+4*k+3}]")
        e(f"v_pk_add_f32 v[{tmp}:{tmp+1}], v[{tmp}:{tmp+1}], v[{tmp+2}:{tmp+3}]")
        e(f"v_pk_add_f32 v[{tmp+4}:{tmp+5}], v[{tmp+4}:{tmp+5}], v[{tmp+6}:{tmp+7}]")
        e(f"v_pk_add_f32 v[{tmp}:{tmp+1}], v[{tmp}:{tmp+1}], v[{tmp+4}:{tmp+5}]")
        e(f"v_add_f32 v{dst}, v{tmp}, v{tmp+1}")

    def bfr(r):
        e(f"v_cvt_pk_bf16_f32 v{r}, v{r}, v{r}")
        e(f"v_and_b32 v{r}, 0xffff0000, v{r}")

    def ln_stats(XF, MEAN, RS, TMP):
        tree16(MEAN, XF, TMP)
        half_sum(MEAN, TMP)
        e(f"v_mul_f32 v{MEAN}, {hx(f2u(1/512))}, v{MEAN}")
        D = TMP + 8
        e(f"v_mov_b32 v{TMP+1}, v{MEAN}")
        e(f"v_mov_b32 v{TMP}, v{MEAN}")
        for k in range(8):
            e(f"v_pk_add_f32 v[{D+2*k}:{D+2*k+1}], v[{XF+2*k}:{XF+2*k+1}], v[{TMP}:{TMP+1}] neg_lo:[0,1] neg_hi:[0,1]")
        for k in range(8):
            e(f"v_pk_mul_f32 v[{D+2*k}:{D+2*k+1}], v[{D+2*k}:{D+2*k+1}], v[{D+2*k}:{D+2*k+1}]")
        tree16(RS, D, TMP)
        half_sum(RS, TMP)
        e(f"v_mul_f32 v{RS}, {hx(f2u(1/512))}, v{RS}")
        bfr(MEAN)
        bfr(RS)
        e(f"v_add_f32 v{RS}, {hx(f2u(1e-5))}, v{RS}")
        bfr(RS)
        e(f"v_sqrt_f32 v{RS}, v{RS}")
        bfr(RS)
        e(f"v_rcp_f32 v{RS}, v{RS}")

    def norm_all(XF, m, rs, PK):
        for k in range(16):
            e(f"v_sub_f32 v{XF+k}, v{XF+k}, v{m}")
        for k in range(8):
            e(f"v_cvt_pk_bf16_f32 v{PK+k}, v{XF+2*k}, v{XF+2*k+1}")
        for k in range(8):
            unpack(XF + 2 * k, PK + k)
        for k in range(16):
            e(f"v_mul_f32 v{XF+k}, v{rs}, v{XF+k}")
        for k in range(8):
            e(f"v_cvt_pk_bf16_f32 v{PK+k}, v{XF+2*k}, v{XF+2*k+1}")

    def wperm(dst, r0, r1):
        for c in range(8):
            sel = f"s{PL}" if (c & 1) == 0 else f"s{PH}"
            e(f"v_perm_b32 v{dst+c}, v{r1+(c>>1)}, v{r0+(c>>1)}, {sel}")

    ACC = 80
    def dots(wp, x0, x1, first):
        for bb, xr in ((0, x0), (1, x1)):
            for c in range(8):
                d = ACC + 8 * bb + c
                if first:
                    e(f"v_dot2_f32_bf16 v{d}, v{wp+c}, v{xr}, 0")
                else:
                    e(f"v_dot2c_f32_bf16 v{d}, v{wp+c}, v{xr}")

    def red_addr():
        e("v_lshrrev_b32 v120, 5, v0")
        e("v_lshlrev_b32 v120, 8, v120")
        e("v_bfe_u32 v123, v0, 4, 1")
        e("v_lshl_add_u32 v120, v123, 4, v120")
        e("v_and_b32 v123, 7, v0")
        e("v_lshl_add_u32 v120, v123, 5, v120")
        e(f"s_lshl_b32 s5, s{HW}, 9")
        e("v_add_u32 v120, s5, v120")
        e("v_lshlrev_b32 v122, 4, v0")
        e("v_mov_b32 v121, 1")
        e("v_mov_b32 v101, 0")

    def reduce_publish(lab):
        for k in range(8):
            e(f"v_permlane32_swap_b32 v{ACC+k}, v{ACC+8+k}")
        for k in range(4):
            e(f"v_pk_add_f32 v[{ACC+2*k}:{ACC+2*k+1}], v[{ACC+2*k}:{ACC+2*k+1}], v[{ACC+8+2*k}:{ACC+9+2*k}]")
        for k in range(4):
            e(f"v_permlane16_swap_b32 v{ACC+k}, v{ACC+4+k}")
        for k in range(2):
            e(f"v_pk_add_f32 v[{ACC+2*k}:{ACC+2*k+1}], v[{ACC+2*k}:{ACC+2*k+1}], v[{ACC+4+2*k}:{ACC+5+2*k}]")
        for k in range(4):
            e(f"v_add_f32_dpp v{ACC+k}, v{ACC+k}, v{ACC+k} row_ror:8 {DPPM}")
        e("s_mov_b32 exec_lo, 0x00ff00ff")
        e("s_mov_b32 exec_hi, 0x00ff00ff")
        e(f"ds_write_b128 v120, v[{ACC}:{ACC+3}] offset:{L_P}")
        e("s_mov_b64 exec, 1")
        e(f"ds_add_rtn_u32 v64, v101, v121 offset:{L_CNT+4}")
        e("s_waitcnt lgkmcnt(0)")
        e("v_readfirstlane_b32 s4, v64")
        e("s_mov_b64 exec, -1")
        e("s_cmp_lg_u32 s4, 3")
        e(f"s_cbranch_scc1 {lab}")
        e("s_mov_b32 exec_hi, 0")
        for w in range(4):
            e(f"ds_read_b128 v[{64+4*w}:{67+4*w}], v122 offset:{L_P+512*w}")
        e("s_waitcnt lgkmcnt(0)")
        for k in range(2):
            e(f"v_pk_add_f32 v[{64+2*k}:{65+2*k}], v[{64+2*k}:{65+2*k}], v[{68+2*k}:{69+2*k}]")
            e(f"v_pk_add_f32 v[{72+2*k}:{73+2*k}], v[{72+2*k}:{73+2*k}], v[{76+2*k}:{77+2*k}]")
        for k in range(2):
            e(f"v_pk_add_f32 v[{64+2*k}:{65+2*k}], v[{64+2*k}:{65+2*k}], v[{72+2*k}:{73+2*k}]")

    def poll(loads, lab, sleep):
        n = len(loads)
        P = [78 + 2 * i for i in range(n)]
        assert n <= 7
        for p in P:
            e(f"s_mov_b64 s[{p}:{p+1}], -1")
        e(f"s_mov_b32 s92, {spin}")
        e(f"{lab}_top:")
        for i, (txt, tags) in enumerate(loads):
            e(f"s_mov_b64 exec, s[{P[i]}:{P[i]+1}]")
            e(f"s_cbranch_execz {lab}_s{i}")
            e(txt)
            e(f"{lab}_s{i}:")
        e("s_waitcnt vmcnt(0)")
        for i, (txt, tags) in enumerate(loads):
            e(f"s_mov_b64 exec, s[{P[i]}:{P[i]+1}]")
            e(f"v_cmp_ne_u32_e64 s[{P[i]}:{P[i]+1}], v{tags[0]}, s{TAG}")
            for tg in tags[1:]:
                e(f"v_cmp_ne_u32_e64 vcc, v{tg}, s{TAG}")
                e(f"s_or_b64 s[{P[i]}:{P[i]+1}], s[{P[i]}:{P[i]+1}], vcc")
        e("s_mov_b64 exec, -1")
        e(f"s_mov_b64 s[4:5], s[{P[0]}:{P[0]+1}]")
        for p in P[1:]:
            e(f"s_or_b64 s[4:5], s[4:5], s[{p}:{p+1}]")
        e("s_cmp_eq_u64 s[4:5], 0")
        e(f"s_cbranch_scc1 {lab}_done")
        if sleep:
            e(f"s_sleep {sleep}")
        e("s_sub_u32 s92, s92, 1")
        e("s_cmp_lg_u32 s92, 0")
        e(f"s_cbranch_scc1 {lab}_top")
        e(f"{lab}_done:")

    e(f"{NAME}:")
    e("s_cmp_ge_u32 s2, 256")
    e("s_cbranch_scc1 L_end")
    if pad:
        e("s_memrealtime s[8:9]")
    e("s_load_dwordx16 s[72:87], s[0:1], 0")
    e("s_load_dwordx8 s[88:95], s[0:1], 64")
    e(f"s_load_dwordx2 s[{WS}:{WS+1}], s[0:1], 96")
    e("v_lshrrev_b32 v1, 6, v0")
    e("v_and_b32 v0, 63, v0")
    e("s_bfe_u32 s4, s2, 0x40003")
    e("v_readfirstlane_b32 s3, v1")
    e("s_lshl_b32 s4, s4, 23")
    if gl or pool:
        e(f"s_mov_b32 s{LIM}, {1<<23}")
    elif ilv:
        e("s_and_b32 s5, s2, 7")
        e("s_lshl_b32 s5, s5, 14")
        e("s_add_u32 s4, s4, s5")
        e("s_lshr_b32 s5, s2, 7")
        e("s_lshl_b32 s5, s5, 13")
        e("s_add_u32 s4, s4, s5")
        e(f"s_mov_b32 s{LIM}, {(1<<23)-15*8192}")
    else:
        e("s_and_b32 s5, s2, 7")
        e("s_lshl_b32 s5, s5, 20")
        e("s_add_u32 s4, s4, s5")
        e("s_cmp_ge_u32 s2, 128")
        e(f"s_cselect_b32 s5, {NH*8192}, 0")
        e(f"s_mov_b32 s{LIM}, {NH*8192}")
        e(f"s_cselect_b32 s{LIM}, {NL*8192}, s{LIM}")
        e("s_add_u32 s4, s4, s5")
    if swap:
        e("s_xor_b32 s3, s3, 4")
    e(f"s_mov_b32 s{K+2}, s{LIM}")
    e(f"s_mov_b32 s{K+3}, 0x00020000")
    e(f"s_mov_b32 s{V+2}, s{LIM}")
    e(f"s_mov_b32 s{V+3}, 0x00020000")
    e(f"s_mov_b32 s{WS+2}, {WS_SIZE}")
    e(f"s_mov_b32 s{WS+3}, 0x00020000")
    e(f"s_mov_b32 s{SC}, {hx(f2u(C_SC))}")
    e(f"s_mov_b32 s{NSC}, {hx(f2u(-C_SC))}")
    e(f"s_mov_b32 s{PL}, 0x05040100")
    e(f"s_mov_b32 s{PH}, 0x07060302")
    e(f"s_mov_b32 s{OUT+2}, 2048")
    e(f"s_mov_b32 s{OUT+3}, 0x00020000")
    if prof:
        for k in range(8):
            e(f"s_mov_b32 s{8+2*k}, 0")
        e("s_memrealtime s[20:21]")
    if eb:
        e("v_and_b32 v100, 3, v0")
        e("v_lshlrev_b32 v100, 2, v100")
        e("v_mov_b32 v101, 0")
        e(f"ds_write_b32 v100, v101 offset:{L_CNT}")
    if v3 or st:
        e("v_lshlrev_b32 v100, 2, v0")
        e("v_mov_b32 v101, 0")
        e(f"s_mov_b32 s5, {(9 if st else 12)*4096}")
        e("v_writelane_b32 v101, s5, 0")
        e("s_mov_b64 exec, 7")
        e(f"ds_write_b32 v100, v101 offset:{L_CNT}")
        e("s_mov_b64 exec, -1")
    e("s_waitcnt lgkmcnt(0)")
    if eb:
        e("s_barrier")
    e(f"s_add_u32 s{K}, s74, s4")
    e(f"s_addc_u32 s{K+1}, s75, 0")
    e(f"s_add_u32 s{V}, s76, s4")
    e(f"s_addc_u32 s{V+1}, s77, 0")
    e(f"s_mov_b64 s[{OUT}:{OUT+1}], s[92:93]")
    e("s_cmp_ge_u32 s3, 4")
    e("s_cbranch_scc1 L_helper")
    if not v3:
        e("s_cmp_eq_u32 s3, 0")
        e("s_cbranch_scc1 L_w0")
    bar0()
    if st:
        e("s_mov_b32 s31, 1")
        e(f"s_cmp_ge_u32 s2, {stq}")
        e("s_cbranch_scc1 L_st_nb")
        e("s_barrier")
        e("s_mov_b32 s31, 2")
        e("L_st_nb:")
    stamp(0)

    e("L_stream:")
    stamp(1)
    e("v_and_b32 v5, 15, v0")
    e("v_lshrrev_b32 v6, 4, v0")
    e("v_lshlrev_b32 v3, 10, v6")
    e("v_lshl_add_u32 v3, v5, 4, v3")
    e("v_add_u32 v4, 4096, v3")
    if gl:
        e("s_and_b32 s4, s2, 7")
        e("s_lshl_b32 s4, s4, 4")
        e("s_lshr_b32 s5, s2, 7")
        e("s_lshl_b32 s5, s5, 3")
        e("s_add_u32 s4, s4, s5")
        e("s_add_u32 s4, s4, s3")
        e(f"s_mul_i32 s{OFF[0]}, s4, 24576")
        e(f"s_add_u32 s{OFF[1]}, s{OFF[0]}, 8192")
        e(f"s_add_u32 s{OFF[2]}, s{OFF[0]}, 16384")
        e("s_bfe_u32 s4, s2, 0x40003")
        if gl == 'dbg':
            e(f"s_load_dwordx2 s[{WO}:{WO+1}], s[0:1], 88")
            e(f"s_mov_b32 s{WO+2}, 256")
            e(f"s_mov_b32 s{WO+3}, 0x00020000")
            e(f"s_lshl_b32 s{LIME}, s4, 4")
        else:
            e(f"s_mul_i32 s{LIME}, s4, {cstr}")
            e(f"s_add_u32 s{LIME}, s{LIME}, {CG}")
    elif v3:
        e(f"s_lshl_b32 s{OFF[0]}, s3, 13")
        e(f"s_add_u32 s{OFF[1]}, s{OFF[0]}, {4*8192}")
        e(f"s_add_u32 s{OFF[2]}, s{OFF[0]}, {8*8192}")
    else:
        if st:
            e("s_sub_u32 s4, s3, 1")
            e("s_lshl_b32 s4, s4, 12")
            e("v_mov_b32 v8, s4")
            e(f"v_add_u32 v9, {3*4096}, v8")
            e(f"v_add_u32 v10, {6*4096}, v8")
            e("s_cmp_lg_u32 s31, 0")
            e("s_cbranch_scc1 L_st_hp")
        e("s_mov_b64 exec, 1")
        for i in range(3):
            if i == HP:
                for j in range(HP, 3):
                    e(f"v_mov_b32 v{8+j}, 0x400000")
                e("s_cmp_ge_u32 s3, 4")
                e("s_cbranch_scc1 L_st_hp")
            e(f"ds_add_rtn_u32 v{8+i}, v3, v4 offset:{L_CNT}")
        if HP < 3 or st:
            e("L_st_hp:")
        e("s_mov_b64 exec, -1")
    if pm:
        e("s_and_b32 s4, s2, 7")
        e(f"s_lshl_b32 s{WB}, s4, 20")
        e("s_cmp_ge_u32 s2, 128")
        e(f"s_cselect_b32 s5, {NH*8192}, 0")
        e(f"s_add_u32 s{WB}, s{WB}, s5")
        e(f"s_mov_b32 s{LIM}, {(NH-Pw)*8192}")
        e("s_cmp_ge_u32 s2, 128")
        e(f"s_cselect_b32 s{LIM}, {(NL-Pw)*8192}, s{LIM}")
        e(f"s_add_u32 s{LIM}, s{LIM}, s{WB}")
        e("s_bfe_u32 s4, s2, 0x40003")
        e(f"s_mul_i32 s{LIME}, s4, {cstr}")
        e(f"s_add_u32 s{LIME}, s{LIME}, {CG}")
        e(f"s_mov_b32 s{MODE}, 0")
    elif pool:
        e("s_and_b32 s4, s2, 7")
        e(f"s_mul_i32 s{WB}, s4, {(NH+NL)*8192}")
        e("s_and_b32 s4, s2, 1")
        e(f"s_mul_i32 s4, s4, {2*par*8192}")
        e(f"s_add_u32 s{WB}, s{WB}, s4")
        e(f"s_sub_u32 s4, {par*8192}, s4")
        e(f"s_add_u32 s5, s4, {NH*8192}")
        e(f"s_add_u32 s4, s4, {NL*8192}")
        e("s_cmp_ge_u32 s2, 128")
        e(f"s_cselect_b32 s{LIM}, s4, s5")
        e("s_cselect_b32 s5, s5, 0")
        e(f"s_add_u32 s{WB}, s{WB}, s5")
        e(f"s_add_u32 s{LIM}, s{LIM}, s{WB}")
        e("s_bfe_u32 s4, s2, 0x40003")
        e(f"s_mul_i32 s{LIME}, s4, {cstr}")
        e(f"s_add_u32 s{LIME}, s{LIME}, {CG}")
        e(f"s_mov_b32 s{MODE}, 0")
    if hprio:
        e("s_setprio 0")
        e("s_cmp_lt_u32 s3, 4")
        e("s_cbranch_scc1 L_st_prio")
        e(f"s_setprio {hprio}")
        e("L_st_prio:")
    elif not v3:
        e("s_setprio 0")
    if fl:
        e("v_lshrrev_b32 v2, 3, v5")
        e("v_lshlrev_b32 v2, 6, v2")
        e("v_lshl_add_u32 v2, v6, 4, v2")
        e("v_and_b32 v1, 7, v5")
        e("v_lshl_add_u32 v1, v1, 8, v2")
        e("v_and_b32 v7, 3, v5")
        e("v_lshl_add_u32 v7, v7, 8, v2")
        e("v_add_u32 v2, 4096, v1")
    else:
        e("v_lshlrev_b32 v1, 8, v5")
        e("v_lshl_add_u32 v1, v6, 4, v1")
        e("v_add_u32 v2, 4096, v1")
        e("v_and_b32 v7, 3, v5")
        e("v_lshlrev_b32 v7, 8, v7")
        e("v_lshl_add_u32 v7, v6, 4, v7")
    e("v_mov_b32 v5, 0xff800000")
    e("v_mov_b32 v6, 0")
    e(f"s_mov_b32 s{REM}, 0")
    e(f"s_mov_b32 s{VP}, 0")
    if not gl and not pool:
        e(f"s_sub_u32 s{LIME}, s{LIM}, {E*8192*(16 if ilv else 1)}")
    if trace:
        e("s_mov_b32 s31, 0")
    if not gl and not v3:
        e("s_waitcnt lgkmcnt(0)")
        for i in range(3):
            e(f"v_readfirstlane_b32 s{OFF[i]}, v{8+i}")
    if not v3:
        e(f"s_load_dword s{EP}, s[{WS}:{WS+1}], 4")
    if not gl and not v3:
        for i in range(3):
            if pool:
                e(f"s_lshl1_add_u32 s{OFF[i]}, s{OFF[i]}, s{WB}")
            else:
                e(f"s_lshl_b32 s{OFF[i]}, s{OFF[i]}, {5 if ilv else 1}")

    def gclaim():
        e(f"v_mov_b32 v7, {1 if pm else 0x2000}")
        e("s_mov_b64 exec, 1")
        e(f"buffer_atomic_add v7, off, {srd(WO if gl == 'dbg' else WS)}, s{LIME} sc0")
        e("s_mov_b64 exec, -1")

    def kload(slot, idx):
        kb = 64 + 64 * slot
        T, t = idx >> 2, idx & 3
        r = kb + 16 * T + 4 * t
        o = (2048 * (t >> 1) + 128 * (t & 1)) if fl else 64 * t
        e(f"buffer_load_dwordx4 v[{r}:{r+3}], v{1+T}, {srd(K)}, s{OFF[slot]} offen offset:{o} {kpol}")
    def vload(slot, i):
        r = 96 + 64 * slot + 4 * i
        e(f"buffer_load_dwordx4 v[{r}:{r+3}], v{3+(i>>2)}, {srd(V)}, s{OFF[slot]} offen offset:{256*(i&3)} {vpol}")
    if order == 'k4v4':
        k0, v0_ = kload, vload
        def kload(slot, i):
            (k0 if i < 4 else v0_)(slot, i & 3)
        def vload(slot, i):
            (k0 if i < 4 else v0_)(slot, 4 + (i & 3))
    def groups(fn, slot, lo, hi, w, first=False):
        for i in range(lo, hi):
            if (i % G) == 0 and not (first and i == lo):
                e(f"s_waitcnt vmcnt({w-G})")
            fn(slot, i)

    for i in range(3):
        if v3:
            for j in range(16):
                n = 16 * i + j
                if n == sb:
                    for r in range(32, 64):
                        e(f"v_mov_b32 v{r}, 0")
                    e("s_barrier")
                if n >= PW and (n % G) == 0:
                    e(f"s_waitcnt vmcnt({PW-G})")
                (kload if j < 8 else vload)(i, j & 7)
            e(f"s_mov_b32 s{REM}, {i+1}")
            continue
        if not gl:
            e(f"s_cmp_ge_u32 s{OFF[i]}, s{LIM}")
            e(f"s_cbranch_scc1 {'L_st_nowork' if i == 0 else 'L_st_pro_done'}")
        groups(kload, i, 0, 8, PW, first=(i == 0))
        if i == 0:
            for r in range(32, 64):
                e(f"v_mov_b32 v{r}, 0")
        if st and i == 0:
            groups(vload, i, 0, 4, PW)
            e("s_cmp_lg_u32 s31, 1")
            e("s_cbranch_scc1 L_st_nb2")
            e("s_barrier")
            e("L_st_nb2:")
            groups(vload, i, 4, 8, PW)
        else:
            groups(vload, i, 0, 8, PW)
        e(f"s_mov_b32 s{REM}, {i+1}")
    e("L_st_pro_done:")
    stamp(2)
    e(f"s_mov_b32 s{CL}, {spin}")
    e("s_mov_b64 exec, 1")
    e("L_qflag:")
    e(f"ds_read_b32 v8, v3 offset:{L_CNT+8}")
    e("s_waitcnt lgkmcnt(0)")
    e("v_readfirstlane_b32 s4, v8")
    e("s_cmp_lg_u32 s4, 0")
    e("s_cbranch_scc1 L_qflag_done")
    e("s_sleep 1")
    e(f"s_sub_u32 s{CL}, s{CL}, 1")
    e(f"s_cmp_lg_u32 s{CL}, 0")
    e("s_cbranch_scc1 L_qflag")
    e("L_qflag_done:")
    e("s_mov_b64 exec, -1")
    if fl:
        for t in range(2):
            e(f"ds_read_b128 v[{24+4*t}:{27+4*t}], v7 offset:{L_Q+128*t}")
    else:
        for t in range(4):
            e(f"ds_read_b128 v[{16+4*t}:{19+4*t}], v7 offset:{L_Q+64*t}")
    e("s_waitcnt lgkmcnt(0)")
    if gl:
        gclaim()
    stamp(3)

    e("L_st_loop:")
    for slot in range(3):
        kb = 64 + 64 * slot
        vb = kb + 32
        vs = (slot + 2) % 3
        H1 = 8 if G == 8 else 4
        e(f"s_cmp_eq_u32 s{VP}, 0")
        e(f"s_cbranch_scc1 L_st_nova{slot}")
        if pm:
            e(f"s_waitcnt vmcnt({W-G})")
            e(f"s_cmp_eq_u32 s{MODE}, 0")
            e(f"s_cbranch_scc1 L_st_nog{slot}")
            gclaim()
            e(f"L_st_nog{slot}:")
            groups(vload, vs, 0, H1, W, first=True)
        else:
            groups(vload, vs, 0, H1, W)
        e(f"L_st_go{slot}:")
        if fl:
            for H in range(2):
                for Gq in range(4):
                    d = 8 + 4 * Gq
                    c = "0" if H == 0 else f"v[{d}:{d+3}]"
                    r = kb + 8 * Gq + 4 * H
                    e(f"v_mfma_f32_16x16x32_bf16 v[{d}:{d+3}], v[{r}:{r+3}], v[{24+4*H}:{27+4*H}], {c}")
            for r in range(4):
                e(f"v_permlane32_swap_b32 v{8+r}, v{12+r}")
            for r in range(4):
                e(f"v_permlane32_swap_b32 v{16+r}, v{20+r}")
            for r in range(4):
                e(f"v_add_f32_dpp v{8+r}, v{12+r}, v{8+r} row_ror:8 {DPPM}")
            for r in range(4):
                e(f"v_add_f32_dpp v{12+r}, v{20+r}, v{16+r} row_ror:8 {DPPM}")
        else:
            for t in range(4):
                for T in range(2):
                    d = 8 + 4 * T
                    c = "0" if t == 0 else f"v[{d}:{d+3}]"
                    r = kb + 16 * T + 4 * t
                    e(f"v_mfma_f32_16x16x32_bf16 v[{d}:{d+3}], v[{r}:{r+3}], v[{16+4*t}:{19+4*t}], {c}")
        t0, t1, al, nm = kb + 28, kb + 29, kb + 30, kb + 31
        e(f"v_max3_f32 v{t0}, v8, v9, v10")
        e(f"v_max3_f32 v{t1}, v12, v13, v14")
        e(f"v_max3_f32 v{t0}, v{t0}, v11, v5")
        e(f"v_max3_f32 v{t0}, v{t0}, v{t1}, v15")
        e(f"v_mov_b32 v{t1}, v{t0}")
        e(f"v_permlane32_swap_b32 v{t0}, v{t1}")
        e(f"v_max_f32 v{t0}, v{t0}, v{t1}")
        e(f"v_mov_b32 v{t1}, v{t0}")
        e(f"v_permlane16_swap_b32 v{t0}, v{t1}")
        e(f"v_max_f32 v{t0}, v{t0}, v{t1}")
        e(f"v_sub_f32 v{t1}, v5, v{t0}")
        e(f"v_mul_f32 v{nm}, s{NSC}, v{t0}")
        e(f"v_mul_f32 v{t1}, s{SC}, v{t1}")
        e(f"v_mov_b32 v5, v{t0}")
        e(f"v_exp_f32 v{al}, v{t1}")
        for i in range(8):
            e(f"v_fma_f32 v{8+i}, v{8+i}, s{SC}, v{nm}")
        for i in range(8):
            e(f"v_exp_f32 v{8+i}, v{8+i}")
        for k in range(16):
            e(f"v_pk_mul_f32 v[{32+2*k}:{33+2*k}], v[{32+2*k}:{33+2*k}], v[{al}:{al+1}] op_sel_hi:[1,0]")
        e(f"v_mul_f32 v6, v6, v{al}")
        e(f"v_add_f32 v{t0}, v8, v9")
        e(f"v_add_f32 v{t1}, v10, v11")
        e(f"v_add_f32 v6, v6, v12")
        e(f"v_add_f32 v{t0}, v{t0}, v13")
        e(f"v_add_f32 v{t1}, v{t1}, v14")
        e(f"v_add_f32 v6, v6, v15")
        e(f"v_add_f32 v{t0}, v{t0}, v{t1}")
        e("v_cvt_pk_bf16_f32 v8, v8, v9")
        e("v_cvt_pk_bf16_f32 v9, v10, v11")
        e("v_cvt_pk_bf16_f32 v10, v12, v13")
        e("v_cvt_pk_bf16_f32 v11, v14, v15")
        e(f"v_add_f32 v6, v6, v{t0}")
        if H1 < 8:
            e(f"s_cmp_eq_u32 s{VP}, 0")
            e(f"s_cbranch_scc1 L_st_novb{slot}")
            if gl:
                assert G == 4
                e(f"s_waitcnt vmcnt({W-G})")
                gclaim()
                groups(vload, vs, H1, 8, W, first=True)
            elif pool and not pm:
                assert G == 4
                e(f"s_waitcnt vmcnt({W-G})")
                e(f"s_cmp_eq_u32 s{MODE}, 0")
                e(f"s_cbranch_scc1 L_st_nog{slot}")
                gclaim()
                e(f"L_st_nog{slot}:")
                groups(vload, vs, H1, 8, W, first=True)
            else:
                groups(vload, vs, H1, 8, W)
            e(f"L_st_novb{slot}:")
        e(f"s_cmp_lg_u32 s{REM}, 1")
        e(f"s_cbranch_scc1 L_st_notlast{slot}")
        e("s_waitcnt vmcnt(0)")
        e(f"L_st_notlast{slot}:")
        def perms(jj):
            sel = f"s{PL}" if (jj & 1) == 0 else f"s{PH}"
            for q in range(4):
                e(f"v_perm_b32 v{kb+4*jj+q}, v{vb+4*(2*q+1)+(jj>>1)}, v{vb+4*(2*q)+(jj>>1)}, {sel}")
        def pv(jj):
            d = 32 + 4 * jj
            e(f"v_mfma_f32_16x16x32_bf16 v[{d}:{d+3}], v[{kb+4*jj}:{kb+4*jj+3}], v[8:11], v[{d}:{d+3}]")
        perms(0)
        for jj in range(8):
            if jj + 1 < 8:
                perms(jj + 1)
            pv(jj)
        e(f"s_sub_u32 s{REM}, s{REM}, 1")
        e(f"s_cmp_eq_u32 s{REM}, 0")
        e("s_cbranch_scc1 L_st_done")
        if gl:
            e(f"s_cmp_lg_u32 s{REM}, 2")
            e(f"s_cbranch_scc1 L_st_nok{slot}")
            e(f"s_waitcnt vmcnt({min(W-G, 4)})")
            if slot == 0:
                e(f"s_cmp_lg_u32 s{VP}, 0")
                e("s_cbranch_scc1 L_st_claim0")
                e("s_waitcnt vmcnt(0)")
                e("L_st_claim0:")
            e(f"v_readfirstlane_b32 s{OFF[slot]}, v7")
            e(f"s_mov_b32 s{VP}, 0")
            if gl == 'dbg':
                e(f"s_add_u32 s{OFF[slot]}, s{OFF[slot]}, {384*8192}")
            e(f"s_cmp_ge_u32 s{OFF[slot]}, s{LIM}")
            e(f"s_cbranch_scc1 L_st_nok{slot}")
        elif pool:
            e(f"s_mov_b32 s{VP}, 0")
            e(f"s_cmp_lg_u32 s{REM}, 2")
            e(f"s_cbranch_scc1 L_st_nok{slot}")
            if pm:
                e("s_cmp_ge_u32 s3, 4")
                e(f"s_cbranch_scc1 L_st_nok{slot}")
            e(f"s_waitcnt vmcnt({W-G if pm else min(W-G, 4)})")
            e(f"s_cmp_lg_u32 s{MODE}, 0")
            e(f"s_cbranch_scc1 L_st_g{slot}")
            e("s_mov_b64 exec, 1")
            e(f"ds_add_rtn_u32 v7, v3, v4 offset:{L_CNT}")
            e("s_mov_b64 exec, -1")
            e("s_waitcnt lgkmcnt(0)")
            e(f"v_readfirstlane_b32 s{CL}, v7")
            e(f"s_lshl1_add_u32 s{OFF[slot]}, s{CL}, s{WB}")
            e(f"s_cmp_ge_u32 s{OFF[slot]}, s{LIM}")
            e(f"s_cbranch_scc1 L_st_sw{slot}")
            if pm:
                e(f"s_add_u32 s{CL}, s{OFF[slot]}, {SWN*8192}")
                e(f"s_cmp_ge_u32 s{CL}, s{LIM}")
                e(f"s_cselect_b32 s{MODE}, 1, 0")
            e(f"L_st_k{slot}:")
        else:
            e(f"s_mov_b32 s{VP}, 0")
            e(f"s_cmp_lg_u32 s{REM}, 2")
            e(f"s_cbranch_scc1 L_st_nok{slot}")
            if HQ:
                e("s_cmp_ge_u32 s3, 4")
                e(f"s_cbranch_scc1 L_st_peek{slot}")
                e(f"L_st_unpeek{slot}:")
            e(f"s_cmp_ge_u32 s{OFF[vs]}, s{LIME}")
            e(f"s_cbranch_scc1 L_st_claim{slot}")
            e(f"s_waitcnt vmcnt({W-G})")
            e(f"L_st_claim{slot}:")
            e("s_mov_b64 exec, 1")
            e(f"ds_add_rtn_u32 v7, v3, v4 offset:{L_CNT}")
            e("s_mov_b64 exec, -1")
            e("s_waitcnt lgkmcnt(0)")
            e(f"v_readfirstlane_b32 s{CL}, v7")
            e(f"s_lshl_b32 s{OFF[slot]}, s{CL}, {5 if ilv else 1}")
            e(f"s_cmp_ge_u32 s{OFF[slot]}, s{LIME}")
            e(f"s_cbranch_scc1 L_st_end{slot}")
        groups(kload, slot, 0, 8, W, first=True)
        e(f"s_mov_b32 s{VP}, 1")
        e(f"s_mov_b32 s{REM}, 3")
        e(f"L_st_nok{slot}:")
        if trace:
            e("s_memrealtime s[60:61]")
            e("s_mov_b32 m0, s31")
            e("s_add_u32 s31, s31, 1")
            e("s_waitcnt lgkmcnt(0)")
            e("v_writelane_b32 v0, s60, m0")
    e("s_branch L_st_loop")
    for slot in range(3):
        e(f"L_st_nova{slot}:")
        e("s_waitcnt vmcnt(32)")
        e(f"s_cmp_eq_u32 s{REM}, 3")
        e(f"s_cbranch_scc1 L_st_go{slot}")
        e("s_waitcnt vmcnt(16)")
        e(f"s_cmp_eq_u32 s{REM}, 2")
        e(f"s_cbranch_scc1 L_st_go{slot}")
        e(f"s_waitcnt vmcnt({4 if order == 'k4v4' else 8})")
        e(f"s_branch L_st_go{slot}")
        if gl:
            continue
        if pm:
            e(f"L_st_sw{slot}:")
            e(f"s_mov_b32 s{MODE}, 1")
            gclaim()
            e("s_waitcnt vmcnt(0)")
            e(f"L_st_g{slot}:")
            e(f"v_readfirstlane_b32 s{CL}, v7")
            e(f"s_cmp_ge_u32 s{CL}, {P}")
            e(f"s_cbranch_scc1 L_st_nok{slot}")
            e(f"s_lshr_b32 s4, s{CL}, 4")
            if rot:
                e(f"s_add_u32 s4, s4, s{CL}")
                e(f"s_and_b32 s4, s4, {Pw-1}")
            e(f"s_add_u32 s4, s4, {NH-Pw}")
            e(f"s_bitcmp1_b32 s{CL}, 0")
            e(f"s_cselect_b32 s5, {NL}, 0")
            e("s_add_u32 s4, s4, s5")
            e(f"s_bfe_u32 s5, s{CL}, 0x30001")
            e("s_lshl_b32 s5, s5, 7")
            e("s_add_u32 s4, s4, s5")
            e(f"s_lshl_b32 s{OFF[slot]}, s4, 13")
            e(f"s_branch L_st_k{slot}")
            continue
        if pool:
            e(f"L_st_sw{slot}:")
            e(f"s_mov_b32 s{MODE}, 1")
            e(f"s_mov_b32 s{LIM}, {1<<23}")
            gclaim()
            e("s_waitcnt vmcnt(0)")
            e(f"L_st_g{slot}:")
            e(f"v_readfirstlane_b32 s{OFF[slot]}, v7")
            e(f"s_cmp_lt_u32 s{OFF[slot]}, s{LIM}")
            e(f"s_cbranch_scc1 L_st_k{slot}")
            e(f"s_branch L_st_nok{slot}")
            continue
        if HQ:
            e(f"L_st_peek{slot}:")
            if HQ >= 64:
                e(f"s_branch L_st_nok{slot}")
            else:
                e("s_mov_b64 exec, 1")
                e(f"ds_read_b32 v7, v3 offset:{L_CNT}")
                e("s_mov_b64 exec, -1")
                e("s_waitcnt lgkmcnt(0)")
                e(f"v_readfirstlane_b32 s{CL}, v7")
                e(f"s_lshl1_add_u32 s{CL}, s{CL}, {HQ*8192}")
                e(f"s_cmp_ge_u32 s{CL}, s{LIM}")
                e(f"s_cbranch_scc1 L_st_nok{slot}")
                e(f"s_branch L_st_unpeek{slot}")
        e(f"L_st_end{slot}:")
        e(f"s_cmp_ge_u32 s{OFF[slot]}, s{LIM}")
        e(f"s_cbranch_scc1 L_st_nok{slot}")
        for i in range(8):
            kload(slot, i)
        for i in range(8):
            vload(slot, i)
        e(f"s_mov_b32 s{REM}, 3")
        e(f"s_branch L_st_nok{slot}")

    if not gl and not v3:
        e("L_st_nowork:")
        for r in range(32, 64):
            e(f"v_mov_b32 v{r}, 0")
    e("L_st_done:")
    stamp(4)
    if trace:
        e("v_mov_b32 v8, v0")
        e("v_mbcnt_lo_u32_b32 v0, -1, 0")
        e("v_mbcnt_hi_u32_b32 v0, -1, v0")
        e("v_writelane_b32 v8, s31, 63")
        e("s_lshl_b32 s4, s2, 3")
        e("s_add_u32 s4, s4, s3")
        e("s_lshl_b32 s4, s4, 8")
        e(f"s_add_u32 s4, s4, {PROFB+0x20000}")
        e("v_lshlrev_b32 v9, 2, v0")
        e(f"buffer_store_dword v8, v9, {srd(WS)}, s4 offen")
    e("v_mov_b32 v7, v6")
    e("v_permlane32_swap_b32 v6, v7")
    e("v_add_f32 v6, v6, v7")
    e("v_mov_b32 v7, v6")
    e("v_permlane16_swap_b32 v6, v7")
    e("v_add_f32 v6, v6, v7")
    e(f"v_mul_f32 v5, s{SC}, v5")
    e("v_and_b32 v1, 15, v0")
    e("v_lshrrev_b32 v2, 4, v0")
    e("v_lshl_add_u32 v2, v1, 2, v2")
    e("v_lshlrev_b32 v2, 4, v2")
    e("s_lshl_b32 s4, s3, 11")
    e("v_add_u32 v2, s4, v2")
    e("s_lshl_b32 s4, s3, 2")
    e(f"v_lshl_add_u32 v1, v1, {4 if v3 else 5}, s4")
    e("s_mov_b32 exec_lo, 0x000f000f")
    e("s_mov_b32 exec_hi, 0x000f000f")
    for jj in range(8):
        e(f"ds_write_b128 v2, v[{32+4*jj}:{35+4*jj}] offset:{L_ACC+256*jj}")
    e("s_mov_b64 exec, 15")
    e(f"ds_write_b32 v1, v5 offset:{L_MC}")
    e(f"ds_write_b32 v1, v6 offset:{L_L}")
    e("s_mov_b64 exec, -1")
    if not v3:
        e("s_cmp_ge_u32 s3, 4")
        e("s_cbranch_scc1 L_tail")
    e("s_waitcnt lgkmcnt(0)")
    e("s_barrier")
    stamp(5)
    prof_out()
    e("s_endpgm")

    def w0_block():
        e("L_w0:")
        set_srd(WO, 80, 4096 * 512 * 2)
        e(f"s_load_dword s{EP}, s[{WS}:{WS+1}], 4")
        e("s_setprio 3")
        e("s_and_b32 s4, s2, 7")
        e("s_lshl_b32 s4, s4, 3")
        e("s_lshr_b32 s5, s2, 5")
        e("s_add_u32 s4, s4, s5")
        e("s_lshl_b32 s4, s4, 16")
        e("s_bfe_u32 s5, s2, 0x20003")
        e("s_lshl_b32 s5, s5, 8")
        e("s_add_u32 s4, s4, s5")
        e("v_lshrrev_b32 v64, 4, v0")
        e("v_lshlrev_b32 v64, 13, v64")
        e("v_and_b32 v65, 15, v0")
        e("v_lshl_add_u32 v64, v65, 4, v64")
        e("v_lshlrev_b32 v122, 4, v0")
        bar0()
        if st:
            e("s_mov_b32 s31, 0")
            e("s_barrier")
        stamp(0)
        for s in range(2):
            for h in range(2):
                if s or h:
                    e(f"s_add_u32 s5, s4, {s*32768+h*4096}")
                so = "s5" if (s or h) else "s4"
                for i4 in range(4):
                    r = 128 + 4 * (8 * s + 4 * h + i4)
                    e(f"buffer_load_dwordx4 v[{r}:{r+3}], v64, {srd(WO)}, {so} offen offset:{1024*i4} {opol}")
        e("s_bfe_u32 s93, s2, 0x30003")
        e("s_lshl_b32 s93, s93, 12")
        e("s_bfe_u32 s5, s2, 0x10006")
        e("s_lshl_b32 s5, s5, 11")
        e("s_add_u32 s93, s93, s5")
        e(f"s_add_u32 s93, s93, {QG}")
        e("v_lshlrev_b32 v72, 3, v0")
        e("v_mov_b32 v73, 1")
        e("s_waitcnt lgkmcnt(0)")
        mk_tag(EP)
        for s in range(2):
            e(f"s_waitcnt vmcnt({8-8*s})")
            for jj in range(8):
                sel = f"s{PL}" if (jj & 1) == 0 else f"s{PH}"
                for q in range(4):
                    r0 = 128 + 4 * (8 * s + 2 * q) + (jj >> 1)
                    e(f"v_perm_b32 v{192+4*(8*s+jj)+q}, v{r0+4}, v{r0}, {sel}")
            for jj in range(8):
                r = 192 + 4 * (8 * s + jj)
                e(f"ds_write_b128 v122, v[{r}:{r+3}] offset:{L_WO+1024*(8*s+jj)}")
        stamp(6)
        if 'q' in dbg:
            for r in (64, 66, 68, 70):
                e(f"v_mov_b32 v{r}, 0")
        else:
            poll([(f"buffer_load_dwordx4 v[64:67], v122, {srd(WS)}, s93 offen sc1", (65, 67)),
              (f"buffer_load_dwordx4 v[68:71], v122, {srd(WS)}, s93 offen offset:1024 sc1", (69, 71))], "L_qpoll", qsleep)
        e(f"v_add_u32 v72, {L_Q}, v72")
        e("ds_write2_b32 v72, v64, v66 offset0:0 offset1:1")
        e("ds_write2_b32 v72, v68, v70 offset0:128 offset1:129")
        e("v_mov_b32 v72, 0")
        e("s_waitcnt lgkmcnt(0)")
        e(f"ds_write_b32 v72, v73 offset:{L_CNT+8}")
        e("s_branch L_stream")

    if not v3:
        w0_block()

    def wo_duty():
        e("s_and_b32 s4, s2, 7")
        e("s_lshl_b32 s4, s4, 3")
        e("s_lshr_b32 s5, s2, 5")
        e("s_add_u32 s4, s4, s5")
        e("s_lshl_b32 s4, s4, 16")
        e("s_bfe_u32 s5, s2, 0x20003")
        e("s_lshl_b32 s5, s5, 8")
        e("s_add_u32 s4, s4, s5")
        e("v_lshrrev_b32 v64, 4, v0")
        e("v_lshlrev_b32 v64, 13, v64")
        e("v_and_b32 v65, 15, v0")
        e("v_lshl_add_u32 v64, v65, 4, v64")
        for s in range(2):
            for h in range(2):
                if s or h:
                    e(f"s_add_u32 s5, s4, {s*32768+h*4096}")
                so = "s5" if (s or h) else "s4"
                for i4 in range(4):
                    r = 128 + 4 * (8 * s + 4 * h + i4)
                    e(f"buffer_load_dwordx4 v[{r}:{r+3}], v64, {srd(WO)}, {so} offen offset:{1024*i4} {opol}")
        for s in range(2):
            e(f"s_waitcnt vmcnt({8-8*s})")
            for jj in range(8):
                sel = f"s{PL}" if (jj & 1) == 0 else f"s{PH}"
                for q in range(4):
                    r0 = 128 + 4 * (8 * s + 2 * q) + (jj >> 1)
                    e(f"v_perm_b32 v{192+4*(8*s+jj)+q}, v{r0+4}, v{r0}, {sel}")

    def q_duty(lab):
        e(f"s_cmp_lg_u32 s{HW}, 0")
        e(f"s_cbranch_scc1 {lab}_skip")
        e("s_bfe_u32 s93, s2, 0x30003")
        e("s_lshl_b32 s93, s93, 12")
        e("s_bfe_u32 s5, s2, 0x10006")
        e("s_lshl_b32 s5, s5, 11")
        e("s_add_u32 s93, s93, s5")
        e(f"s_add_u32 s93, s93, {QG}")
        e("v_lshlrev_b32 v112, 3, v0")
        e(f"v_add_u32 v112, {L_Q}, v112")
        e("v_mov_b32 v113, 1")
        e("v_mov_b32 v114, 0")
        e("v_lshlrev_b32 v122, 4, v0")
        e("s_waitcnt lgkmcnt(0)")
        mk_tag(EP)
        poll([(f"buffer_load_dwordx4 v[104:107], v122, {srd(WS)}, s93 offen sc1", (105, 107)),
              (f"buffer_load_dwordx4 v[108:111], v122, {srd(WS)}, s93 offen offset:1024 sc1", (109, 111))], lab, qsleep)
        e("ds_write2_b32 v112, v104, v106 offset0:0 offset1:1")
        e("ds_write2_b32 v112, v108, v110 offset0:128 offset1:129")
        e("s_waitcnt lgkmcnt(0)")
        e(f"ds_write_b32 v114, v113 offset:{L_CNT+8}")
        stamp(2)
        e(f"{lab}_skip:")

    e("L_helper:")
    e(f"s_sub_u32 s{HW}, s3, 4")
    if v3:
        if qb:
            assert sb == 0
            e("s_cmp_lt_u32 s2, 64")
            e("s_cbranch_scc1 L_hb_skip")
        e("s_barrier")
        if qb:
            e("L_hb_skip:")
        e(f"s_load_dword s{EP}, s[{WS}:{WS+1}], 4")
        set_srd(WO, 80, 4096 * 512 * 2)
    elif st:
        e("s_mov_b32 s31, 0")
        e(f"s_cmp_lt_u32 s2, {stq}")
        e("s_cbranch_scc1 L_hb_skip")
        e("s_barrier")
        e("L_hb_skip:")
    elif not eb:
        e("v_and_b32 v100, 3, v0")
        e("v_lshlrev_b32 v100, 2, v100")
        e("v_mov_b32 v101, 0")
        e(f"ds_write_b32 v100, v101 offset:{L_CNT}")
    set_srd(X, 72, 2048)
    e("s_setprio 3")
    e("v_lshrrev_b32 v1, 3, v0")
    e("v_and_b32 v14, 7, v0")
    if 'r' in dbg:
        e("s_branch L_role_none")
    e("s_cmp_lt_u32 s2, 64")
    e("s_cbranch_scc1 L_role_q")
    e("s_cmp_lt_u32 s2, 92")
    e("s_cbranch_scc1 L_role_h")
    e("s_cmp_lt_u32 s2, 96")
    e("s_cbranch_scc1 L_role_none")
    e("s_cmp_lt_u32 s2, 128")
    e("s_cbranch_scc1 L_role_g")
    e("s_cmp_ge_u32 s2, 160")
    e("s_cbranch_scc1 L_role_none")
    e(f"s_cmp_eq_u32 s3, {6 if v3 else 7}")
    e("s_cbranch_scc1 L_role_f")
    e("L_role_none:")
    e("s_waitcnt lgkmcnt(0)")
    bar0()
    stamp(0)
    if v3:
        e("L_joinq:")
        e("s_mov_b64 exec, -1")
        q_duty("L_qp0")

    e("L_join:")
    e("s_mov_b64 exec, -1")
    if v3:
        stamp(1)
        e(f"s_cmp_lg_u32 s{HW}, 3")
        e("s_cbranch_scc1 L_wo_done")
        wo_duty()
        e("L_wo_done:")
    e("s_bfe_u32 s6, s2, 0x30003")
    e("s_bfe_u32 s7, s2, 0x10006")
    e("s_and_b32 s5, s2, 7")
    e("s_lshl_b32 s5, s5, 1")
    e("s_lshr_b32 s4, s2, 7")
    e("s_add_u32 s5, s5, s4")
    e("s_lshl_b32 s4, s6, 1")
    e("s_add_u32 s4, s4, s7")
    e("s_lshl_b32 s4, s4, 4")
    e("s_add_u32 s4, s4, s5")
    e("s_lshl_b32 s4, s4, 2")
    e(f"s_add_u32 s4, s4, s{HW}")
    e("s_lshl_b32 s4, s4, 10")
    e(f"s_add_u32 s72, s4, {PG}")
    e("s_lshl_b32 s4, s6, 2")
    e(f"s_add_u32 s4, s4, s{HW}")
    e("s_lshl_b32 s4, s4, 1")
    e("s_add_u32 s4, s4, s7")
    e("s_lshl_b32 s4, s4, 4")
    e("s_add_u32 s4, s4, s5")
    e("s_lshl_b32 s4, s4, 4")
    e(f"s_add_u32 s73, s4, {MLG}")
    e("s_and_b32 s93, s2, 7")
    e(f"s_lshr_b32 s5, s{HW}, 1")
    e(f"s_and_b32 s38, s{HW}, 1")
    e("s_lshl_b32 s38, s38, 3")
    e("s_lshr_b32 s94, s2, 5")
    e("s_lshl_b32 s4, s93, 1")
    e("s_add_u32 s4, s4, s5")
    e("s_lshl_b32 s4, s4, 4")
    e("s_add_u32 s4, s4, s38")
    e("s_lshl_b32 s4, s4, 3")
    e("s_add_u32 s4, s4, s94")
    e("s_lshl_b32 s4, s4, 9")
    e(f"s_add_u32 s98, s4, {PG}")
    e("s_add_u32 s99, s98, 0x2000")
    e("s_add_u32 s100, s98, 0x4000")
    e("s_add_u32 s101, s98, 0x6000")
    e("s_lshl_b32 s4, s93, 3")
    e("s_add_u32 s4, s4, s94")
    e("s_and_b32 s6, s4, 0xfffffffe")
    e("s_add_u32 s6, s6, s5")
    e("s_lshl_b32 s6, s6, 8")
    e(f"s_add_u32 s74, s6, {MLG}")
    e("s_lshl_b32 s4, s4, 8")
    e("s_bfe_u32 s5, s2, 0x20003")
    e("s_lshl_b32 s5, s5, 17")
    e("s_add_u32 s4, s4, s5")
    e(f"s_add_u32 s75, s4, {SG}")
    e("s_add_u32 s76, s75, 0x4000")
    e("s_and_b32 s4, s2, 31")
    e("s_lshl_b32 s95, s4, 5")
    e("s_lshl_b32 s4, s4, 14")
    e(f"s_lshl_b32 s5, s{HW}, 12")
    e("s_add_u32 s4, s4, s5")
    e(f"s_add_u32 s77, s4, {SG}")
    e("s_branch L_tail" if v3 else "s_branch L_stream")

    XF, PK, XS = 32, 48, 16
    for kind in "qh":
        e(f"L_role_{kind}:")
        if kind == "q":
            stride = 8192
            set_srd(WR, 78, 512 * 4096 * 2)
            e("s_mov_b32 s96, s2")
            if gl == 'ws' or pool:
                e("s_lshr_b32 s5, s2, 3")
                e(f"s_mul_i32 s5, s5, {cstr}")
                e(f"s_add_u32 s5, s5, {CG}")
                e(f"v_mul_u32_u24 v98, {8*cstr}, v0")
                e(f"v_mov_b32 v99, {0 if pm else (1024-P)*8192 if pool else 384*8192}")
                e("s_mov_b64 exec, 3")
                e(f"buffer_store_dword v99, v98, {srd(WS)}, s5 offen sc1")
                e("s_mov_b64 exec, -1")
            e("v_lshlrev_b32 v98, 17, v1")
            e(f"s_lshl_b32 s4, s{HW}, 20")
        else:
            stride = 3584
            set_srd(WR, 84, 512 * 1792 * 2)
            set_srd(BR, 86, 1792 * 2)
            e("s_sub_u32 s96, s2, 64")
            e(f"v_mul_u32_u24 v98, {16*stride}, v1")
            e(f"s_mul_i32 s4, s{HW}, {128*stride}")
        e("v_lshl_add_u32 v98, v14, 4, v98")
        e("s_lshl_b32 s5, s96, 7")
        e("s_add_u32 s4, s4, s5")
        e("v_lshlrev_b32 v15, 5, v0")
        if kind == "h":
            e("v_and_b32 v99, 15, v0")
            e("v_lshlrev_b32 v99, 3, v99")
            e(f"buffer_load_dwordx2 v[102:103], v99, {srd(BR)}, s5 offen")
        e(f"buffer_load_dwordx4 v[2:5], v15, {srd(X)}, 0 offen")
        e(f"buffer_load_dwordx4 v[6:9], v15, {srd(X)}, 0 offen offset:16")
        for i in range(16):
            e(f"buffer_load_dwordx4 v[{128+4*i}:{131+4*i}], v98, {srd(WR)}, s4 offen {wpol}")
            if i < 15:
                e(f"s_add_u32 s4, s4, {stride}")
        if not v3:
            e("s_waitcnt lgkmcnt(0)")
            e(f"s_load_dword s{EP}, s[{WS}:{WS+1}], 4")
        bar0()
        if (v3 and qb and kind == "q") or (st and (kind == "q" or stq > 64)):
            e("s_barrier")
        stamp(0)
        if v3 and kind == "h":
            q_duty("L_qp1")
        red_addr()
        e(f"s_lshl_b32 s4, s{HW}, 5")
        e("v_lshl_add_u32 v97, v1, 2, s4")
        e("v_lshrrev_b32 v125, 4, v0")
        e("v_and_b32 v126, 15, v0")
        e("v_lshlrev_b32 v126, 4, v126")
        e("s_waitcnt vmcnt(16)")
        for k in range(8):
            unpack(XF + 2 * k, 2 + k)
        ln_stats(XF, 60, 61, 64)
        norm_all(XF, 60, 61, PK)
        if kind == "h":
            for k in range(8):
                unpack(XF + 2 * k, PK + k)
            ln_stats(XF, 60, 61, 64)
            norm_all(XF, 60, 61, PK)
        for bb in range(2):
            for k in range(8):
                e(f"ds_bpermute_b32 v{XS+8*bb+k}, v97, v{PK+k} offset:{128*bb}")
            if bb == 0:
                e("s_waitcnt lgkmcnt(0)")
        mk_tag(EP)
        for k in range(8):
            wp = 64 + 8 * (k & 1)
            e(f"s_waitcnt vmcnt({14-2*k})" + (" lgkmcnt(0)" if k == 0 else ""))
            wperm(wp, 128 + 8 * k, 132 + 8 * k)
            dots(wp, XS + k, XS + 8 + k, k == 0)
        reduce_publish("L_joinq" if (v3 and kind == "q") else "L_join")
        if kind == "q":
            e("v_cvt_pk_bf16_f32 v64, v64, v65")
            e("v_cvt_pk_bf16_f32 v66, v66, v67")
            e(f"v_mov_b32 v65, s{TAG}")
            e(f"v_mov_b32 v67, s{TAG}")
            e("v_lshl_add_u32 v68, v125, 11, v126")
            e("s_lshr_b32 s4, s96, 3")
            e("s_lshl_b32 s4, s4, 12")
            e("s_and_b32 s5, s96, 7")
            e("s_lshl_b32 s5, s5, 8")
            e("s_add_u32 s4, s4, s5")
            e(f"s_add_u32 s4, s4, {QG}")
            e(f"buffer_store_dwordx4 v[64:67], v68, {srd(WS)}, s4 offen sc1")
        else:
            e("v_cvt_pk_bf16_f32 v68, v64, v65")
            e("v_cvt_pk_bf16_f32 v69, v66, v67")
            unpack(64, 68); unpack(66, 69)
            unpack(68, 102); unpack(70, 103)
            e("v_pk_add_f32 v[64:65], v[64:65], v[68:69]")
            e("v_pk_add_f32 v[66:67], v[66:67], v[70:71]")
            e("v_cvt_pk_bf16_f32 v68, v64, v65")
            e("v_cvt_pk_bf16_f32 v69, v66, v67")
            unpack(64, 68); unpack(66, 69)
            k1 = -2.0 * math.sqrt(2.0 / math.pi) * math.log2(math.e)
            e(f"s_mov_b32 s4, {hx(f2u(k1*0.044715))}")
            e(f"v_mov_b32 v72, {hx(f2u(k1))}")
            for k in range(4):
                e(f"v_mul_f32 v{68+k}, v{64+k}, v{64+k}")
            for k in range(4):
                e(f"v_fma_f32 v{68+k}, v{68+k}, s4, v72")
            for k in range(4):
                e(f"v_mul_f32 v{68+k}, v{68+k}, v{64+k}")
            for k in range(4):
                e(f"v_exp_f32 v{68+k}, v{68+k}")
            for k in range(4):
                e(f"v_add_f32 v{68+k}, 1.0, v{68+k}")
            for k in range(4):
                e(f"v_rcp_f32 v{68+k}, v{68+k}")
            for k in range(4):
                e(f"v_mul_f32 v{64+k}, v{64+k}, v{68+k}")
            e("v_cvt_pk_bf16_f32 v64, v64, v65")
            e("v_cvt_pk_bf16_f32 v66, v66, v67")
            e(f"v_mov_b32 v65, s{TAG}")
            e(f"v_mov_b32 v67, s{TAG}")
            e("s_movk_i32 s4, 7168")
            e("v_mad_u32_u24 v68, v125, s4, v126")
            e("s_lshl_b32 s4, s96, 8")
            e(f"s_add_u32 s4, s4, {HG}")
            e(f"buffer_store_dwordx4 v[64:67], v68, {srd(WS)}, s4 offen sc1")
        e("s_branch L_joinq" if (v3 and kind == "q") else "s_branch L_join")

    e("L_role_g:")
    set_srd(WR, 88, 1792 * 512 * 2)
    e("s_and_b32 s96, s2, 7")
    e("s_bfe_u32 s97, s2, 0x20003")
    e("s_lshl_b32 s6, s97, 2")
    e(f"s_add_u32 s6, s6, s{HW}")
    e("s_mul_i32 s6, s6, 112")
    e("s_lshl_b32 s4, s6, 10")
    e("s_lshl_b32 s5, s96, 7")
    e("s_add_u32 s4, s4, s5")
    e(f"v_mul_u32_u24 v98, {14*1024}, v1")
    e("v_lshl_add_u32 v98, v14, 4, v98")
    for i in range(14):
        e(f"buffer_load_dwordx4 v[{128+4*i}:{131+4*i}], v98, {srd(WR)}, s4 offen offset:{1024*(i&3)} {wpol}")
        if (i & 3) == 3:
            e("s_add_u32 s4, s4, 4096")
    if not v3:
        e("s_waitcnt lgkmcnt(0)")
        e(f"s_load_dword s{EP}, s[{WS}:{WS+1}], 4")
    bar0()
    stamp(0)
    if v3:
        q_duty("L_qp2")
    red_addr()
    e("v_min_u32 v99, 6, v14")
    e("v_mad_u32_u24 v99, v1, 7, v99")
    e("v_lshlrev_b32 v99, 3, v99")
    e("s_lshl_b32 s6, s6, 2")
    e(f"s_add_u32 s93, s6, {HG}")
    e("s_add_u32 s94, s93, 7168")
    e("v_lshlrev_b32 v97, 5, v1")
    e("s_waitcnt lgkmcnt(0)")
    mk_tag(EP)
    poll([(f"buffer_load_dwordx2 v[10:11], v99, {srd(WS)}, s93 offen sc1", (11,)),
          (f"buffer_load_dwordx2 v[12:13], v99, {srd(WS)}, s94 offen sc1", (13,))], "L_hpoll", 8)
    for bb in range(2):
        for k in range(7):
            e(f"ds_bpermute_b32 v{XS+8*bb+k}, v97, v{10+2*bb} offset:{4*k}")
    e("s_waitcnt lgkmcnt(0)")
    for k in range(7):
        wp = 64 + 8 * (k & 1)
        wperm(wp, 128 + 8 * k, 132 + 8 * k)
        dots(wp, XS + k, XS + 8 + k, k == 0)
    reduce_publish("L_join")
    e("v_mov_b32 v68, v66")
    e("v_mov_b32 v70, v67")
    e("v_mov_b32 v66, v65")
    e(f"v_mov_b32 v65, s{TAG}")
    e(f"v_mov_b32 v67, s{TAG}")
    e(f"v_mov_b32 v69, s{TAG}")
    e(f"v_mov_b32 v71, s{TAG}")
    e("v_bfe_u32 v72, v0, 2, 2")
    e("v_lshlrev_b32 v72, 10, v72")
    e("v_lshrrev_b32 v73, 4, v0")
    e("v_lshl_add_u32 v72, v73, 7, v72")
    e("v_and_b32 v73, 3, v0")
    e("v_lshl_add_u32 v72, v73, 5, v72")
    e("s_lshl_b32 s4, s96, 12")
    e("s_lshl_b32 s5, s97, 8")
    e("s_add_u32 s4, s4, s5")
    e(f"s_add_u32 s4, s4, {MG}")
    e(f"buffer_store_dwordx4 v[64:67], v72, {srd(WS)}, s4 offen sc1")
    e(f"buffer_store_dwordx4 v[68:71], v72, {srd(WS)}, s4 offen offset:16 sc1")
    e("s_branch L_join")

    e("L_role_f:")
    set_srd(BR, 90, 1024)
    e("s_and_b32 s96, s2, 31")
    e("s_lshl_b32 s4, s96, 5")
    e("v_lshlrev_b32 v98, 2, v14")
    e("v_bfe_u32 v99, v0, 3, 1")
    e("v_lshl_add_u32 v97, v99, 10, v98")
    e(f"buffer_load_dword v10, v98, {srd(BR)}, s4 offen")
    e(f"buffer_load_dword v11, v97, {srd(X)}, s4 offen")
    if not v3:
        e("s_waitcnt lgkmcnt(0)")
        e(f"s_load_dword s{EP}, s[{WS}:{WS+1}], 4")
    bar0()
    stamp(0)
    e("v_lshlrev_b32 v122, 4, v0")
    e("s_lshl_b32 s93, s96, 10")
    e(f"s_add_u32 s93, s93, {MG}")
    e("v_lshlrev_b32 v98, 1, v98")
    e("v_lshl_add_u32 v98, v99, 6, v98")
    e("v_lshrrev_b32 v99, 5, v0")
    e("v_lshl_add_u32 v98, v99, 2, v98")
    e("v_lshlrev_b32 v99, 4, v99")
    e("v_sub_u32 v99, 16, v99")
    e("s_waitcnt lgkmcnt(0)")
    mk_tag(EP)
    poll([(f"buffer_load_dwordx4 v[16:19], v122, {srd(WS)}, s93 offen sc1", (17, 19))], "L_gpoll", gsleep)
    e("v_permlane32_swap_b32 v16, v18")
    e("v_add_f32 v16, v16, v18")
    e("v_mov_b32 v18, v16")
    e("v_permlane16_swap_b32 v16, v18")
    e("v_add_f32 v16, v16, v18")
    e("v_lshlrev_b32 v10, v99, v10")
    e("v_lshlrev_b32 v11, v99, v11")
    e("v_and_b32 v10, 0xffff0000, v10")
    e("v_and_b32 v11, 0xffff0000, v11")
    bfr(16)
    e("v_add_f32 v16, v16, v10")
    bfr(16)
    e(f"v_mul_f32 v18, {hx(f2u(-math.log2(math.e)))}, v16")
    e("v_exp_f32 v18, v18")
    e("v_add_f32 v18, 1.0, v18")
    e("v_rcp_f32 v18, v18")
    e("v_mul_f32 v16, v16, v18")
    bfr(16)
    e(f"ds_write_b32 v98, v16 offset:{L_G}")
    e(f"ds_write_b32 v98, v11 offset:{L_X}")
    e("s_branch L_join")

    e("L_tail:")
    e("s_setprio 3")
    e("v_and_b32 v12, 3, v0")
    e("v_lshlrev_b32 v12, 9, v12")
    e("v_lshrrev_b32 v9, 4, v0")
    e("v_lshl_add_u32 v12, v9, 4, v12")
    e("v_bfe_u32 v3, v0, 2, 2")
    e("v_lshl_add_u32 v12, v3, 2, v12")
    e(f"s_lshl_b32 s4, s{HW}, 6")
    e("v_add_u32 v12, s4, v12")
    e(f"s_lshl_b32 s4, s{HW}, {4 if v3 else 5}")
    e("v_mov_b32 v3, s4")
    e("v_lshlrev_b32 v122, 4, v0")
    e("v_mov_b32 v101, 0")
    e("v_lshrrev_b32 v13, 5, v0")
    e("v_and_b32 v7, 31, v0")
    e("v_lshlrev_b32 v4, 4, v7")
    e("v_lshl_add_u32 v4, v13, 12, v4")
    e("v_and_b32 v8, 15, v0")
    e("v_add3_u32 v14, v8, v13, s38")
    e("v_and_b32 v14, 15, v14")
    e("v_lshlrev_b32 v14, 4, v14")
    e("v_lshl_add_u32 v15, v7, 1, v13")
    e("v_lshlrev_b32 v15, 2, v15")
    e(f"s_lshl_b32 s4, s{HW}, 8")
    e("v_add_u32 v15, s4, v15")
    e("v_and_b32 v7, 1, v0")
    e("v_lshlrev_b32 v7, 9, v7")
    e("v_lshl_add_u32 v7, v9, 5, v7")
    e("v_lshlrev_b32 v10, 15, v9")
    e("v_lshl_add_u32 v10, v8, 4, v10")
    e("v_lshl_add_u32 v11, v13, 4, v8")
    e("v_lshlrev_b32 v11, 2, v11")
    e(f"s_lshl_b32 s4, s{HW}, 7")
    e("v_add_u32 v11, s4, v11")
    e("s_waitcnt lgkmcnt(0)")
    mk_tag(EP)
    e(f"v_mov_b32 v65, s{TAG}")
    e(f"v_mov_b32 v67, s{TAG}")
    e(f"v_mov_b32 v69, s{TAG}")
    e(f"v_mov_b32 v71, s{TAG}")
    e("s_barrier")
    NS = 4 if v3 else 8
    e(f"ds_read_b128 v[16:19], v3 offset:{L_MC}")
    if not v3:
        e(f"ds_read_b128 v[20:23], v3 offset:{L_MC+16}")
    e(f"ds_read_b128 v[24:27], v3 offset:{L_L}")
    if not v3:
        e(f"ds_read_b128 v[28:31], v3 offset:{L_L+16}")
    for sw in range(NS):
        e(f"ds_read2st64_b32 v[{32+2*sw}:{33+2*sw}], v12 offset0:{8*sw} offset1:{8*sw+1}")
    e(f"s_waitcnt lgkmcnt({5 if v3 else 10})")
    e("v_max3_f32 v68, v16, v17, v18")
    if v3:
        e("v_max_f32 v68, v68, v19")
    else:
        e("v_max3_f32 v70, v19, v20, v21")
        e("v_max3_f32 v68, v68, v22, v23")
        e("v_max_f32 v68, v68, v70")
    for k in range(NS):
        e(f"v_sub_f32 v{16+k}, v{16+k}, v68")
    for k in range(NS):
        e(f"v_exp_f32 v{16+k}, v{16+k}")
    e("s_waitcnt lgkmcnt(0)")
    e("v_mul_f32 v64, v16, v32")
    e("v_mul_f32 v66, v16, v33")
    e("v_mul_f32 v70, v16, v24")
    for k in range(1, NS):
        e(f"v_fmac_f32 v64, v{16+k}, v{32+2*k}")
        e(f"v_fmac_f32 v66, v{16+k}, v{33+2*k}")
        e(f"v_fmac_f32 v70, v{16+k}, v{24+k}")
    e(f"buffer_store_dwordx4 v[64:67], v122, {srd(WS)}, s72 offen sc1")
    e("s_mov_b64 exec, 1")
    e(f"buffer_store_dwordx4 v[68:71], v101, {srd(WS)}, s73 offen sc1")
    e("s_mov_b64 exec, -1")
    if not v3:
        e(f"s_cmp_lg_u32 s{HW}, 3")
        e("s_cbranch_scc1 L_wo_skip")
        for i in range(16):
            r = 192 + 4 * i
            e(f"ds_read_b128 v[{r}:{r+3}], v122 offset:{L_WO+1024*i}")
            if i == 7:
                e("s_waitcnt lgkmcnt(4)")
        e("L_wo_skip:")
    stamp(5)
    poll([(f"buffer_load_dwordx4 v[16:19], v14, {srd(WS)}, s74 offen sc1", (17, 19))] +
         [(f"buffer_load_dwordx4 v[{20+4*i}:{23+4*i}], v4, {srd(WS)}, s{98+i} offen sc1", (21 + 4 * i, 23 + 4 * i)) for i in range(4)],
         "L_ppoll", tsleep)
    e("v_mov_b32 v17, v16")
    for s in (8, 4, 2, 1):
        e(f"v_max_f32_dpp v17, v17, v17 row_ror:{s} {DPPM}")
    e("v_sub_f32 v16, v16, v17")
    e("v_exp_f32 v16, v16")
    e("v_mul_f32 v18, v16, v18")
    for s in (8, 4, 2, 1):
        e(f"v_add_f32_dpp v18, v18, v18 row_ror:{s} {DPPM}")
    e("v_rcp_f32 v18, v18")
    e("v_mul_f32 v16, v16, v18")
    e(f"v_mul_f32_dpp v36, v16, v20 row_newbcast:0 {DPPM}")
    e(f"v_mul_f32_dpp v37, v16, v22 row_newbcast:0 {DPPM}")
    for i in range(1, 4):
        e(f"v_fmac_f32_dpp v36, v16, v{20+4*i} row_newbcast:{2*i} {DPPM}")
        e(f"v_fmac_f32_dpp v37, v16, v{22+4*i} row_newbcast:{2*i} {DPPM}")
    e("v_permlane32_swap_b32 v36, v37")
    e("v_add_f32 v36, v36, v37")
    e(f"ds_write_b32 v15, v36 offset:{L_OP}")
    e("s_waitcnt lgkmcnt(0)")
    stamp(6)
    e("s_barrier")
    e(f"s_cmp_lg_u32 s{HW}, 3")
    e("s_cbranch_scc1 L_h6_skip")
    for s in range(2):
        for w in range(2):
            for c in range(2):
                r = 32 + 16 * s + 8 * w + 4 * c
                e(f"ds_read_b128 v[{r}:{r+3}], v7 offset:{L_OP+128*s+256*w+16*c}")
    e("s_mov_b32 s78, 0xcccccccc")
    e("s_mov_b32 s79, 0xcccccccc")
    e("s_mov_b32 s80, 0xf0f0f0f0")
    e("s_mov_b32 s81, 0xf0f0f0f0")
    e("s_mov_b32 s82, 0xff00ff00")
    e("s_mov_b32 s83, 0xff00ff00")
    e("s_waitcnt lgkmcnt(0)")
    for s in range(2):
        for k in range(4):
            r = 32 + 16 * s + 2 * k
            e(f"v_pk_add_f32 v[{r}:{r+1}], v[{r}:{r+1}], v[{r+8}:{r+9}]")
    for s in range(2):
        for k in range(4):
            r = 32 + 16 * s + 2 * k
            e(f"v_cvt_pk_bf16_f32 v{16+4*s+k}, v{r}, v{r+1}")
    for s in range(2):
        for jj in range(8):
            d = 128 + 4 * jj
            c = "0" if s == 0 else f"v[{d}:{d+3}]"
            w = 192 + 4 * (8 * s + jj)
            e(f"v_mfma_f32_16x16x32_bf16 v[{d}:{d+3}], v[{w}:{w+3}], v[{16+4*s}:{19+4*s}], {c}")
    for k in range(4):
        for r in range(4):
            e(f"v_cndmask_b32_e64 v{160+4*k+r}, v{128+8*k+r}, v{132+8*k+r}, s[78:79]")
    for k in range(2):
        for r in range(4):
            e(f"v_cndmask_b32_e64 v{176+4*k+r}, v{160+8*k+r}, v{164+8*k+r}, s[80:81]")
    for r in range(4):
        e(f"v_cndmask_b32_e64 v{64+2*r}, v{176+r}, v{180+r}, s[82:83]")
    e(f"buffer_store_dwordx4 v[64:67], v10, {srd(WS)}, s75 offen sc1")
    e(f"buffer_store_dwordx4 v[68:71], v10, {srd(WS)}, s76 offen sc1")
    e("L_h6_skip:")
    e("s_lshr_b32 s4, s2, 5")
    e("s_cmp_lg_u32 s4, 4")
    e("s_cbranch_scc1 L_h_exit")
    e("v_bfe_u32 v16, v0, 1, 3")
    e("v_bfe_u32 v17, v0, 4, 1")
    e("v_lshl_add_u32 v16, v17, 3, v16")
    e("v_and_b32 v17, 1, v0")
    e("v_lshlrev_b32 v118, 2, v16")
    e("v_lshl_add_u32 v118, v17, 6, v118")
    e("v_lshlrev_b32 v119, 1, v16")
    e("v_lshl_add_u32 v119, v17, 10, v119")
    e(f"ds_read_b32 v116, v118 offset:{L_G}")
    e(f"ds_read_b32 v117, v118 offset:{L_X}")
    poll([(f"buffer_load_dwordx4 v[{20+4*i}:{23+4*i}], v122, {srd(WS)}, s77 offen offset:{1024*i} sc1", (21 + 4 * i, 23 + 4 * i)) for i in range(4)],
         "L_spoll", tsleep)
    e("v_add_f32 v20, v20, v24")
    e("v_add_f32 v22, v22, v26")
    e("v_add_f32 v28, v28, v32")
    e("v_add_f32 v30, v30, v34")
    e("v_add_f32 v20, v20, v28")
    e("v_add_f32 v22, v22, v30")
    e("v_permlane32_swap_b32 v20, v22")
    e("v_add_f32 v20, v20, v22")
    e("v_mov_b32 v22, v20")
    e("v_permlane16_swap_b32 v20, v22")
    e("v_add_f32 v20, v20, v22")
    e(f"ds_write_b32 v11, v20 offset:{L_SP}")
    e("s_waitcnt lgkmcnt(0)")
    e("s_barrier")
    e(f"s_cmp_lg_u32 s{HW}, 0")
    e("s_cbranch_scc1 L_h_exit")
    e("s_mov_b32 exec_hi, 0")
    e("v_lshlrev_b32 v16, 2, v0")
    e(f"v_add_u32 v16, {L_SP}, v16")
    e("ds_read2_b32 v[20:21], v16 offset0:0 offset1:32")
    e("ds_read2_b32 v[22:23], v16 offset0:64 offset1:96")
    e("s_waitcnt lgkmcnt(0)")
    e("v_pk_add_f32 v[20:21], v[20:21], v[22:23]")
    e("v_add_f32 v20, v20, v21")
    bfr(20)
    e("v_mul_f32 v20, v20, v116")
    bfr(20)
    e("v_add_f32 v20, v20, v117")
    e("v_cvt_pk_bf16_f32 v20, v20, v20")
    e(f"buffer_store_short v20, v119, {srd(OUT)}, s95 offen")
    e("s_cmp_lg_u32 s2, 128")
    e("s_cbranch_scc1 L_h_exit")
    e("s_mov_b64 exec, 1")
    e(f"buffer_store_dword v65, v101, {srd(WS)}, 0 offen offset:4")
    for i in range(icp):
        e(f"v_fma_f32 v{8+(i%8)}, v1, v2, v{8+(i%8)}")
    if pad:
        e("L_padloop:")
        e("s_memrealtime s[10:11]")
        e("s_waitcnt lgkmcnt(0)")
        e("s_sub_u32 s10, s10, s8")
        e(f"s_cmp_lt_u32 s10, {pad}")
        e("s_cbranch_scc1 L_padloop")
    e("L_h_exit:")
    stamp(7)
    prof_out()
    e("L_end:")
    e("s_endpgm")

    n = a.fix_hazards()
    head = open("recurrent_scan__gqa_block_cached__mixer_channel_mlp__decode.s.ref").read().split("\n")
    lead = []
    for ln in head:
        if not ln.startswith(";"):
            break
        if "@launch" in ln and ln.startswith("; @launch"):
            lead.append(f"; @launch grid=(256,1,1) block=(512,1,1) lds={LDS_SIZE}")
        else:
            lead.append(ln)
    out = "\n".join(lead) + "\n"
    out += '.amdgcn_target "amdgcn-amd-amdhsa--gfx950"\n.text\n'
    out += f".globl {NAME}\n.p2align 8\n.type {NAME},@function\n"
    out += a.text()
    out += '.section .rodata,"a"\n.p2align 6\n'
    out += f".amdhsa_kernel {NAME}\n"
    out += "  .amdhsa_next_free_vgpr 256\n  .amdhsa_next_free_sgpr 102\n  .amdhsa_accum_offset 256\n"
    out += "  .amdhsa_group_segment_fixed_size 0\n  .amdhsa_kernarg_size 104\n  .amdhsa_user_sgpr_count 2\n"
    out += "  .amdhsa_user_sgpr_kernarg_segment_ptr 1\n  .amdhsa_system_sgpr_workgroup_id_x 1\n.end_amdhsa_kernel\n"
    return out, n

if __name__ == "__main__":
    kw = eval("dict(" + (sys.argv[2] if len(sys.argv) > 2 else "") + ")")
    txt, n = gen(**kw)
    path = sys.argv[1] if len(sys.argv) > 1 else "k2.s"
    open(path, "w").write(txt)
    print("wrote", path, "nops inserted:", n, "bytes:", len(txt))
```

```python
import sys, struct, math
sys.path.insert(0, "dev")
from asmlib import Asm

NAME = "recurrent_scan__gqa_block_cached__mixer_channel_mlp__decode_kernel"

def f2u(x):
    return struct.unpack("<I", struct.pack("<f", x))[0]
def hx(x):
    return f"0x{x & 0xffffffff:08x}"

QG, HG, MG, PG, MLG, SG, PROFB = 0x1000, 0x10000, 0x18000, 0x20000, 0x120000, 0x130000, 0x200000
CG = 0x1C0000
WS_SIZE = 0x300000
L_ACC, L_WO, L_MC, L_L, L_CNT, L_Q = 0x0000, 0x4000, 0x8000, 0x8080, 0x8100, 0x8200
L_P, L_G, L_X, L_OP, L_SP = 0x8600, 0x8E00, 0x8E80, 0x8F00, 0x9300
LDS_SIZE = 0x9500
NWAVE = 8

C_SC = (128 ** -0.5) * math.log2(math.e)
DPPM = "row_mask:0xf bank_mask:0xf"

def gen(prof=False, spin=1 << 16, W=8, G=4, NH=62, qsleep=2, tsleep=1, gsleep=16, kpol='nt', vpol='nt', trace=False,
        wpol='', opol='', PW=None, E=8, hprio=0, pad=0, fl=True, eb=False, gl=None, cstr=4096, ilv=False, P=0, par=0, dbg='', order='kv', icp=0, HP=3, HQ=0, v3=False, sb=8, swap=False, qb=False, pm=False, rot=True, SWN=4, st=False, stq=64, spol='sc1', ppol='sc1', xpol='', wsoff=0, one=False):
    pool = P > 0
    if v3:
        assert not (pool or gl or ilv or fl or eb or hprio)
        HP, HQ = 3, 0
    assert not (pool and (gl or ilv))
    NL = (1024 - P) // 8 - NH
    Pw = P // 16
    if pm:
        assert pool and Pw in (2, 4, 8, 16) and HQ >= 64
        NL = 128 - NH
    MODE, WB = 96, 6
    PW = PW or W
    a = Asm()
    e = a.e

    OFF = [24, 25, 26]; REM, VP, LIM, CL, LIME = 27, 28, 29, 30, 97
    SC, NSC, PL, PH, TAG, HW, EP = 32, 33, 34, 35, 36, 37, 39
    K, V, WS, X, WR, BR, WO, OUT = 40, 44, 48, 52, 56, 60, 64, 68
    def srd(r):
        return f"s[{r}:{r+3}]"

    def stamp(k):
        if prof:
            e(f"s_memrealtime s[{8+2*k}:{9+2*k}]")
            e("s_waitcnt lgkmcnt(0)")

    def prof_out():
        if not prof:
            return
        e("s_mov_b64 exec, -1")
        e("s_lshl_b32 s4, s2, 3")
        e("s_add_u32 s4, s4, s3")
        e("s_lshl_b32 s4, s4, 5")
        e(f"s_add_u32 s4, s4, {PROFB}")
        for k in range(8):
            e(f"v_mov_b32 v{8+k}, s{8+2*k}")
        e("v_mov_b32 v7, 0")
        e("s_mov_b64 exec, 1")
        e(f"buffer_store_dwordx4 v[8:11], v7, {srd(WS)}, s4 offen")
        e(f"buffer_store_dwordx4 v[12:15], v7, {srd(WS)}, s4 offen offset:16")
        e("s_waitcnt vmcnt(0)")

    if st:
        assert not (v3 or eb or gl or ilv or trace) and (pm or not pool)
    def bar0():
        if not eb and not v3 and not st:
            e("s_barrier")

    def mk_tag(src):
        e(f"s_mul_i32 s{TAG}, s{src}, 0x9E3779B1")
        e(f"s_add_u32 s{TAG}, s{TAG}, 0x7F4A7C15")

    def set_srd(r, ptr, size):
        e(f"s_mov_b32 s{r}, s{ptr}")
        e(f"s_mov_b32 s{r+1}, s{ptr+1}")
        e(f"s_mov_b32 s{r+2}, {size}")
        e(f"s_mov_b32 s{r+3}, 0x00020000")

    def unpack(dst, src):
        e(f"v_lshlrev_b32 v{dst}, 16, v{src}")
        e(f"v_and_b32 v{dst+1}, 0xffff0000, v{src}")

    def half_sum(r, t):
        for s in (8, 4, 2, 1):
            e(f"v_add_f32_dpp v{r}, v{r}, v{r} row_ror:{s} {DPPM}")
        e(f"v_mov_b32 v{t}, v{r}")
        e(f"v_permlane16_swap_b32 v{r}, v{t}")
        e(f"v_add_f32 v{r}, v{r}, v{t}")

    def tree16(dst, src, tmp):
        for k in range(4):
            e(f"v_pk_add_f32 v[{tmp+2*k}:{tmp+2*k+1}], v[{src+4*k}:{src+4*k+1}], v[{src+4*k+2}:{src+4*k+3}]")
        e(f"v_pk_add_f32 v[{tmp}:{tmp+1}], v[{tmp}:{tmp+1}], v[{tmp+2}:{tmp+3}]")
        e(f"v_pk_add_f32 v[{tmp+4}:{tmp+5}], v[{tmp+4}:{tmp+5}], v[{tmp+6}:{tmp+7}]")
        e(f"v_pk_add_f32 v[{tmp}:{tmp+1}], v[{tmp}:{tmp+1}], v[{tmp+4}:{tmp+5}]")
        e(f"v_add_f32 v{dst}, v{tmp}, v{tmp+1}")

    def bfr(r):
        e(f"v_cvt_pk_bf16_f32 v{r}, v{r}, v{r}")
        e(f"v_and_b32 v{r}, 0xffff0000, v{r}")

    def ln_stats(XF, MEAN, RS, TMP):
        tree16(MEAN, XF, TMP)
        half_sum(MEAN, TMP)
        e(f"v_mul_f32 v{MEAN}, {hx(f2u(1/512))}, v{MEAN}")
        D = TMP + 8
        e(f"v_mov_b32 v{TMP+1}, v{MEAN}")
        e(f"v_mov_b32 v{TMP}, v{MEAN}")
        for k in range(8):
            e(f"v_pk_add_f32 v[{D+2*k}:{D+2*k+1}], v[{XF+2*k}:{XF+2*k+1}], v[{TMP}:{TMP+1}] neg_lo:[0,1] neg_hi:[0,1]")
        for k in range(8):
            e(f"v_pk_mul_f32 v[{D+2*k}:{D+2*k+1}], v[{D+2*k}:{D+2*k+1}], v[{D+2*k}:{D+2*k+1}]")
        tree16(RS, D, TMP)
        half_sum(RS, TMP)
        e(f"v_mul_f32 v{RS}, {hx(f2u(1/512))}, v{RS}")
        bfr(MEAN)
        bfr(RS)
        e(f"v_add_f32 v{RS}, {hx(f2u(1e-5))}, v{RS}")
        bfr(RS)
        e(f"v_sqrt_f32 v{RS}, v{RS}")
        bfr(RS)
        e(f"v_rcp_f32 v{RS}, v{RS}")

    def norm_all(XF, m, rs, PK):
        for k in range(16):
            e(f"v_sub_f32 v{XF+k}, v{XF+k}, v{m}")
        for k in range(8):
            e(f"v_cvt_pk_bf16_f32 v{PK+k}, v{XF+2*k}, v{XF+2*k+1}")
        for k in range(8):
            unpack(XF + 2 * k, PK + k)
        for k in range(16):
            e(f"v_mul_f32 v{XF+k}, v{rs}, v{XF+k}")
        for k in range(8):
            e(f"v_cvt_pk_bf16_f32 v{PK+k}, v{XF+2*k}, v{XF+2*k+1}")

    def wperm(dst, r0, r1):
        for c in range(8):
            sel = f"s{PL}" if (c & 1) == 0 else f"s{PH}"
            e(f"v_perm_b32 v{dst+c}, v{r1+(c>>1)}, v{r0+(c>>1)}, {sel}")

    ACC = 80
    def dots(wp, x0, x1, first):
        for bb, xr in ((0, x0), (1, x1)):
            for c in range(8):
                d = ACC + 8 * bb + c
                if first:
                    e(f"v_dot2_f32_bf16 v{d}, v{wp+c}, v{xr}, 0")
                else:
                    e(f"v_dot2c_f32_bf16 v{d}, v{wp+c}, v{xr}")

    def red_addr():
        e("v_lshrrev_b32 v120, 5, v0")
        e("v_lshlrev_b32 v120, 8, v120")
        e("v_bfe_u32 v123, v0, 4, 1")
        e("v_lshl_add_u32 v120, v123, 4, v120")
        e("v_and_b32 v123, 7, v0")
        e("v_lshl_add_u32 v120, v123, 5, v120")
        e(f"s_lshl_b32 s5, s{HW}, 9")
        e("v_add_u32 v120, s5, v120")
        e("v_lshlrev_b32 v122, 4, v0")
        e("v_mov_b32 v121, 1")
        e("v_mov_b32 v101, 0")

    def reduce_publish(lab):
        for k in range(8):
            e(f"v_permlane32_swap_b32 v{ACC+k}, v{ACC+8+k}")
        for k in range(4):
            e(f"v_pk_add_f32 v[{ACC+2*k}:{ACC+2*k+1}], v[{ACC+2*k}:{ACC+2*k+1}], v[{ACC+8+2*k}:{ACC+9+2*k}]")
        for k in range(4):
            e(f"v_permlane16_swap_b32 v{ACC+k}, v{ACC+4+k}")
        for k in range(2):
            e(f"v_pk_add_f32 v[{ACC+2*k}:{ACC+2*k+1}], v[{ACC+2*k}:{ACC+2*k+1}], v[{ACC+4+2*k}:{ACC+5+2*k}]")
        for k in range(4):
            e(f"v_add_f32_dpp v{ACC+k}, v{ACC+k}, v{ACC+k} row_ror:8 {DPPM}")
        e("s_mov_b32 exec_lo, 0x00ff00ff")
        e("s_mov_b32 exec_hi, 0x00ff00ff")
        e(f"ds_write_b128 v120, v[{ACC}:{ACC+3}] offset:{L_P}")
        e("s_mov_b64 exec, 1")
        e(f"ds_add_rtn_u32 v64, v101, v121 offset:{L_CNT+4}")
        e("s_waitcnt lgkmcnt(0)")
        e("v_readfirstlane_b32 s4, v64")
        e("s_mov_b64 exec, -1")
        e("s_cmp_lg_u32 s4, 3")
        e(f"s_cbranch_scc1 {lab}")
        e("s_mov_b32 exec_hi, 0")
        for w in range(4):
            e(f"ds_read_b128 v[{64+4*w}:{67+4*w}], v122 offset:{L_P+512*w}")
        e("s_waitcnt lgkmcnt(0)")
        for k in range(2):
            e(f"v_pk_add_f32 v[{64+2*k}:{65+2*k}], v[{64+2*k}:{65+2*k}], v[{68+2*k}:{69+2*k}]")
            e(f"v_pk_add_f32 v[{72+2*k}:{73+2*k}], v[{72+2*k}:{73+2*k}], v[{76+2*k}:{77+2*k}]")
        for k in range(2):
            e(f"v_pk_add_f32 v[{64+2*k}:{65+2*k}], v[{64+2*k}:{65+2*k}], v[{72+2*k}:{73+2*k}]")

    def poll(loads, lab, sleep):
        n = len(loads)
        P = [78 + 2 * i for i in range(n)]
        assert n <= 7
        for p in P:
            e(f"s_mov_b64 s[{p}:{p+1}], -1")
        e(f"s_mov_b32 s92, {spin}")
        e(f"{lab}_top:")
        for i, (txt, tags) in enumerate(loads):
            e(f"s_mov_b64 exec, s[{P[i]}:{P[i]+1}]")
            e(f"s_cbranch_execz {lab}_s{i}")
            e(txt)
            e(f"{lab}_s{i}:")
        e("s_waitcnt vmcnt(0)")
        for i, (txt, tags) in enumerate(loads):
            e(f"s_mov_b64 exec, s[{P[i]}:{P[i]+1}]")
            e(f"v_cmp_ne_u32_e64 s[{P[i]}:{P[i]+1}], v{tags[0]}, s{TAG}")
            for tg in tags[1:]:
                e(f"v_cmp_ne_u32_e64 vcc, v{tg}, s{TAG}")
                e(f"s_or_b64 s[{P[i]}:{P[i]+1}], s[{P[i]}:{P[i]+1}], vcc")
        e("s_mov_b64 exec, -1")
        e(f"s_mov_b64 s[4:5], s[{P[0]}:{P[0]+1}]")
        for p in P[1:]:
            e(f"s_or_b64 s[4:5], s[4:5], s[{p}:{p+1}]")
        e("s_cmp_eq_u64 s[4:5], 0")
        e(f"s_cbranch_scc1 {lab}_done")
        if sleep:
            e(f"s_sleep {sleep}")
        e("s_sub_u32 s92, s92, 1")
        e("s_cmp_lg_u32 s92, 0")
        e(f"s_cbranch_scc1 {lab}_top")
        e(f"{lab}_done:")

    e(f"{NAME}:")
    e("s_cmp_ge_u32 s2, 256")
    e("s_cbranch_scc1 L_end")
    if pad:
        e("s_memrealtime s[8:9]")
    e("s_load_dwordx16 s[72:87], s[0:1], 0")
    e("s_load_dwordx8 s[88:95], s[0:1], 64")
    e(f"s_load_dwordx2 s[{WS}:{WS+1}], s[0:1], 96")
    e("v_lshrrev_b32 v1, 6, v0")
    e("v_and_b32 v0, 63, v0")
    e("s_bfe_u32 s4, s2, 0x40003")
    e("v_readfirstlane_b32 s3, v1")
    e("s_lshl_b32 s4, s4, 23")
    if gl or pool:
        e(f"s_mov_b32 s{LIM}, {1<<23}")
    elif ilv:
        e("s_and_b32 s5, s2, 7")
        e("s_lshl_b32 s5, s5, 14")
        e("s_add_u32 s4, s4, s5")
        e("s_lshr_b32 s5, s2, 7")
        e("s_lshl_b32 s5, s5, 13")
        e("s_add_u32 s4, s4, s5")
        e(f"s_mov_b32 s{LIM}, {(1<<23)-15*8192}")
    else:
        e("s_and_b32 s5, s2, 7")
        e("s_lshl_b32 s5, s5, 20")
        e("s_add_u32 s4, s4, s5")
        e("s_cmp_ge_u32 s2, 128")
        e(f"s_cselect_b32 s5, {NH*8192}, 0")
        e(f"s_mov_b32 s{LIM}, {NH*8192}")
        e(f"s_cselect_b32 s{LIM}, {NL*8192}, s{LIM}")
        e("s_add_u32 s4, s4, s5")
    if swap:
        e("s_xor_b32 s3, s3, 4")
    e(f"s_mov_b32 s{K+2}, s{LIM}")
    e(f"s_mov_b32 s{K+3}, 0x00020000")
    e(f"s_mov_b32 s{V+2}, s{LIM}")
    e(f"s_mov_b32 s{V+3}, 0x00020000")
    e(f"s_mov_b32 s{WS+2}, {WS_SIZE}")
    e(f"s_mov_b32 s{WS+3}, 0x00020000")
    e(f"s_mov_b32 s{SC}, {hx(f2u(C_SC))}")
    e(f"s_mov_b32 s{NSC}, {hx(f2u(-C_SC))}")
    e(f"s_mov_b32 s{PL}, 0x05040100")
    e(f"s_mov_b32 s{PH}, 0x07060302")
    e(f"s_mov_b32 s{OUT+2}, 2048")
    e(f"s_mov_b32 s{OUT+3}, 0x00020000")
    if prof:
        for k in range(8):
            e(f"s_mov_b32 s{8+2*k}, 0")
        e("s_memrealtime s[20:21]")
    if eb:
        e("v_and_b32 v100, 3, v0")
        e("v_lshlrev_b32 v100, 2, v100")
        e("v_mov_b32 v101, 0")
        e(f"ds_write_b32 v100, v101 offset:{L_CNT}")
    if v3 or st:
        e("v_lshlrev_b32 v100, 2, v0")
        e("v_mov_b32 v101, 0")
        e(f"s_mov_b32 s5, {(9 if st else 12)*4096}")
        e("v_writelane_b32 v101, s5, 0")
        e("s_mov_b64 exec, 7")
        e(f"ds_write_b32 v100, v101 offset:{L_CNT}")
        e("s_mov_b64 exec, -1")
    e("s_waitcnt lgkmcnt(0)")
    if eb:
        e("s_barrier")
    if wsoff:
        e(f"s_add_u32 s{WS}, s{WS}, {wsoff}")
        e(f"s_addc_u32 s{WS+1}, s{WS+1}, 0")
    e(f"s_add_u32 s{K}, s74, s4")
    e(f"s_addc_u32 s{K+1}, s75, 0")
    e(f"s_add_u32 s{V}, s76, s4")
    e(f"s_addc_u32 s{V+1}, s77, 0")
    e(f"s_mov_b64 s[{OUT}:{OUT+1}], s[92:93]")
    e("s_cmp_ge_u32 s3, 4")
    e("s_cbranch_scc1 L_helper")
    if not v3:
        e("s_cmp_eq_u32 s3, 0")
        e("s_cbranch_scc1 L_w0")
    bar0()
    if st:
        e("s_mov_b32 s31, 1")
        e(f"s_cmp_ge_u32 s2, {stq}")
        e("s_cbranch_scc1 L_st_nb")
        e("s_barrier")
        e("s_mov_b32 s31, 2")
        e("L_st_nb:")
    stamp(0)

    e("L_stream:")
    stamp(1)
    e("v_and_b32 v5, 15, v0")
    e("v_lshrrev_b32 v6, 4, v0")
    e("v_lshlrev_b32 v3, 10, v6")
    e("v_lshl_add_u32 v3, v5, 4, v3")
    e("v_add_u32 v4, 4096, v3")
    if gl:
        e("s_and_b32 s4, s2, 7")
        e("s_lshl_b32 s4, s4, 4")
        e("s_lshr_b32 s5, s2, 7")
        e("s_lshl_b32 s5, s5, 3")
        e("s_add_u32 s4, s4, s5")
        e("s_add_u32 s4, s4, s3")
        e(f"s_mul_i32 s{OFF[0]}, s4, 24576")
        e(f"s_add_u32 s{OFF[1]}, s{OFF[0]}, 8192")
        e(f"s_add_u32 s{OFF[2]}, s{OFF[0]}, 16384")
        e("s_bfe_u32 s4, s2, 0x40003")
        if gl == 'dbg':
            e(f"s_load_dwordx2 s[{WO}:{WO+1}], s[0:1], 88")
            e(f"s_mov_b32 s{WO+2}, 256")
            e(f"s_mov_b32 s{WO+3}, 0x00020000")
            e(f"s_lshl_b32 s{LIME}, s4, 4")
        else:
            e(f"s_mul_i32 s{LIME}, s4, {cstr}")
            e(f"s_add_u32 s{LIME}, s{LIME}, {CG}")
    elif v3:
        e(f"s_lshl_b32 s{OFF[0]}, s3, 13")
        e(f"s_add_u32 s{OFF[1]}, s{OFF[0]}, {4*8192}")
        e(f"s_add_u32 s{OFF[2]}, s{OFF[0]}, {8*8192}")
    else:
        if st:
            e("s_sub_u32 s4, s3, 1")
            e("s_lshl_b32 s4, s4, 12")
            e("v_mov_b32 v8, s4")
            e(f"v_add_u32 v9, {3*4096}, v8")
            e(f"v_add_u32 v10, {6*4096}, v8")
            e("s_cmp_lg_u32 s31, 0")
            e("s_cbranch_scc1 L_st_hp")
        e("s_mov_b64 exec, 1")
        for i in range(3):
            if i == HP:
                for j in range(HP, 3):
                    e(f"v_mov_b32 v{8+j}, 0x400000")
                e("s_cmp_ge_u32 s3, 4")
                e("s_cbranch_scc1 L_st_hp")
            e(f"ds_add_rtn_u32 v{8+i}, v3, v4 offset:{L_CNT}")
        if HP < 3 or st:
            e("L_st_hp:")
        e("s_mov_b64 exec, -1")
    if pm:
        e("s_and_b32 s4, s2, 7")
        e(f"s_lshl_b32 s{WB}, s4, 20")
        e("s_cmp_ge_u32 s2, 128")
        e(f"s_cselect_b32 s5, {NH*8192}, 0")
        e(f"s_add_u32 s{WB}, s{WB}, s5")
        e(f"s_mov_b32 s{LIM}, {(NH-Pw)*8192}")
        e("s_cmp_ge_u32 s2, 128")
        e(f"s_cselect_b32 s{LIM}, {(NL-Pw)*8192}, s{LIM}")
        e(f"s_add_u32 s{LIM}, s{LIM}, s{WB}")
        e("s_bfe_u32 s4, s2, 0x40003")
        e(f"s_mul_i32 s{LIME}, s4, {cstr}")
        e(f"s_add_u32 s{LIME}, s{LIME}, {CG}")
        e(f"s_mov_b32 s{MODE}, 0")
    elif pool:
        e("s_and_b32 s4, s2, 7")
        e(f"s_mul_i32 s{WB}, s4, {(NH+NL)*8192}")
        e("s_and_b32 s4, s2, 1")
        e(f"s_mul_i32 s4, s4, {2*par*8192}")
        e(f"s_add_u32 s{WB}, s{WB}, s4")
        e(f"s_sub_u32 s4, {par*8192}, s4")
        e(f"s_add_u32 s5, s4, {NH*8192}")
        e(f"s_add_u32 s4, s4, {NL*8192}")
        e("s_cmp_ge_u32 s2, 128")
        e(f"s_cselect_b32 s{LIM}, s4, s5")
        e("s_cselect_b32 s5, s5, 0")
        e(f"s_add_u32 s{WB}, s{WB}, s5")
        e(f"s_add_u32 s{LIM}, s{LIM}, s{WB}")
        e("s_bfe_u32 s4, s2, 0x40003")
        e(f"s_mul_i32 s{LIME}, s4, {cstr}")
        e(f"s_add_u32 s{LIME}, s{LIME}, {CG}")
        e(f"s_mov_b32 s{MODE}, 0")
    if hprio:
        e("s_setprio 0")
        e("s_cmp_lt_u32 s3, 4")
        e("s_cbranch_scc1 L_st_prio")
        e(f"s_setprio {hprio}")
        e("L_st_prio:")
    elif not v3:
        e("s_setprio 0")
    if fl:
        e("v_lshrrev_b32 v2, 3, v5")
        e("v_lshlrev_b32 v2, 6, v2")
        e("v_lshl_add_u32 v2, v6, 4, v2")
        e("v_and_b32 v1, 7, v5")
        e("v_lshl_add_u32 v1, v1, 8, v2")
        e("v_and_b32 v7, 3, v5")
        e("v_lshl_add_u32 v7, v7, 8, v2")
        e("v_add_u32 v2, 4096, v1")
    else:
        e("v_lshlrev_b32 v1, 8, v5")
        e("v_lshl_add_u32 v1, v6, 4, v1")
        e("v_add_u32 v2, 4096, v1")
        e("v_and_b32 v7, 3, v5")
        e("v_lshlrev_b32 v7, 8, v7")
        e("v_lshl_add_u32 v7, v6, 4, v7")
    e("v_mov_b32 v5, 0xff800000")
    e("v_mov_b32 v6, 0")
    e(f"s_mov_b32 s{REM}, 0")
    e(f"s_mov_b32 s{VP}, 0")
    if not gl and not pool:
        e(f"s_sub_u32 s{LIME}, s{LIM}, {E*8192*(16 if ilv else 1)}")
    if trace:
        e("s_mov_b32 s31, 0")
    if not gl and not v3:
        e("s_waitcnt lgkmcnt(0)")
        for i in range(3):
            e(f"v_readfirstlane_b32 s{OFF[i]}, v{8+i}")
    if not v3:
        e(f"s_load_dword s{EP}, s[{WS}:{WS+1}], 4")
    if not gl and not v3:
        for i in range(3):
            if pool:
                e(f"s_lshl1_add_u32 s{OFF[i]}, s{OFF[i]}, s{WB}")
            else:
                e(f"s_lshl_b32 s{OFF[i]}, s{OFF[i]}, {5 if ilv else 1}")

    def gclaim():
        e(f"v_mov_b32 v7, {1 if pm else 0x2000}")
        e("s_mov_b64 exec, 1")
        e(f"buffer_atomic_add v7, off, {srd(WO if gl == 'dbg' else WS)}, s{LIME} sc0")
        e("s_mov_b64 exec, -1")

    def kload(slot, idx):
        kb = 64 + 64 * slot
        T, t = idx >> 2, idx & 3
        r = kb + 16 * T + 4 * t
        o = (2048 * (t >> 1) + 128 * (t & 1)) if fl else 64 * t
        e(f"buffer_load_dwordx4 v[{r}:{r+3}], v{1+T}, {srd(K)}, s{OFF[slot]} offen offset:{o} {kpol}")
    def vload(slot, i):
        r = 96 + 64 * slot + 4 * i
        e(f"buffer_load_dwordx4 v[{r}:{r+3}], v{3+(i>>2)}, {srd(V)}, s{OFF[slot]} offen offset:{256*(i&3)} {vpol}")
    if order == 'k4v4':
        k0, v0_ = kload, vload
        def kload(slot, i):
            (k0 if i < 4 else v0_)(slot, i & 3)
        def vload(slot, i):
            (k0 if i < 4 else v0_)(slot, 4 + (i & 3))
    def groups(fn, slot, lo, hi, w, first=False):
        for i in range(lo, hi):
            if (i % G) == 0 and not (first and i == lo):
                e(f"s_waitcnt vmcnt({w-G})")
            fn(slot, i)

    for i in range(3):
        if v3:
            for j in range(16):
                n = 16 * i + j
                if n == sb:
                    for r in range(32, 64):
                        e(f"v_mov_b32 v{r}, 0")
                    e("s_barrier")
                if n >= PW and (n % G) == 0:
                    e(f"s_waitcnt vmcnt({PW-G})")
                (kload if j < 8 else vload)(i, j & 7)
            e(f"s_mov_b32 s{REM}, {i+1}")
            continue
        if not gl:
            e(f"s_cmp_ge_u32 s{OFF[i]}, s{LIM}")
            e(f"s_cbranch_scc1 {'L_st_nowork' if i == 0 else 'L_st_pro_done'}")
        groups(kload, i, 0, 8, PW, first=(i == 0))
        if i == 0:
            for r in range(32, 64):
                e(f"v_mov_b32 v{r}, 0")
        if st and i == 0:
            groups(vload, i, 0, 4, PW)
            e("s_cmp_lg_u32 s31, 1")
            e("s_cbranch_scc1 L_st_nb2")
            e("s_barrier")
            e("L_st_nb2:")
            groups(vload, i, 4, 8, PW)
        else:
            groups(vload, i, 0, 8, PW)
        e(f"s_mov_b32 s{REM}, {i+1}")
    e("L_st_pro_done:")
    stamp(2)
    e(f"s_mov_b32 s{CL}, {spin}")
    e("s_mov_b64 exec, 1")
    e("L_qflag:")
    e(f"ds_read_b32 v8, v3 offset:{L_CNT+8}")
    e("s_waitcnt lgkmcnt(0)")
    e("v_readfirstlane_b32 s4, v8")
    e("s_cmp_lg_u32 s4, 0")
    e("s_cbranch_scc1 L_qflag_done")
    e("s_sleep 1")
    e(f"s_sub_u32 s{CL}, s{CL}, 1")
    e(f"s_cmp_lg_u32 s{CL}, 0")
    e("s_cbranch_scc1 L_qflag")
    e("L_qflag_done:")
    e("s_mov_b64 exec, -1")
    if fl:
        for t in range(2):
            e(f"ds_read_b128 v[{24+4*t}:{27+4*t}], v7 offset:{L_Q+128*t}")
    else:
        for t in range(4):
            e(f"ds_read_b128 v[{16+4*t}:{19+4*t}], v7 offset:{L_Q+64*t}")
    e("s_waitcnt lgkmcnt(0)")
    if gl:
        gclaim()
    stamp(3)

    e("L_st_loop:")
    for slot in range(3):
        kb = 64 + 64 * slot
        vb = kb + 32
        vs = (slot + 2) % 3
        H1 = 8 if G == 8 else 4
        e(f"s_cmp_eq_u32 s{VP}, 0")
        e(f"s_cbranch_scc1 L_st_nova{slot}")
        if pm:
            e(f"s_waitcnt vmcnt({W-G})")
            e(f"s_cmp_eq_u32 s{MODE}, 0")
            e(f"s_cbranch_scc1 L_st_nog{slot}")
            gclaim()
            e(f"L_st_nog{slot}:")
            groups(vload, vs, 0, H1, W, first=True)
        else:
            groups(vload, vs, 0, H1, W)
        e(f"L_st_go{slot}:")
        if fl:
            for H in range(2):
                for Gq in range(4):
                    d = 8 + 4 * Gq
                    c = "0" if H == 0 else f"v[{d}:{d+3}]"
                    r = kb + 8 * Gq + 4 * H
                    e(f"v_mfma_f32_16x16x32_bf16 v[{d}:{d+3}], v[{r}:{r+3}], v[{24+4*H}:{27+4*H}], {c}")
            for r in range(4):
                e(f"v_permlane32_swap_b32 v{8+r}, v{12+r}")
            for r in range(4):
                e(f"v_permlane32_swap_b32 v{16+r}, v{20+r}")
            for r in range(4):
                e(f"v_add_f32_dpp v{8+r}, v{12+r}, v{8+r} row_ror:8 {DPPM}")
            for r in range(4):
                e(f"v_add_f32_dpp v{12+r}, v{20+r}, v{16+r} row_ror:8 {DPPM}")
        else:
            for t in range(4):
                for T in range(2):
                    d = 8 + 4 * T
                    c = "0" if t == 0 else f"v[{d}:{d+3}]"
                    r = kb + 16 * T + 4 * t
                    e(f"v_mfma_f32_16x16x32_bf16 v[{d}:{d+3}], v[{r}:{r+3}], v[{16+4*t}:{19+4*t}], {c}")
        t0, t1, al, nm = kb + 28, kb + 29, kb + 30, kb + 31
        e(f"v_max3_f32 v{t0}, v8, v9, v10")
        e(f"v_max3_f32 v{t1}, v12, v13, v14")
        e(f"v_max3_f32 v{t0}, v{t0}, v11, v5")
        e(f"v_max3_f32 v{t0}, v{t0}, v{t1}, v15")
        e(f"v_mov_b32 v{t1}, v{t0}")
        e(f"v_permlane32_swap_b32 v{t0}, v{t1}")
        e(f"v_max_f32 v{t0}, v{t0}, v{t1}")
        e(f"v_mov_b32 v{t1}, v{t0}")
        e(f"v_permlane16_swap_b32 v{t0}, v{t1}")
        e(f"v_max_f32 v{t0}, v{t0}, v{t1}")
        e(f"v_sub_f32 v{t1}, v5, v{t0}")
        e(f"v_mul_f32 v{nm}, s{NSC}, v{t0}")
        e(f"v_mul_f32 v{t1}, s{SC}, v{t1}")
        e(f"v_mov_b32 v5, v{t0}")
        e(f"v_exp_f32 v{al}, v{t1}")
        for i in range(8):
            e(f"v_fma_f32 v{8+i}, v{8+i}, s{SC}, v{nm}")
        for i in range(8):
            e(f"v_exp_f32 v{8+i}, v{8+i}")
        for k in range(16):
            e(f"v_pk_mul_f32 v[{32+2*k}:{33+2*k}], v[{32+2*k}:{33+2*k}], v[{al}:{al+1}] op_sel_hi:[1,0]")
        e(f"v_mul_f32 v6, v6, v{al}")
        e(f"v_add_f32 v{t0}, v8, v9")
        e(f"v_add_f32 v{t1}, v10, v11")
        e(f"v_add_f32 v6, v6, v12")
        e(f"v_add_f32 v{t0}, v{t0}, v13")
        e(f"v_add_f32 v{t1}, v{t1}, v14")
        e(f"v_add_f32 v6, v6, v15")
        e(f"v_add_f32 v{t0}, v{t0}, v{t1}")
        e("v_cvt_pk_bf16_f32 v8, v8, v9")
        e("v_cvt_pk_bf16_f32 v9, v10, v11")
        e("v_cvt_pk_bf16_f32 v10, v12, v13")
        e("v_cvt_pk_bf16_f32 v11, v14, v15")
        e(f"v_add_f32 v6, v6, v{t0}")
        if H1 < 8:
            e(f"s_cmp_eq_u32 s{VP}, 0")
            e(f"s_cbranch_scc1 L_st_novb{slot}")
            if gl:
                assert G == 4
                e(f"s_waitcnt vmcnt({W-G})")
                gclaim()
                groups(vload, vs, H1, 8, W, first=True)
            elif pool and not pm:
                assert G == 4
                e(f"s_waitcnt vmcnt({W-G})")
                e(f"s_cmp_eq_u32 s{MODE}, 0")
                e(f"s_cbranch_scc1 L_st_nog{slot}")
                gclaim()
                e(f"L_st_nog{slot}:")
                groups(vload, vs, H1, 8, W, first=True)
            else:
                groups(vload, vs, H1, 8, W)
            e(f"L_st_novb{slot}:")
        e(f"s_cmp_lg_u32 s{REM}, 1")
        e(f"s_cbranch_scc1 L_st_notlast{slot}")
        e("s_waitcnt vmcnt(0)")
        e(f"L_st_notlast{slot}:")
        def perms(jj):
            sel = f"s{PL}" if (jj & 1) == 0 else f"s{PH}"
            for q in range(4):
                e(f"v_perm_b32 v{kb+4*jj+q}, v{vb+4*(2*q+1)+(jj>>1)}, v{vb+4*(2*q)+(jj>>1)}, {sel}")
        def pv(jj):
            d = 32 + 4 * jj
            e(f"v_mfma_f32_16x16x32_bf16 v[{d}:{d+3}], v[{kb+4*jj}:{kb+4*jj+3}], v[8:11], v[{d}:{d+3}]")
        perms(0)
        for jj in range(8):
            if jj + 1 < 8:
                perms(jj + 1)
            pv(jj)
        e(f"s_sub_u32 s{REM}, s{REM}, 1")
        e(f"s_cmp_eq_u32 s{REM}, 0")
        e("s_cbranch_scc1 L_st_done")
        if gl:
            e(f"s_cmp_lg_u32 s{REM}, 2")
            e(f"s_cbranch_scc1 L_st_nok{slot}")
            e(f"s_waitcnt vmcnt({min(W-G, 4)})")
            if slot == 0:
                e(f"s_cmp_lg_u32 s{VP}, 0")
                e("s_cbranch_scc1 L_st_claim0")
                e("s_waitcnt vmcnt(0)")
                e("L_st_claim0:")
            e(f"v_readfirstlane_b32 s{OFF[slot]}, v7")
            e(f"s_mov_b32 s{VP}, 0")
            if gl == 'dbg':
                e(f"s_add_u32 s{OFF[slot]}, s{OFF[slot]}, {384*8192}")
            e(f"s_cmp_ge_u32 s{OFF[slot]}, s{LIM}")
            e(f"s_cbranch_scc1 L_st_nok{slot}")
        elif pool:
            e(f"s_mov_b32 s{VP}, 0")
            e(f"s_cmp_lg_u32 s{REM}, 2")
            e(f"s_cbranch_scc1 L_st_nok{slot}")
            if pm:
                e("s_cmp_ge_u32 s3, 4")
                e(f"s_cbranch_scc1 L_st_nok{slot}")
            e(f"s_waitcnt vmcnt({W-G if pm else min(W-G, 4)})")
            e(f"s_cmp_lg_u32 s{MODE}, 0")
            e(f"s_cbranch_scc1 L_st_g{slot}")
            e("s_mov_b64 exec, 1")
            e(f"ds_add_rtn_u32 v7, v3, v4 offset:{L_CNT}")
            e("s_mov_b64 exec, -1")
            e("s_waitcnt lgkmcnt(0)")
            e(f"v_readfirstlane_b32 s{CL}, v7")
            e(f"s_lshl1_add_u32 s{OFF[slot]}, s{CL}, s{WB}")
            e(f"s_cmp_ge_u32 s{OFF[slot]}, s{LIM}")
            e(f"s_cbranch_scc1 L_st_sw{slot}")
            if pm:
                e(f"s_add_u32 s{CL}, s{OFF[slot]}, {SWN*8192}")
                e(f"s_cmp_ge_u32 s{CL}, s{LIM}")
                e(f"s_cselect_b32 s{MODE}, 1, 0")
            e(f"L_st_k{slot}:")
        else:
            e(f"s_mov_b32 s{VP}, 0")
            e(f"s_cmp_lg_u32 s{REM}, 2")
            e(f"s_cbranch_scc1 L_st_nok{slot}")
            if HQ:
                e("s_cmp_ge_u32 s3, 4")
                e(f"s_cbranch_scc1 L_st_peek{slot}")
                e(f"L_st_unpeek{slot}:")
            e(f"s_cmp_ge_u32 s{OFF[vs]}, s{LIME}")
            e(f"s_cbranch_scc1 L_st_claim{slot}")
            e(f"s_waitcnt vmcnt({W-G})")
            e(f"L_st_claim{slot}:")
            e("s_mov_b64 exec, 1")
            e(f"ds_add_rtn_u32 v7, v3, v4 offset:{L_CNT}")
            e("s_mov_b64 exec, -1")
            e("s_waitcnt lgkmcnt(0)")
            e(f"v_readfirstlane_b32 s{CL}, v7")
            e(f"s_lshl_b32 s{OFF[slot]}, s{CL}, {5 if ilv else 1}")
            e(f"s_cmp_ge_u32 s{OFF[slot]}, s{LIME}")
            e(f"s_cbranch_scc1 L_st_end{slot}")
        groups(kload, slot, 0, 8, W, first=True)
        e(f"s_mov_b32 s{VP}, 1")
        e(f"s_mov_b32 s{REM}, 3")
        e(f"L_st_nok{slot}:")
        if trace:
            e("s_memrealtime s[60:61]")
            e("s_mov_b32 m0, s31")
            e("s_add_u32 s31, s31, 1")
            e("s_waitcnt lgkmcnt(0)")
            e("v_writelane_b32 v0, s60, m0")
    e("s_branch L_st_loop")
    for slot in range(3):
        e(f"L_st_nova{slot}:")
        e("s_waitcnt vmcnt(32)")
        e(f"s_cmp_eq_u32 s{REM}, 3")
        e(f"s_cbranch_scc1 L_st_go{slot}")
        e("s_waitcnt vmcnt(16)")
        e(f"s_cmp_eq_u32 s{REM}, 2")
        e(f"s_cbranch_scc1 L_st_go{slot}")
        e(f"s_waitcnt vmcnt({4 if order == 'k4v4' else 8})")
        e(f"s_branch L_st_go{slot}")
        if gl:
            continue
        if pm:
            e(f"L_st_sw{slot}:")
            e(f"s_mov_b32 s{MODE}, 1")
            gclaim()
            e("s_waitcnt vmcnt(0)")
            e(f"L_st_g{slot}:")
            if W - G > 8:
                e("s_waitcnt vmcnt(8)")
            e(f"v_readfirstlane_b32 s{CL}, v7")
            e(f"s_cmp_ge_u32 s{CL}, {P}")
            e(f"s_cbranch_scc1 L_st_nok{slot}")
            e(f"s_lshr_b32 s4, s{CL}, 4")
            if rot:
                e(f"s_add_u32 s4, s4, s{CL}")
                e(f"s_and_b32 s4, s4, {Pw-1}")
            e(f"s_add_u32 s4, s4, {NH-Pw}")
            e(f"s_bitcmp1_b32 s{CL}, 0")
            e(f"s_cselect_b32 s5, {NL}, 0")
            e("s_add_u32 s4, s4, s5")
            e(f"s_bfe_u32 s5, s{CL}, 0x30001")
            e("s_lshl_b32 s5, s5, 7")
            e("s_add_u32 s4, s4, s5")
            e(f"s_lshl_b32 s{OFF[slot]}, s4, 13")
            e(f"s_branch L_st_k{slot}")
            continue
        if pool:
            e(f"L_st_sw{slot}:")
            e(f"s_mov_b32 s{MODE}, 1")
            e(f"s_mov_b32 s{LIM}, {1<<23}")
            gclaim()
            e("s_waitcnt vmcnt(0)")
            e(f"L_st_g{slot}:")
            e(f"v_readfirstlane_b32 s{OFF[slot]}, v7")
            e(f"s_cmp_lt_u32 s{OFF[slot]}, s{LIM}")
            e(f"s_cbranch_scc1 L_st_k{slot}")
            e(f"s_branch L_st_nok{slot}")
            continue
        if HQ:
            e(f"L_st_peek{slot}:")
            if HQ >= 64:
                e(f"s_branch L_st_nok{slot}")
            else:
                e("s_mov_b64 exec, 1")
                e(f"ds_read_b32 v7, v3 offset:{L_CNT}")
                e("s_mov_b64 exec, -1")
                e("s_waitcnt lgkmcnt(0)")
                e(f"v_readfirstlane_b32 s{CL}, v7")
                e(f"s_lshl1_add_u32 s{CL}, s{CL}, {HQ*8192}")
                e(f"s_cmp_ge_u32 s{CL}, s{LIM}")
                e(f"s_cbranch_scc1 L_st_nok{slot}")
                e(f"s_branch L_st_unpeek{slot}")
        e(f"L_st_end{slot}:")
        e(f"s_cmp_ge_u32 s{OFF[slot]}, s{LIM}")
        e(f"s_cbranch_scc1 L_st_nok{slot}")
        for i in range(8):
            kload(slot, i)
        for i in range(8):
            vload(slot, i)
        e(f"s_mov_b32 s{REM}, 3")
        e(f"s_branch L_st_nok{slot}")

    if not gl and not v3:
        e("L_st_nowork:")
        for r in range(32, 64):
            e(f"v_mov_b32 v{r}, 0")
    e("L_st_done:")
    stamp(4)
    if trace:
        e("v_mov_b32 v8, v0")
        e("v_mbcnt_lo_u32_b32 v0, -1, 0")
        e("v_mbcnt_hi_u32_b32 v0, -1, v0")
        e("v_writelane_b32 v8, s31, 63")
        e("s_lshl_b32 s4, s2, 3")
        e("s_add_u32 s4, s4, s3")
        e("s_lshl_b32 s4, s4, 8")
        e(f"s_add_u32 s4, s4, {PROFB+0x20000}")
        e("v_lshlrev_b32 v9, 2, v0")
        e(f"buffer_store_dword v8, v9, {srd(WS)}, s4 offen")
    e("v_mov_b32 v7, v6")
    e("v_permlane32_swap_b32 v6, v7")
    e("v_add_f32 v6, v6, v7")
    e("v_mov_b32 v7, v6")
    e("v_permlane16_swap_b32 v6, v7")
    e("v_add_f32 v6, v6, v7")
    e(f"v_mul_f32 v5, s{SC}, v5")
    e("v_and_b32 v1, 15, v0")
    e("v_lshrrev_b32 v2, 4, v0")
    e("v_lshl_add_u32 v2, v1, 2, v2")
    e("v_lshlrev_b32 v2, 4, v2")
    e("s_lshl_b32 s4, s3, 11")
    e("v_add_u32 v2, s4, v2")
    e("s_lshl_b32 s4, s3, 2")
    e(f"v_lshl_add_u32 v1, v1, {4 if v3 else 5}, s4")
    e("s_mov_b32 exec_lo, 0x000f000f")
    e("s_mov_b32 exec_hi, 0x000f000f")
    for jj in range(8):
        e(f"ds_write_b128 v2, v[{32+4*jj}:{35+4*jj}] offset:{L_ACC+256*jj}")
    e("s_mov_b64 exec, 15")
    e(f"ds_write_b32 v1, v5 offset:{L_MC}")
    e(f"ds_write_b32 v1, v6 offset:{L_L}")
    e("s_mov_b64 exec, -1")
    if not v3:
        e("s_cmp_ge_u32 s3, 4")
        e("s_cbranch_scc1 L_tail")
    e("s_waitcnt lgkmcnt(0)")
    e("s_barrier")
    stamp(5)
    prof_out()
    e("s_endpgm")

    def w0_block():
        e("L_w0:")
        set_srd(WO, 80, 4096 * 512 * 2)
        e(f"s_load_dword s{EP}, s[{WS}:{WS+1}], 4")
        e("s_setprio 3")
        e("s_and_b32 s4, s2, 7")
        e("s_lshl_b32 s4, s4, 3")
        e("s_lshr_b32 s5, s2, 5")
        e("s_add_u32 s4, s4, s5")
        e("s_lshl_b32 s4, s4, 16")
        e("s_bfe_u32 s5, s2, 0x20003")
        e("s_lshl_b32 s5, s5, 8")
        e("s_add_u32 s4, s4, s5")
        e("v_lshrrev_b32 v64, 4, v0")
        e("v_lshlrev_b32 v64, 13, v64")
        e("v_and_b32 v65, 15, v0")
        e("v_lshl_add_u32 v64, v65, 4, v64")
        e("v_lshlrev_b32 v122, 4, v0")
        bar0()
        if st:
            e("s_mov_b32 s31, 0")
            e("s_barrier")
        stamp(0)
        for s in range(2):
            for h in range(2):
                if s or h:
                    e(f"s_add_u32 s5, s4, {s*32768+h*4096}")
                so = "s5" if (s or h) else "s4"
                for i4 in range(4):
                    r = 128 + 4 * (8 * s + 4 * h + i4)
                    e(f"buffer_load_dwordx4 v[{r}:{r+3}], v64, {srd(WO)}, {so} offen offset:{1024*i4} {opol}")
        e("s_bfe_u32 s93, s2, 0x30003")
        e("s_lshl_b32 s93, s93, 12")
        e("s_bfe_u32 s5, s2, 0x10006")
        e("s_lshl_b32 s5, s5, 11")
        e("s_add_u32 s93, s93, s5")
        e(f"s_add_u32 s93, s93, {QG}")
        e("v_lshlrev_b32 v72, 3, v0")
        e("v_mov_b32 v73, 1")
        e("s_waitcnt lgkmcnt(0)")
        mk_tag(EP)
        for s in range(2):
            e(f"s_waitcnt vmcnt({8-8*s})")
            for jj in range(8):
                sel = f"s{PL}" if (jj & 1) == 0 else f"s{PH}"
                for q in range(4):
                    r0 = 128 + 4 * (8 * s + 2 * q) + (jj >> 1)
                    e(f"v_perm_b32 v{192+4*(8*s+jj)+q}, v{r0+4}, v{r0}, {sel}")
            for jj in range(8):
                r = 192 + 4 * (8 * s + jj)
                e(f"ds_write_b128 v122, v[{r}:{r+3}] offset:{L_WO+1024*(8*s+jj)}")
        stamp(6)
        if 'q' in dbg:
            for r in (64, 66, 68, 70):
                e(f"v_mov_b32 v{r}, 0")
        else:
            poll([(f"buffer_load_dwordx4 v[64:67], v122, {srd(WS)}, s93 offen {ppol}", (65, 67)),
              (f"buffer_load_dwordx4 v[68:71], v122, {srd(WS)}, s93 offen offset:1024 {ppol}", (69, 71))], "L_qpoll", qsleep)
        e(f"v_add_u32 v72, {L_Q}, v72")
        e("ds_write2_b32 v72, v64, v66 offset0:0 offset1:1")
        e("ds_write2_b32 v72, v68, v70 offset0:128 offset1:129")
        e("v_mov_b32 v72, 0")
        e("s_waitcnt lgkmcnt(0)")
        e(f"ds_write_b32 v72, v73 offset:{L_CNT+8}")
        e("s_branch L_stream")

    if not v3:
        w0_block()

    def wo_duty():
        e("s_and_b32 s4, s2, 7")
        e("s_lshl_b32 s4, s4, 3")
        e("s_lshr_b32 s5, s2, 5")
        e("s_add_u32 s4, s4, s5")
        e("s_lshl_b32 s4, s4, 16")
        e("s_bfe_u32 s5, s2, 0x20003")
        e("s_lshl_b32 s5, s5, 8")
        e("s_add_u32 s4, s4, s5")
        e("v_lshrrev_b32 v64, 4, v0")
        e("v_lshlrev_b32 v64, 13, v64")
        e("v_and_b32 v65, 15, v0")
        e("v_lshl_add_u32 v64, v65, 4, v64")
        for s in range(2):
            for h in range(2):
                if s or h:
                    e(f"s_add_u32 s5, s4, {s*32768+h*4096}")
                so = "s5" if (s or h) else "s4"
                for i4 in range(4):
                    r = 128 + 4 * (8 * s + 4 * h + i4)
                    e(f"buffer_load_dwordx4 v[{r}:{r+3}], v64, {srd(WO)}, {so} offen offset:{1024*i4} {opol}")
        for s in range(2):
            e(f"s_waitcnt vmcnt({8-8*s})")
            for jj in range(8):
                sel = f"s{PL}" if (jj & 1) == 0 else f"s{PH}"
                for q in range(4):
                    r0 = 128 + 4 * (8 * s + 2 * q) + (jj >> 1)
                    e(f"v_perm_b32 v{192+4*(8*s+jj)+q}, v{r0+4}, v{r0}, {sel}")

    def q_duty(lab):
        e(f"s_cmp_lg_u32 s{HW}, 0")
        e(f"s_cbranch_scc1 {lab}_skip")
        e("s_bfe_u32 s93, s2, 0x30003")
        e("s_lshl_b32 s93, s93, 12")
        e("s_bfe_u32 s5, s2, 0x10006")
        e("s_lshl_b32 s5, s5, 11")
        e("s_add_u32 s93, s93, s5")
        e(f"s_add_u32 s93, s93, {QG}")
        e("v_lshlrev_b32 v112, 3, v0")
        e(f"v_add_u32 v112, {L_Q}, v112")
        e("v_mov_b32 v113, 1")
        e("v_mov_b32 v114, 0")
        e("v_lshlrev_b32 v122, 4, v0")
        e("s_waitcnt lgkmcnt(0)")
        mk_tag(EP)
        poll([(f"buffer_load_dwordx4 v[104:107], v122, {srd(WS)}, s93 offen {ppol}", (105, 107)),
              (f"buffer_load_dwordx4 v[108:111], v122, {srd(WS)}, s93 offen offset:1024 {ppol}", (109, 111))], lab, qsleep)
        e("ds_write2_b32 v112, v104, v106 offset0:0 offset1:1")
        e("ds_write2_b32 v112, v108, v110 offset0:128 offset1:129")
        e("s_waitcnt lgkmcnt(0)")
        e(f"ds_write_b32 v114, v113 offset:{L_CNT+8}")
        stamp(2)
        e(f"{lab}_skip:")

    e("L_helper:")
    e(f"s_sub_u32 s{HW}, s3, 4")
    if v3:
        if qb:
            assert sb == 0
            e("s_cmp_lt_u32 s2, 64")
            e("s_cbranch_scc1 L_hb_skip")
        e("s_barrier")
        if qb:
            e("L_hb_skip:")
        e(f"s_load_dword s{EP}, s[{WS}:{WS+1}], 4")
        set_srd(WO, 80, 4096 * 512 * 2)
    elif st:
        e("s_mov_b32 s31, 0")
        e(f"s_cmp_lt_u32 s2, {stq}")
        e("s_cbranch_scc1 L_hb_skip")
        e("s_barrier")
        e("L_hb_skip:")
    elif not eb:
        e("v_and_b32 v100, 3, v0")
        e("v_lshlrev_b32 v100, 2, v100")
        e("v_mov_b32 v101, 0")
        e(f"ds_write_b32 v100, v101 offset:{L_CNT}")
    set_srd(X, 72, 2048)
    e("s_setprio 3")
    e("v_lshrrev_b32 v1, 3, v0")
    e("v_and_b32 v14, 7, v0")
    if 'r' in dbg:
        e("s_branch L_role_none")
    e("s_cmp_lt_u32 s2, 64")
    e("s_cbranch_scc1 L_role_q")
    e("s_cmp_lt_u32 s2, 92")
    e("s_cbranch_scc1 L_role_h")
    e("s_cmp_lt_u32 s2, 96")
    e("s_cbranch_scc1 L_role_none")
    e("s_cmp_lt_u32 s2, 128")
    e("s_cbranch_scc1 L_role_g")
    e("s_cmp_ge_u32 s2, 160")
    e("s_cbranch_scc1 L_role_none")
    e(f"s_cmp_eq_u32 s3, {6 if v3 else 7}")
    e("s_cbranch_scc1 L_role_f")
    e("L_role_none:")
    e("s_waitcnt lgkmcnt(0)")
    bar0()
    stamp(0)
    if v3:
        e("L_joinq:")
        e("s_mov_b64 exec, -1")
        q_duty("L_qp0")

    e("L_join:")
    e("s_mov_b64 exec, -1")
    if v3:
        stamp(1)
        e(f"s_cmp_lg_u32 s{HW}, 3")
        e("s_cbranch_scc1 L_wo_done")
        wo_duty()
        e("L_wo_done:")
    e("s_bfe_u32 s6, s2, 0x30003")
    e("s_bfe_u32 s7, s2, 0x10006")
    e("s_and_b32 s5, s2, 7")
    e("s_lshl_b32 s5, s5, 1")
    e("s_lshr_b32 s4, s2, 7")
    e("s_add_u32 s5, s5, s4")
    e("s_lshl_b32 s4, s6, 1")
    e("s_add_u32 s4, s4, s7")
    e("s_lshl_b32 s4, s4, 4")
    e("s_add_u32 s4, s4, s5")
    e("s_lshl_b32 s4, s4, 2")
    e(f"s_add_u32 s4, s4, s{HW}")
    e("s_lshl_b32 s4, s4, 10")
    e(f"s_add_u32 s72, s4, {PG}")
    e("s_lshl_b32 s4, s6, 2")
    e(f"s_add_u32 s4, s4, s{HW}")
    e("s_lshl_b32 s4, s4, 1")
    e("s_add_u32 s4, s4, s7")
    e("s_lshl_b32 s4, s4, 4")
    e("s_add_u32 s4, s4, s5")
    e("s_lshl_b32 s4, s4, 4")
    e(f"s_add_u32 s73, s4, {MLG}")
    e("s_and_b32 s93, s2, 7")
    e(f"s_lshr_b32 s5, s{HW}, 1")
    e(f"s_and_b32 s38, s{HW}, 1")
    e("s_lshl_b32 s38, s38, 3")
    e("s_lshr_b32 s94, s2, 5")
    e("s_lshl_b32 s4, s93, 1")
    e("s_add_u32 s4, s4, s5")
    e("s_lshl_b32 s4, s4, 4")
    e("s_add_u32 s4, s4, s38")
    e("s_lshl_b32 s4, s4, 3")
    e("s_add_u32 s4, s4, s94")
    e("s_lshl_b32 s4, s4, 9")
    e(f"s_add_u32 s98, s4, {PG}")
    e("s_add_u32 s99, s98, 0x2000")
    e("s_add_u32 s100, s98, 0x4000")
    e("s_add_u32 s101, s98, 0x6000")
    e("s_lshl_b32 s4, s93, 3")
    e("s_add_u32 s4, s4, s94")
    e("s_and_b32 s6, s4, 0xfffffffe")
    e("s_add_u32 s6, s6, s5")
    e("s_lshl_b32 s6, s6, 8")
    e(f"s_add_u32 s74, s6, {MLG}")
    e("s_lshl_b32 s4, s4, 8")
    e("s_bfe_u32 s5, s2, 0x20003")
    e("s_lshl_b32 s5, s5, 17")
    e("s_add_u32 s4, s4, s5")
    e(f"s_add_u32 s75, s4, {SG}")
    e("s_add_u32 s76, s75, 0x4000")
    e("s_and_b32 s4, s2, 31")
    e("s_lshl_b32 s95, s4, 5")
    e("s_lshl_b32 s4, s4, 14")
    e(f"s_lshl_b32 s5, s{HW}, 12")
    e("s_add_u32 s4, s4, s5")
    e(f"s_add_u32 s77, s4, {SG}")
    e("s_branch L_tail" if v3 else "s_branch L_stream")

    XF, PK, XS = 32, 48, 16
    for kind in "qh":
        e(f"L_role_{kind}:")
        if kind == "q":
            stride = 8192
            set_srd(WR, 78, 512 * 4096 * 2)
            e("s_mov_b32 s96, s2")
            if gl == 'ws' or pool:
                if one:
                    e("s_and_b32 s5, s2, 7")
                    e(f"s_or_b32 s5, s5, s{HW}")
                    e("s_cmp_lg_u32 s5, 0")
                    e("s_cbranch_scc1 L_cinit_skip")
                e("s_lshr_b32 s5, s2, 3")
                e(f"s_mul_i32 s5, s5, {cstr}")
                e(f"s_add_u32 s5, s5, {CG}")
                e(f"v_mul_u32_u24 v98, {8*cstr}, v0")
                e(f"v_mov_b32 v99, {0 if pm else (1024-P)*8192 if pool else 384*8192}")
                e("s_mov_b64 exec, 3")
                e(f"buffer_store_dword v99, v98, {srd(WS)}, s5 offen {spol}")
                e("s_mov_b64 exec, -1")
                if one:
                    e("L_cinit_skip:")
            e("v_lshlrev_b32 v98, 17, v1")
            e(f"s_lshl_b32 s4, s{HW}, 20")
        else:
            stride = 3584
            set_srd(WR, 84, 512 * 1792 * 2)
            set_srd(BR, 86, 1792 * 2)
            e("s_sub_u32 s96, s2, 64")
            e(f"v_mul_u32_u24 v98, {16*stride}, v1")
            e(f"s_mul_i32 s4, s{HW}, {128*stride}")
        e("v_lshl_add_u32 v98, v14, 4, v98")
        e("s_lshl_b32 s5, s96, 7")
        e("s_add_u32 s4, s4, s5")
        e("v_lshlrev_b32 v15, 5, v0")
        if kind == "h":
            e("v_and_b32 v99, 15, v0")
            e("v_lshlrev_b32 v99, 3, v99")
            e(f"buffer_load_dwordx2 v[102:103], v99, {srd(BR)}, s5 offen {xpol}")
        e(f"buffer_load_dwordx4 v[2:5], v15, {srd(X)}, 0 offen {xpol}")
        e(f"buffer_load_dwordx4 v[6:9], v15, {srd(X)}, 0 offen offset:16 {xpol}")
        for i in range(16):
            e(f"buffer_load_dwordx4 v[{128+4*i}:{131+4*i}], v98, {srd(WR)}, s4 offen {wpol}")
            if i < 15:
                e(f"s_add_u32 s4, s4, {stride}")
        if not v3:
            e("s_waitcnt lgkmcnt(0)")
            e(f"s_load_dword s{EP}, s[{WS}:{WS+1}], 4")
        bar0()
        if (v3 and qb and kind == "q") or (st and (kind == "q" or stq > 64)):
            e("s_barrier")
        stamp(0)
        if v3 and kind == "h":
            q_duty("L_qp1")
        red_addr()
        e(f"s_lshl_b32 s4, s{HW}, 5")
        e("v_lshl_add_u32 v97, v1, 2, s4")
        e("v_lshrrev_b32 v125, 4, v0")
        e("v_and_b32 v126, 15, v0")
        e("v_lshlrev_b32 v126, 4, v126")
        e("s_waitcnt vmcnt(16)")
        for k in range(8):
            unpack(XF + 2 * k, 2 + k)
        ln_stats(XF, 60, 61, 64)
        norm_all(XF, 60, 61, PK)
        if kind == "h":
            for k in range(8):
                unpack(XF + 2 * k, PK + k)
            ln_stats(XF, 60, 61, 64)
            norm_all(XF, 60, 61, PK)
        for bb in range(2):
            for k in range(8):
                e(f"ds_bpermute_b32 v{XS+8*bb+k}, v97, v{PK+k} offset:{128*bb}")
            if bb == 0:
                e("s_waitcnt lgkmcnt(0)")
        mk_tag(EP)
        for k in range(8):
            wp = 64 + 8 * (k & 1)
            e(f"s_waitcnt vmcnt({14-2*k})" + (" lgkmcnt(0)" if k == 0 else ""))
            wperm(wp, 128 + 8 * k, 132 + 8 * k)
            dots(wp, XS + k, XS + 8 + k, k == 0)
        reduce_publish("L_joinq" if (v3 and kind == "q") else "L_join")
        if kind == "q":
            e("v_cvt_pk_bf16_f32 v64, v64, v65")
            e("v_cvt_pk_bf16_f32 v66, v66, v67")
            e(f"v_mov_b32 v65, s{TAG}")
            e(f"v_mov_b32 v67, s{TAG}")
            e("v_lshl_add_u32 v68, v125, 11, v126")
            e("s_lshr_b32 s4, s96, 3")
            e("s_lshl_b32 s4, s4, 12")
            e("s_and_b32 s5, s96, 7")
            e("s_lshl_b32 s5, s5, 8")
            e("s_add_u32 s4, s4, s5")
            e(f"s_add_u32 s4, s4, {QG}")
            e(f"buffer_store_dwordx4 v[64:67], v68, {srd(WS)}, s4 offen {spol}")
        else:
            e("v_cvt_pk_bf16_f32 v68, v64, v65")
            e("v_cvt_pk_bf16_f32 v69, v66, v67")
            unpack(64, 68); unpack(66, 69)
            unpack(68, 102); unpack(70, 103)
            e("v_pk_add_f32 v[64:65], v[64:65], v[68:69]")
            e("v_pk_add_f32 v[66:67], v[66:67], v[70:71]")
            e("v_cvt_pk_bf16_f32 v68, v64, v65")
            e("v_cvt_pk_bf16_f32 v69, v66, v67")
            unpack(64, 68); unpack(66, 69)
            k1 = -2.0 * math.sqrt(2.0 / math.pi) * math.log2(math.e)
            e(f"s_mov_b32 s4, {hx(f2u(k1*0.044715))}")
            e(f"v_mov_b32 v72, {hx(f2u(k1))}")
            for k in range(4):
                e(f"v_mul_f32 v{68+k}, v{64+k}, v{64+k}")
            for k in range(4):
                e(f"v_fma_f32 v{68+k}, v{68+k}, s4, v72")
            for k in range(4):
                e(f"v_mul_f32 v{68+k}, v{68+k}, v{64+k}")
            for k in range(4):
                e(f"v_exp_f32 v{68+k}, v{68+k}")
            for k in range(4):
                e(f"v_add_f32 v{68+k}, 1.0, v{68+k}")
            for k in range(4):
                e(f"v_rcp_f32 v{68+k}, v{68+k}")
            for k in range(4):
                e(f"v_mul_f32 v{64+k}, v{64+k}, v{68+k}")
            e("v_cvt_pk_bf16_f32 v64, v64, v65")
            e("v_cvt_pk_bf16_f32 v66, v66, v67")
            e(f"v_mov_b32 v65, s{TAG}")
            e(f"v_mov_b32 v67, s{TAG}")
            e("s_movk_i32 s4, 7168")
            e("v_mad_u32_u24 v68, v125, s4, v126")
            e("s_lshl_b32 s4, s96, 8")
            e(f"s_add_u32 s4, s4, {HG}")
            e(f"buffer_store_dwordx4 v[64:67], v68, {srd(WS)}, s4 offen {spol}")
        e("s_branch L_joinq" if (v3 and kind == "q") else "s_branch L_join")

    e("L_role_g:")
    set_srd(WR, 88, 1792 * 512 * 2)
    e("s_and_b32 s96, s2, 7")
    e("s_bfe_u32 s97, s2, 0x20003")
    e("s_lshl_b32 s6, s97, 2")
    e(f"s_add_u32 s6, s6, s{HW}")
    e("s_mul_i32 s6, s6, 112")
    e("s_lshl_b32 s4, s6, 10")
    e("s_lshl_b32 s5, s96, 7")
    e("s_add_u32 s4, s4, s5")
    e(f"v_mul_u32_u24 v98, {14*1024}, v1")
    e("v_lshl_add_u32 v98, v14, 4, v98")
    for i in range(14):
        e(f"buffer_load_dwordx4 v[{128+4*i}:{131+4*i}], v98, {srd(WR)}, s4 offen offset:{1024*(i&3)} {wpol}")
        if (i & 3) == 3:
            e("s_add_u32 s4, s4, 4096")
    if not v3:
        e("s_waitcnt lgkmcnt(0)")
        e(f"s_load_dword s{EP}, s[{WS}:{WS+1}], 4")
    bar0()
    stamp(0)
    if v3:
        q_duty("L_qp2")
    red_addr()
    e("v_min_u32 v99, 6, v14")
    e("v_mad_u32_u24 v99, v1, 7, v99")
    e("v_lshlrev_b32 v99, 3, v99")
    e("s_lshl_b32 s6, s6, 2")
    e(f"s_add_u32 s93, s6, {HG}")
    e("s_add_u32 s94, s93, 7168")
    e("v_lshlrev_b32 v97, 5, v1")
    e("s_waitcnt lgkmcnt(0)")
    mk_tag(EP)
    poll([(f"buffer_load_dwordx2 v[10:11], v99, {srd(WS)}, s93 offen {ppol}", (11,)),
          (f"buffer_load_dwordx2 v[12:13], v99, {srd(WS)}, s94 offen {ppol}", (13,))], "L_hpoll", 8)
    for bb in range(2):
        for k in range(7):
            e(f"ds_bpermute_b32 v{XS+8*bb+k}, v97, v{10+2*bb} offset:{4*k}")
    e("s_waitcnt lgkmcnt(0)")
    for k in range(7):
        wp = 64 + 8 * (k & 1)
        wperm(wp, 128 + 8 * k, 132 + 8 * k)
        dots(wp, XS + k, XS + 8 + k, k == 0)
    reduce_publish("L_join")
    e("v_mov_b32 v68, v66")
    e("v_mov_b32 v70, v67")
    e("v_mov_b32 v66, v65")
    e(f"v_mov_b32 v65, s{TAG}")
    e(f"v_mov_b32 v67, s{TAG}")
    e(f"v_mov_b32 v69, s{TAG}")
    e(f"v_mov_b32 v71, s{TAG}")
    e("v_bfe_u32 v72, v0, 2, 2")
    e("v_lshlrev_b32 v72, 10, v72")
    e("v_lshrrev_b32 v73, 4, v0")
    e("v_lshl_add_u32 v72, v73, 7, v72")
    e("v_and_b32 v73, 3, v0")
    e("v_lshl_add_u32 v72, v73, 5, v72")
    e("s_lshl_b32 s4, s96, 12")
    e("s_lshl_b32 s5, s97, 8")
    e("s_add_u32 s4, s4, s5")
    e(f"s_add_u32 s4, s4, {MG}")
    e(f"buffer_store_dwordx4 v[64:67], v72, {srd(WS)}, s4 offen {spol}")
    e(f"buffer_store_dwordx4 v[68:71], v72, {srd(WS)}, s4 offen offset:16 {spol}")
    e("s_branch L_join")

    e("L_role_f:")
    set_srd(BR, 90, 1024)
    e("s_and_b32 s96, s2, 31")
    e("s_lshl_b32 s4, s96, 5")
    e("v_lshlrev_b32 v98, 2, v14")
    e("v_bfe_u32 v99, v0, 3, 1")
    e("v_lshl_add_u32 v97, v99, 10, v98")
    e(f"buffer_load_dword v10, v98, {srd(BR)}, s4 offen {xpol}")
    e(f"buffer_load_dword v11, v97, {srd(X)}, s4 offen {xpol}")
    if not v3:
        e("s_waitcnt lgkmcnt(0)")
        e(f"s_load_dword s{EP}, s[{WS}:{WS+1}], 4")
    bar0()
    stamp(0)
    e("v_lshlrev_b32 v122, 4, v0")
    e("s_lshl_b32 s93, s96, 10")
    e(f"s_add_u32 s93, s93, {MG}")
    e("v_lshlrev_b32 v98, 1, v98")
    e("v_lshl_add_u32 v98, v99, 6, v98")
    e("v_lshrrev_b32 v99, 5, v0")
    e("v_lshl_add_u32 v98, v99, 2, v98")
    e("v_lshlrev_b32 v99, 4, v99")
    e("v_sub_u32 v99, 16, v99")
    e("s_waitcnt lgkmcnt(0)")
    mk_tag(EP)
    poll([(f"buffer_load_dwordx4 v[16:19], v122, {srd(WS)}, s93 offen {ppol}", (17, 19))], "L_gpoll", gsleep)
    e("v_permlane32_swap_b32 v16, v18")
    e("v_add_f32 v16, v16, v18")
    e("v_mov_b32 v18, v16")
    e("v_permlane16_swap_b32 v16, v18")
    e("v_add_f32 v16, v16, v18")
    e("v_lshlrev_b32 v10, v99, v10")
    e("v_lshlrev_b32 v11, v99, v11")
    e("v_and_b32 v10, 0xffff0000, v10")
    e("v_and_b32 v11, 0xffff0000, v11")
    bfr(16)
    e("v_add_f32 v16, v16, v10")
    bfr(16)
    e(f"v_mul_f32 v18, {hx(f2u(-math.log2(math.e)))}, v16")
    e("v_exp_f32 v18, v18")
    e("v_add_f32 v18, 1.0, v18")
    e("v_rcp_f32 v18, v18")
    e("v_mul_f32 v16, v16, v18")
    bfr(16)
    e(f"ds_write_b32 v98, v16 offset:{L_G}")
    e(f"ds_write_b32 v98, v11 offset:{L_X}")
    e("s_branch L_join")

    e("L_tail:")
    e("s_setprio 3")
    e("v_and_b32 v12, 3, v0")
    e("v_lshlrev_b32 v12, 9, v12")
    e("v_lshrrev_b32 v9, 4, v0")
    e("v_lshl_add_u32 v12, v9, 4, v12")
    e("v_bfe_u32 v3, v0, 2, 2")
    e("v_lshl_add_u32 v12, v3, 2, v12")
    e(f"s_lshl_b32 s4, s{HW}, 6")
    e("v_add_u32 v12, s4, v12")
    e(f"s_lshl_b32 s4, s{HW}, {4 if v3 else 5}")
    e("v_mov_b32 v3, s4")
    e("v_lshlrev_b32 v122, 4, v0")
    e("v_mov_b32 v101, 0")
    e("v_lshrrev_b32 v13, 5, v0")
    e("v_and_b32 v7, 31, v0")
    e("v_lshlrev_b32 v4, 4, v7")
    e("v_lshl_add_u32 v4, v13, 12, v4")
    e("v_and_b32 v8, 15, v0")
    e("v_add3_u32 v14, v8, v13, s38")
    e("v_and_b32 v14, 15, v14")
    e("v_lshlrev_b32 v14, 4, v14")
    e("v_lshl_add_u32 v15, v7, 1, v13")
    e("v_lshlrev_b32 v15, 2, v15")
    e(f"s_lshl_b32 s4, s{HW}, 8")
    e("v_add_u32 v15, s4, v15")
    e("v_and_b32 v7, 1, v0")
    e("v_lshlrev_b32 v7, 9, v7")
    e("v_lshl_add_u32 v7, v9, 5, v7")
    e("v_lshlrev_b32 v10, 15, v9")
    e("v_lshl_add_u32 v10, v8, 4, v10")
    e("v_lshl_add_u32 v11, v13, 4, v8")
    e("v_lshlrev_b32 v11, 2, v11")
    e(f"s_lshl_b32 s4, s{HW}, 7")
    e("v_add_u32 v11, s4, v11")
    e("s_waitcnt lgkmcnt(0)")
    mk_tag(EP)
    e(f"v_mov_b32 v65, s{TAG}")
    e(f"v_mov_b32 v67, s{TAG}")
    e(f"v_mov_b32 v69, s{TAG}")
    e(f"v_mov_b32 v71, s{TAG}")
    e("s_barrier")
    NS = 4 if v3 else 8
    e(f"ds_read_b128 v[16:19], v3 offset:{L_MC}")
    if not v3:
        e(f"ds_read_b128 v[20:23], v3 offset:{L_MC+16}")
    e(f"ds_read_b128 v[24:27], v3 offset:{L_L}")
    if not v3:
        e(f"ds_read_b128 v[28:31], v3 offset:{L_L+16}")
    for sw in range(NS):
        e(f"ds_read2st64_b32 v[{32+2*sw}:{33+2*sw}], v12 offset0:{8*sw} offset1:{8*sw+1}")
    e(f"s_waitcnt lgkmcnt({5 if v3 else 10})")
    e("v_max3_f32 v68, v16, v17, v18")
    if v3:
        e("v_max_f32 v68, v68, v19")
    else:
        e("v_max3_f32 v70, v19, v20, v21")
        e("v_max3_f32 v68, v68, v22, v23")
        e("v_max_f32 v68, v68, v70")
    for k in range(NS):
        e(f"v_sub_f32 v{16+k}, v{16+k}, v68")
    for k in range(NS):
        e(f"v_exp_f32 v{16+k}, v{16+k}")
    e("s_waitcnt lgkmcnt(0)")
    e("v_mul_f32 v64, v16, v32")
    e("v_mul_f32 v66, v16, v33")
    e("v_mul_f32 v70, v16, v24")
    for k in range(1, NS):
        e(f"v_fmac_f32 v64, v{16+k}, v{32+2*k}")
        e(f"v_fmac_f32 v66, v{16+k}, v{33+2*k}")
        e(f"v_fmac_f32 v70, v{16+k}, v{24+k}")
    e(f"buffer_store_dwordx4 v[64:67], v122, {srd(WS)}, s72 offen {spol}")
    e("s_mov_b64 exec, 1")
    e(f"buffer_store_dwordx4 v[68:71], v101, {srd(WS)}, s73 offen {spol}")
    e("s_mov_b64 exec, -1")
    if not v3:
        e(f"s_cmp_lg_u32 s{HW}, 3")
        e("s_cbranch_scc1 L_wo_skip")
        for i in range(16):
            r = 192 + 4 * i
            e(f"ds_read_b128 v[{r}:{r+3}], v122 offset:{L_WO+1024*i}")
            if i == 7:
                e("s_waitcnt lgkmcnt(4)")
        e("L_wo_skip:")
    stamp(5)
    poll([(f"buffer_load_dwordx4 v[16:19], v14, {srd(WS)}, s74 offen {ppol}", (17, 19))] +
         [(f"buffer_load_dwordx4 v[{20+4*i}:{23+4*i}], v4, {srd(WS)}, s{98+i} offen {ppol}", (21 + 4 * i, 23 + 4 * i)) for i in range(4)],
         "L_ppoll", tsleep)
    e("v_mov_b32 v17, v16")
    for s in (8, 4, 2, 1):
        e(f"v_max_f32_dpp v17, v17, v17 row_ror:{s} {DPPM}")
    e("v_sub_f32 v16, v16, v17")
    e("v_exp_f32 v16, v16")
    e("v_mul_f32 v18, v16, v18")
    for s in (8, 4, 2, 1):
        e(f"v_add_f32_dpp v18, v18, v18 row_ror:{s} {DPPM}")
    e("v_rcp_f32 v18, v18")
    e("v_mul_f32 v16, v16, v18")
    e(f"v_mul_f32_dpp v36, v16, v20 row_newbcast:0 {DPPM}")
    e(f"v_mul_f32_dpp v37, v16, v22 row_newbcast:0 {DPPM}")
    for i in range(1, 4):
        e(f"v_fmac_f32_dpp v36, v16, v{20+4*i} row_newbcast:{2*i} {DPPM}")
        e(f"v_fmac_f32_dpp v37, v16, v{22+4*i} row_newbcast:{2*i} {DPPM}")
    e("v_permlane32_swap_b32 v36, v37")
    e("v_add_f32 v36, v36, v37")
    e(f"ds_write_b32 v15, v36 offset:{L_OP}")
    e("s_waitcnt lgkmcnt(0)")
    stamp(6)
    e("s_barrier")
    e(f"s_cmp_lg_u32 s{HW}, 3")
    e("s_cbranch_scc1 L_h6_skip")
    for s in range(2):
        for w in range(2):
            for c in range(2):
                r = 32 + 16 * s + 8 * w + 4 * c
                e(f"ds_read_b128 v[{r}:{r+3}], v7 offset:{L_OP+128*s+256*w+16*c}")
    e("s_mov_b32 s78, 0xcccccccc")
    e("s_mov_b32 s79, 0xcccccccc")
    e("s_mov_b32 s80, 0xf0f0f0f0")
    e("s_mov_b32 s81, 0xf0f0f0f0")
    e("s_mov_b32 s82, 0xff00ff00")
    e("s_mov_b32 s83, 0xff00ff00")
    e("s_waitcnt lgkmcnt(0)")
    for s in range(2):
        for k in range(4):
            r = 32 + 16 * s + 2 * k
            e(f"v_pk_add_f32 v[{r}:{r+1}], v[{r}:{r+1}], v[{r+8}:{r+9}]")
    for s in range(2):
        for k in range(4):
            r = 32 + 16 * s + 2 * k
            e(f"v_cvt_pk_bf16_f32 v{16+4*s+k}, v{r}, v{r+1}")
    for s in range(2):
        for jj in range(8):
            d = 128 + 4 * jj
            c = "0" if s == 0 else f"v[{d}:{d+3}]"
            w = 192 + 4 * (8 * s + jj)
            e(f"v_mfma_f32_16x16x32_bf16 v[{d}:{d+3}], v[{w}:{w+3}], v[{16+4*s}:{19+4*s}], {c}")
    for k in range(4):
        for r in range(4):
            e(f"v_cndmask_b32_e64 v{160+4*k+r}, v{128+8*k+r}, v{132+8*k+r}, s[78:79]")
    for k in range(2):
        for r in range(4):
            e(f"v_cndmask_b32_e64 v{176+4*k+r}, v{160+8*k+r}, v{164+8*k+r}, s[80:81]")
    for r in range(4):
        e(f"v_cndmask_b32_e64 v{64+2*r}, v{176+r}, v{180+r}, s[82:83]")
    e(f"buffer_store_dwordx4 v[64:67], v10, {srd(WS)}, s75 offen {spol}")
    e(f"buffer_store_dwordx4 v[68:71], v10, {srd(WS)}, s76 offen {spol}")
    e("L_h6_skip:")
    e("s_lshr_b32 s4, s2, 5")
    e("s_cmp_lg_u32 s4, 4")
    e("s_cbranch_scc1 L_h_exit")
    e("v_bfe_u32 v16, v0, 1, 3")
    e("v_bfe_u32 v17, v0, 4, 1")
    e("v_lshl_add_u32 v16, v17, 3, v16")
    e("v_and_b32 v17, 1, v0")
    e("v_lshlrev_b32 v118, 2, v16")
    e("v_lshl_add_u32 v118, v17, 6, v118")
    e("v_lshlrev_b32 v119, 1, v16")
    e("v_lshl_add_u32 v119, v17, 10, v119")
    e(f"ds_read_b32 v116, v118 offset:{L_G}")
    e(f"ds_read_b32 v117, v118 offset:{L_X}")
    poll([(f"buffer_load_dwordx4 v[{20+4*i}:{23+4*i}], v122, {srd(WS)}, s77 offen offset:{1024*i} {ppol}", (21 + 4 * i, 23 + 4 * i)) for i in range(4)],
         "L_spoll", tsleep)
    e("v_add_f32 v20, v20, v24")
    e("v_add_f32 v22, v22, v26")
    e("v_add_f32 v28, v28, v32")
    e("v_add_f32 v30, v30, v34")
    e("v_add_f32 v20, v20, v28")
    e("v_add_f32 v22, v22, v30")
    e("v_permlane32_swap_b32 v20, v22")
    e("v_add_f32 v20, v20, v22")
    e("v_mov_b32 v22, v20")
    e("v_permlane16_swap_b32 v20, v22")
    e("v_add_f32 v20, v20, v22")
    e(f"ds_write_b32 v11, v20 offset:{L_SP}")
    e("s_waitcnt lgkmcnt(0)")
    e("s_barrier")
    e(f"s_cmp_lg_u32 s{HW}, 0")
    e("s_cbranch_scc1 L_h_exit")
    e("s_mov_b32 exec_hi, 0")
    e("v_lshlrev_b32 v16, 2, v0")
    e(f"v_add_u32 v16, {L_SP}, v16")
    e("ds_read2_b32 v[20:21], v16 offset0:0 offset1:32")
    e("ds_read2_b32 v[22:23], v16 offset0:64 offset1:96")
    e("s_waitcnt lgkmcnt(0)")
    e("v_pk_add_f32 v[20:21], v[20:21], v[22:23]")
    e("v_add_f32 v20, v20, v21")
    bfr(20)
    e("v_mul_f32 v20, v20, v116")
    bfr(20)
    e("v_add_f32 v20, v20, v117")
    e("v_cvt_pk_bf16_f32 v20, v20, v20")
    e(f"buffer_store_short v20, v119, {srd(OUT)}, s95 offen")
    e("s_cmp_lg_u32 s2, 128")
    e("s_cbranch_scc1 L_h_exit")
    e("s_mov_b64 exec, 1")
    e(f"buffer_store_dword v65, v101, {srd(WS)}, 0 offen offset:4")
    for i in range(icp):
        e(f"v_fma_f32 v{8+(i%8)}, v1, v2, v{8+(i%8)}")
    if pad:
        e("L_padloop:")
        e("s_memrealtime s[10:11]")
        e("s_waitcnt lgkmcnt(0)")
        e("s_sub_u32 s10, s10, s8")
        e(f"s_cmp_lt_u32 s10, {pad}")
        e("s_cbranch_scc1 L_padloop")
    e("L_h_exit:")
    stamp(7)
    prof_out()
    e("L_end:")
    e("s_endpgm")

    n = a.fix_hazards()
    head = open("recurrent_scan__gqa_block_cached__mixer_channel_mlp__decode.s.ref").read().split("\n")
    lead = []
    for ln in head:
        if not ln.startswith(";"):
            break
        if "@launch" in ln and ln.startswith("; @launch"):
            lead.append(f"; @launch grid=(256,1,1) block=(512,1,1) lds={LDS_SIZE}")
        else:
            lead.append(ln)
    out = "\n".join(lead) + "\n"
    out += '.amdgcn_target "amdgcn-amd-amdhsa--gfx950"\n.text\n'
    out += f".globl {NAME}\n.p2align 8\n.type {NAME},@function\n"
    out += a.text()
    out += '.section .rodata,"a"\n.p2align 6\n'
    out += f".amdhsa_kernel {NAME}\n"
    out += "  .amdhsa_next_free_vgpr 256\n  .amdhsa_next_free_sgpr 102\n  .amdhsa_accum_offset 256\n"
    out += "  .amdhsa_group_segment_fixed_size 0\n  .amdhsa_kernarg_size 104\n  .amdhsa_user_sgpr_count 2\n"
    out += "  .amdhsa_user_sgpr_kernarg_segment_ptr 1\n  .amdhsa_system_sgpr_workgroup_id_x 1\n.end_amdhsa_kernel\n"
    return out, n

if __name__ == "__main__":
    kw = eval("dict(" + (sys.argv[2] if len(sys.argv) > 2 else "") + ")")
    txt, n = gen(**kw)
    path = sys.argv[1] if len(sys.argv) > 1 else "k2.s"
    open(path, "w").write(txt)
    print("wrote", path, "nops inserted:", n, "bytes:", len(txt))
```
